```python
import torch

def _softmax(x, axis=-1):
    return torch.softmax(x, dim=axis)
def _gelu(x):
    return torch.nn.functional.gelu(x, approximate="tanh")
def _silu(x):
    return torch.nn.functional.silu(x)
def _sigmoid(x):
    return torch.sigmoid(x)
def _layernorm(x, axis=-1, eps=1e-5):
    m = x.mean(dim=axis, keepdim=True)
    v = x.var(dim=axis, keepdim=True, unbiased=False)
    return (x - m) / torch.sqrt(v + eps)
def _scatter_add(tgt, idx, src, axis=0):
    return tgt.clone().index_add_(axis, idx, src)
def _segment_sum(src, seg, n):
    out = torch.zeros((n,) + src.shape[1:], dtype=src.dtype)
    return out.index_add_(0, seg, src)
def _pad(x, pw):
    flat = tuple(v for pair in reversed(pw) for v in pair)
    return torch.nn.functional.pad(x, flat)

kernel_name = 'parallel_sum__sliding_block__glu_gated_reglu__prompt'

def setup_inputs():

    _w = (lambda a: (lambda t: t.to(torch.bfloat16) if t.is_floating_point() else t)(torch.as_tensor(a)))
    def _A_setup():
        B, S, D = 1, 2048, 1024
        return {
            "x": _w((lambda *s: torch.randn(*s, dtype=torch.bfloat16) * 0.05)(B, S, D)),
            "wqkv": _w((lambda *s: torch.randn(*s, dtype=torch.bfloat16) * 0.05)(D, 3 * D)),
            "wo": _w((lambda *s: torch.randn(*s, dtype=torch.bfloat16) * 0.05)(D, D)),
        }
    _A_in = _A_setup()

    def _B_setup():
        B, S, D, F = 1, 2048, 1024, 3584
        return {
            "x": _w((lambda *s: torch.randn(*s, dtype=torch.bfloat16) * 0.05)(B, S, D)),
            "W_gate": _w((lambda *s: torch.randn(*s, dtype=torch.bfloat16) * 0.8)(D, F) * (2.0 / D) ** 0.5),
            "W_up": _w((lambda *s: torch.randn(*s, dtype=torch.bfloat16) * 0.8)(D, F) * (2.0 / D) ** 0.5),
            "W_down": _w((lambda *s: torch.randn(*s, dtype=torch.bfloat16) * 0.8)(F, D) * (1.0 / F) ** 0.5),
        }
    _B_in = _B_setup()

    return {
        "A_x": _A_in["x"],
        "A_wqkv": _A_in["wqkv"],
        "A_wo": _A_in["wo"],
        "B_x": _B_in["x"],
        "B_W_gate": _B_in["W_gate"],
        "B_W_up": _B_in["W_up"],
        "B_W_down": _B_in["W_down"],
    }

def reference(A_x, A_wqkv, A_wo, B_x, B_W_gate, B_W_up, B_W_down):
    def _A_ref(x, wqkv, wo):
        B, S, D = x.shape
        H = 32; Dh = D // H; W = 256
        qkv = (lambda x, *d: x.permute(*d))((x @ wqkv).reshape(B, S, 3, H, Dh), 2, 0, 3, 1, 4)
        q, k, v = qkv[0], qkv[1], qkv[2]
        scores = torch.einsum("bhqd,bhkd->bhqk", q, k) * (Dh ** -0.5)
        idx = torch.arange(S)
        mask = (idx[:, None] - idx[None, :] >= 0) & (idx[:, None] - idx[None, :] < W)
        scores = torch.where(mask[None, None], scores, -1e9)
        p = _softmax(scores, axis=-1)
        o = torch.einsum("bhqk,bhkd->bhqd", p, v)
        return (lambda x, *d: x.permute(*d))(o, 0, 2, 1, 3).reshape(B, S, D) @ wo

    def _B_ref(x, W_gate, W_up, W_down):
        gate = torch.einsum("bsd,df->bsf", x, W_gate)
        up = torch.einsum("bsd,df->bsf", x, W_up)
        gate = gate * (lambda x, dt: x.to(dt))(gate > 0, gate.dtype)
        h = gate * up
        return torch.einsum("bsf,fd->bsd", h, W_down)

    x = A_x
    xn = _layernorm(x, axis=-1)
    return x + _A_ref(xn, A_wqkv, A_wo) + _B_ref(xn, B_W_gate, B_W_up, B_W_down)
```

```python
import sys

NAME = 'parallel_sum__sliding_block__glu_gated_reglu__prompt'
XN_OFF, QKV_OFF, OH_OFF = 0, 4 << 20, 16 << 20
LD_OH = 4608 * 2
LD_QKV = 3072 * 2


class A:
    def __init__(self):
        self.lines = []

    def __call__(self, s):
        for l in s.strip('\n').split('\n'):
            self.lines.append('    ' + l.strip())

    def label(self, s):
        self.lines.append(s + ':')

    def raw(self, s):
        self.lines.append(s)

    def text(self):
        return '\n'.join(self.lines) + '\n'


def kernel_header(a, name):
    a.raw(f'.globl {name}')
    a.raw('.p2align 8')
    a.raw(f'.type {name},@function')
    a.label(name)


def kernel_desc(name, vgpr, sgpr, accum=None, wgy=False):
    accum = accum or ((vgpr + 3) // 4 * 4)
    return f'''.amdhsa_kernel {name}
  .amdhsa_next_free_vgpr {vgpr}
  .amdhsa_next_free_sgpr {sgpr}
  .amdhsa_accum_offset {accum}
  .amdhsa_group_segment_fixed_size 0
  .amdhsa_kernarg_size 80
  .amdhsa_user_sgpr_count 2
  .amdhsa_user_sgpr_kernarg_segment_ptr 1
  .amdhsa_system_sgpr_workgroup_id_x 1
.end_amdhsa_kernel
'''


def srd_from(a, dst, ptr, nbytes, off=0):
    if off:
        a(f's_add_u32 s{dst}, s{ptr}, {off}')
        a(f's_addc_u32 s{dst+1}, s{ptr+1}, 0')
    else:
        a(f's_mov_b32 s{dst}, s{ptr}')
        a(f's_mov_b32 s{dst+1}, s{ptr+1}')
    a(f's_mov_b32 s{dst+2}, {nbytes}')
    a(f's_mov_b32 s{dst+3}, 0x00020000')


def wave_sum(a, v, tmp, sdst):
    for off in (0x041F, 0x081F, 0x101F, 0x201F, 0x401F):
        a(f'ds_swizzle_b32 v{tmp}, v{v} offset:{off}')
        a('s_waitcnt lgkmcnt(0)')
        a(f'v_add_f32 v{v}, v{v}, v{tmp}')
    a('s_nop 0')
    a(f'v_readlane_b32 s{sdst}, v{v}, 32')
    a('s_nop 1')
    a(f'v_add_f32 v{v}, s{sdst}, v{v}')
    a('s_nop 0')
    a(f'v_readlane_b32 s{sdst}, v{v}, 0')
    a('s_nop 3')


def gen_ln(a):
    name = 'ln_kernel'
    kernel_header(a, name)
    a('s_cmp_ge_u32 s2, 512')
    a('s_cbranch_scc1 LN_done')
    a('s_load_dwordx2 s[4:5], s[0:1], 0')
    a('s_load_dwordx2 s[6:7], s[0:1], 72')
    a('v_lshrrev_b32 v1, 6, v0')
    a('v_and_b32 v2, 63, v0')
    a('s_lshl_b32 s3, s2, 2')
    a('v_add_u32 v1, s3, v1')
    a('v_lshlrev_b32 v1, 11, v1')
    a('v_lshlrev_b32 v2, 5, v2')
    a('v_add_u32 v1, v1, v2')
    a('s_waitcnt lgkmcnt(0)')
    srd_from(a, 8, 4, 2048 * 2048)
    srd_from(a, 12, 6, 2048 * 2048, XN_OFF)
    a('buffer_load_dwordx4 v[4:7], v1, s[8:11], 0 offen')
    a('buffer_load_dwordx4 v[8:11], v1, s[8:11], 0 offen offset:16')
    a('s_waitcnt vmcnt(0)')
    for i in range(8):
        a(f'v_lshlrev_b32 v{16+2*i}, 16, v{4+i}')
        a(f'v_and_b32 v{17+2*i}, 0xffff0000, v{4+i}')
    a('v_add_f32 v12, v16, v17')
    for i in range(18, 32):
        a(f'v_add_f32 v12, v12, v{i}')
    wave_sum(a, 12, 13, 20)
    a('v_mov_b32 v14, 0x3a800000')
    a('v_mul_f32 v14, s20, v14')
    a('v_mov_b32 v12, 0')
    for i in range(16, 32):
        a(f'v_sub_f32 v13, v{i}, v14')
        a(f'v_fmac_f32 v12, v13, v13')
    wave_sum(a, 12, 13, 21)
    a('v_mov_b32 v15, 0x3a800000')
    a('v_mul_f32 v15, s21, v15')
    a('v_cvt_pk_bf16_f32 v12, v14, v15')
    a('v_lshlrev_b32 v14, 16, v12')
    a('v_and_b32 v15, 0xffff0000, v12')
    a('v_mov_b32 v13, 0x3727c5ac')
    a('v_add_f32 v15, v15, v13')
    a('v_cvt_pk_bf16_f32 v15, v15, v15')
    a('v_lshlrev_b32 v15, 16, v15')
    a('v_sqrt_f32 v15, v15')
    a('s_nop 0')
    a('v_cvt_pk_bf16_f32 v15, v15, v15')
    a('v_lshlrev_b32 v15, 16, v15')
    a('v_rcp_f32 v15, v15')
    a('s_nop 0')
    for i in range(8):
        a(f'v_sub_f32 v{16+2*i}, v{16+2*i}, v14')
        a(f'v_sub_f32 v{17+2*i}, v{17+2*i}, v14')
        a(f'v_cvt_pk_bf16_f32 v12, v{16+2*i}, v{17+2*i}')
        a(f'v_lshlrev_b32 v{16+2*i}, 16, v12')
        a(f'v_and_b32 v{17+2*i}, 0xffff0000, v12')
        a(f'v_mul_f32 v{16+2*i}, v{16+2*i}, v15')
        a(f'v_mul_f32 v{17+2*i}, v{17+2*i}, v15')
        a(f'v_cvt_pk_bf16_f32 v{4+i}, v{16+2*i}, v{17+2*i}')
    a('buffer_store_dwordx4 v[4:7], v1, s[12:15], 0 offen')
    a('buffer_store_dwordx4 v[8:11], v1, s[12:15], 0 offen offset:16')
    a.label('LN_done')
    a('s_endpgm')
    return kernel_desc(name, 32, 32)


def gen_gemm1(a):
    name = 'gemm1_kernel'
    kernel_header(a, name)
    STAGE = 32768
    sA, sB, sO = 4, 8, 12
    a('s_cmp_ge_u32 s2, 1280')
    a('s_cbranch_scc1 G1_done')
    a('s_load_dwordx2 s[16:17], s[0:1], 8')
    a('s_load_dwordx2 s[18:19], s[0:1], 32')
    a('s_load_dwordx2 s[20:21], s[0:1], 40')
    a('s_load_dwordx2 s[22:23], s[0:1], 72')
    a('v_lshrrev_b32 v1, 6, v0')
    a('v_and_b32 v0, 63, v0')
    a('s_nop 0')
    a('v_readfirstlane_b32 s24, v1')
    a('s_and_b32 s25, s2, 7')
    a('s_lshr_b32 s26, s2, 3')
    a('s_and_b32 s27, s26, 15')
    a('s_lshr_b32 s28, s26, 4')
    a('s_mul_i32 s29, s25, 10')
    a('s_add_u32 s28, s28, s29')
    a('s_lshr_b32 s30, s24, 1')
    a('s_and_b32 s31, s24, 1')
    a('s_waitcnt lgkmcnt(0)')
    srd_from(a, sA, 22, 2048 * 2048, XN_OFF)
    a('s_cmp_lt_u32 s28, 24')
    a('s_cbranch_scc0 G1_ffn')
    srd_from(a, sB, 16, 1024 * 6144)
    a('s_mov_b32 s32, 6144')
    a('s_lshl_b32 s33, s28, 8')
    a('s_lshl_b32 s34, s30, 7')
    a('s_add_u32 s33, s33, s34')
    a('s_branch G1_bdone')
    a.label('G1_ffn')
    a('s_cmp_eq_u32 s30, 0')
    a('s_cselect_b32 s8, s18, s20')
    a('s_cselect_b32 s9, s19, s21')
    a('s_mov_b32 s10, 7340032')
    a('s_mov_b32 s11, 0x00020000')
    a('s_mov_b32 s32, 7168')
    a('s_sub_u32 s33, s28, 24')
    a('s_lshl_b32 s33, s33, 7')
    a.label('G1_bdone')
    a('v_lshrrev_b32 v10, 3, v0')
    a('v_and_b32 v11, 7, v0')
    a('v_lshrrev_b32 v12, 4, v0')
    a('s_lshl_b32 s34, s27, 7')
    a('s_lshl_b32 s35, s24, 5')
    a('s_add_u32 s34, s34, s35')
    a('v_add_u32 v13, s34, v10')
    a('v_lshlrev_b32 v13, 11, v13')
    a('v_xor_b32 v14, v11, v12')
    a('v_lshlrev_b32 v14, 4, v14')
    a('v_xor_b32 v15, 4, v11')
    a('v_xor_b32 v15, v15, v12')
    a('v_lshlrev_b32 v15, 4, v15')
    a('v_add_u32 v2, v13, v14')
    a('v_add_u32 v3, v13, v15')
    a('v_add_u32 v3, 0x4000, v3')
    a('v_add_u32 v4, 0x8000, v2')
    a('v_add_u32 v5, 0x8000, v3')
    a('s_lshl_b32 s35, s31, 5')
    a('v_add_u32 v13, s35, v10')
    a('v_mul_lo_u32 v13, v13, s32')
    a('v_and_b32 v14, 1, v12')
    a('v_lshlrev_b32 v14, 2, v14')
    a('v_xor_b32 v14, v14, v11')
    a('v_lshlrev_b32 v14, 4, v14')
    a('v_add_u32 v13, v13, v14')
    a('v_add_u32 v6, s33, v13')
    a('s_lshl_b32 s36, s32, 3')
    a('v_add_u32 v7, s36, v6')
    a('v_add_u32 v8, s36, v7')
    a('v_add_u32 v9, s36, v8')
    a('s_lshl_b32 s37, s32, 6')
    a('s_lshl_b32 s38, s24, 12')
    a('v_and_b32 v10, 31, v0')
    a('s_lshl_b32 s35, s30, 6')
    a('v_add_u32 v10, s35, v10')
    a('v_lshrrev_b32 v11, 1, v10')
    a('v_and_b32 v11, 7, v11')
    a('v_lshrrev_b32 v12, 5, v0')
    a('v_lshlrev_b32 v10, 7, v10')
    for ks in range(4):
        a(f'v_add_u32 v13, {ks*2}, v12')
        a('v_xor_b32 v13, v13, v11')
        a('v_lshlrev_b32 v13, 4, v13')
        a(f'v_add_u32 v{16+ks}, v10, v13')
    a('v_lshrrev_b32 v10, 4, v0')
    a('v_and_b32 v11, 15, v0')
    a('v_lshrrev_b32 v12, 1, v10')
    a('v_lshlrev_b32 v12, 3, v12')
    a('v_lshrrev_b32 v13, 2, v11')
    a('v_add_u32 v12, v12, v13')
    a('v_lshlrev_b32 v12, 7, v12')
    a('v_and_b32 v13, 1, v10')
    a('v_lshlrev_b32 v13, 1, v13')
    a('v_bfe_u32 v14, v11, 1, 1')
    a('v_add_u32 v13, v13, v14')
    a('s_lshl_b32 s35, s31, 2')
    a('v_add_u32 v13, s35, v13')
    a('v_bfe_u32 v14, v11, 3, 1')
    a('v_lshlrev_b32 v14, 2, v14')
    a('v_xor_b32 v13, v13, v14')
    a('v_lshlrev_b32 v13, 4, v13')
    a('v_add_u32 v12, v12, v13')
    a('v_and_b32 v13, 1, v11')
    a('v_lshlrev_b32 v13, 3, v13')
    a('v_add_u32 v12, v12, v13')
    a('v_add_u32 v20, 16384, v12')
    for i in range(64, 128):
        a(f'v_mov_b32 v{i}, 0')
    a('s_mov_b32 s40, 0')
    a('s_mov_b32 s41, 0')

    def dma(stage):
        for i in range(4):
            a(f's_add_u32 m0, s38, {stage*STAGE + i*1024}')
            a('s_nop 0')
            a(f'buffer_load_dwordx4 v{2+i}, s[{sA}:{sA+3}], s40 offen lds')
        for i in range(4):
            a(f's_add_u32 m0, s38, {stage*STAGE + 16384 + i*1024}')
            a('s_nop 0')
            a(f'buffer_load_dwordx4 v{6+i}, s[{sB}:{sB+3}], s41 offen lds')
        a('s_add_u32 s40, s40, 128')
        a('s_add_u32 s41, s41, s37')

    def reads(stage, ks, st):
        base = 32 + st * 16
        for mb in range(2):
            a(f'ds_read_b128 v[{base+mb*4}:{base+mb*4+3}], v{16+ks} offset:{stage*STAGE + mb*4096}')
        for t in range(2):
            for half in range(2):
                r = base + 8 + t * 4 + half * 2
                a(f'ds_read_b64_tr_b16 v[{r}:{r+1}], v20 offset:{stage*STAGE + t*8192 + ks*2048 + half*512}')

    def compute(stage):
        reads(stage, 0, 0)
        for ks in range(4):
            if ks < 3:
                reads(stage, ks + 1, (ks + 1) & 1)
                a('s_waitcnt lgkmcnt(6)')
            else:
                a('s_waitcnt lgkmcnt(0)')
            base = 32 + (ks & 1) * 16
            for t in range(2):
                for mb in range(2):
                    acc = 64 + (t * 2 + mb) * 16
                    a(f'v_mfma_f32_32x32x16_bf16 v[{acc}:{acc+15}], v[{base+8+t*4}:{base+8+t*4+3}], v[{base+mb*4}:{base+mb*4+3}], v[{acc}:{acc+15}]')

    dma(0)
    a('s_mov_b32 s42, 0')
    a.label('G1_loop')
    a('s_waitcnt vmcnt(0)')
    a('s_barrier')
    dma(1)
    compute(0)
    a('s_waitcnt vmcnt(0)')
    a('s_barrier')
    a('s_cmp_ge_u32 s42, 14')
    a('s_cbranch_scc1 G1_noload')
    dma(0)
    a.label('G1_noload')
    compute(1)
    a('s_add_u32 s42, s42, 2')
    a('s_cmp_lt_u32 s42, 16')
    a('s_cbranch_scc1 G1_loop')
    a('s_nop 15')
    a('v_and_b32 v10, 31, v0')
    a('s_lshl_b32 s34, s27, 7')
    a('s_lshl_b32 s35, s30, 6')
    a('s_add_u32 s34, s34, s35')
    a('v_add_u32 v10, s34, v10')
    a('v_lshrrev_b32 v11, 5, v0')
    a('v_lshlrev_b32 v11, 3, v11')
    a('s_lshl_b32 s35, s31, 6')
    a('v_add_u32 v11, s35, v11')
    a('s_cmp_lt_u32 s28, 24')
    a('s_cbranch_scc0 G1_epi_ffn')
    srd_from(a, sO, 22, 2048 * LD_QKV, QKV_OFF)
    a('s_mov_b32 s36, %d' % LD_QKV)
    a('v_mul_lo_u32 v10, v10, s36')
    a('v_add_u32 v10, v10, v11')
    a('s_lshl_b32 s35, s28, 8')
    a('v_add_u32 v10, s35, v10')
    a(f'v_add_u32 v11, {32*LD_QKV}, v10')
    for t in range(2):
        for mb in range(2):
            acc = 64 + (t * 2 + mb) * 16
            for rq in range(4):
                a(f'v_cvt_pk_bf16_f32 v12, v{acc+rq*4}, v{acc+rq*4+1}')
                a(f'v_cvt_pk_bf16_f32 v13, v{acc+rq*4+2}, v{acc+rq*4+3}')
                a(f'buffer_store_dwordx2 v[12:13], v{10+mb}, s[{sO}:{sO+3}], 0 offen offset:{t*128 + rq*16}')
                a('s_nop 0')
    a('s_branch G1_done')
    a.label('G1_epi_ffn')
    srd_from(a, sO, 22, 2048 * LD_OH, OH_OFF)
    a('s_mov_b32 s36, %d' % LD_OH)
    a('v_mul_lo_u32 v10, v10, s36')
    a('v_add_u32 v10, v10, v11')
    a('s_sub_u32 s35, s28, 24')
    a('s_lshl_b32 s35, s35, 7')
    a('s_add_u32 s35, s35, 2048')
    a('v_add_u32 v10, s35, v10')
    a(f'v_add_u32 v11, {32*LD_OH}, v10')
    for mb in range(2):
        g = 64 + (0 * 2 + mb) * 16
        u = 64 + (1 * 2 + mb) * 16
        for rq in range(4):
            for p in range(2):
                r = rq * 4 + p * 2
                a(f'v_cvt_pk_bf16_f32 v14, v{g+r}, v{g+r+1}')
                a(f'v_cvt_pk_bf16_f32 v15, v{u+r}, v{u+r+1}')
                a('v_lshlrev_b32 v16, 16, v14')
                a('v_and_b32 v17, 0xffff0000, v14')
                a('v_lshlrev_b32 v18, 16, v15')
                a('v_and_b32 v19, 0xffff0000, v15')
                a('v_max_f32 v16, 0, v16')
                a('v_max_f32 v17, 0, v17')
                a('v_mul_f32 v16, v16, v18')
                a('v_mul_f32 v17, v17, v19')
                a(f'v_cvt_pk_bf16_f32 v{12+p}, v16, v17')
            a(f'buffer_store_dwordx2 v[12:13], v{10+mb}, s[{sO}:{sO+3}], 0 offen offset:{rq*16}')
            a('s_nop 0')
    a.label('G1_done')
    a('s_endpgm')
    return kernel_desc(name, 128, 48)


def gen_attn(a):
    name = 'attn_kernel'
    kernel_header(a, name)
    sQ, sO = 4, 8
    KOFF, VOFF = 0, 20480
    a('s_cmp_ge_u32 s2, 1024')
    a('s_cbranch_scc1 AT_done')
    a('s_load_dwordx2 s[16:17], s[0:1], 72')
    a('v_lshrrev_b32 v1, 6, v0')
    a('v_and_b32 v0, 63, v0')
    a('s_nop 0')
    a('v_readfirstlane_b32 s24, v1')
    a('s_and_b32 s25, s2, 31')
    a('s_lshr_b32 s26, s2, 5')
    a('s_lshl_b32 s27, s26, 6')
    a('s_waitcnt lgkmcnt(0)')
    srd_from(a, sQ, 16, 2048 * LD_QKV, QKV_OFF)
    srd_from(a, sO, 16, 2048 * LD_OH, OH_OFF)
    a('v_lshrrev_b32 v10, 2, v0')
    a('v_and_b32 v11, 3, v0')
    a('s_lshl_b32 s28, s24, 4')
    a('s_add_u32 s28, s28, s27')
    a('s_sub_u32 s28, s28, 256')
    a('v_add_u32 v10, s28, v10')
    a('s_mov_b32 s29, %d' % LD_QKV)
    a('v_mul_lo_u32 v10, v10, s29')
    a('v_lshlrev_b32 v11, 4, v11')
    a('v_add_u32 v10, v10, v11')
    a('s_lshl_b32 s30, s25, 6')
    a('v_add_u32 v10, s30, v10')
    a('v_add_u32 v12, 2048, v10')
    a('v_add_u32 v13, 4096, v10')
    a('s_lshl_b32 s31, s24, 10')
    a('s_mov_b32 s33, 0')
    for j in range(5):
        a(f's_add_u32 m0, s31, {KOFF + j*4096}')
        a('s_nop 0')
        a(f'buffer_load_dwordx4 v12, s[{sQ}:{sQ+3}], s33 offen lds')
        a(f's_add_u32 m0, s31, {VOFF + j*4096}')
        a('s_nop 0')
        a(f'buffer_load_dwordx4 v13, s[{sQ}:{sQ+3}], s33 offen lds')
        if j < 4:
            a(f'v_add_u32 v12, {64*LD_QKV}, v12')
            a(f'v_add_u32 v13, {64*LD_QKV}, v13')
    a('v_and_b32 v14, 15, v0')
    a('s_lshl_b32 s28, s24, 4')
    a('s_add_u32 s28, s28, s27')
    a('v_add_u32 v15, s28, v14')
    a('v_mul_lo_u32 v16, v15, s29')
    a('v_lshrrev_b32 v17, 4, v0')
    a('v_lshlrev_b32 v18, 4, v17')
    a('v_add_u32 v16, v16, v18')
    a('v_add_u32 v16, s30, v16')
    a(f'buffer_load_dwordx4 v[4:7], v16, s[{sQ}:{sQ+3}], 0 offen')
    a('v_lshlrev_b32 v20, 6, v14')
    a('v_add_u32 v20, v20, v18')
    a('v_add_u32 v20, s31, v20')
    a('v_lshlrev_b32 v21, 2, v17')
    a('v_lshrrev_b32 v22, 2, v14')
    a('v_add_u32 v21, v21, v22')
    a('v_lshlrev_b32 v21, 6, v21')
    a('v_and_b32 v22, 3, v14')
    a('v_lshlrev_b32 v22, 3, v22')
    a('v_add_u32 v21, v21, v22')
    a('v_add_u32 v21, s31, v21')
    a(f'v_add_u32 v21, {VOFF}, v21')
    a('s_waitcnt vmcnt(0)')
    a('s_barrier')
    NT = 17
    for t in range(NT):
        r = 24 + (t & 3) * 4
        a(f'ds_read_b128 v[{r}:{r+3}], v20 offset:{KOFF + t*1024}')
        if t >= 1:
            tp = t - 1
            rp = 24 + (tp & 3) * 4
            a('s_waitcnt lgkmcnt(1)')
            a(f'v_mfma_f32_16x16x32_bf16 v[{64+tp*4}:{64+tp*4+3}], v[{rp}:{rp+3}], v[4:7], 0')
    a('s_waitcnt lgkmcnt(0)')
    tp = NT - 1
    rp = 24 + (tp & 3) * 4
    a(f'v_mfma_f32_16x16x32_bf16 v[{64+tp*4}:{64+tp*4+3}], v[{rp}:{rp+3}], v[4:7], 0')
    a('v_add_u32 v22, 1, v14')
    a('s_sub_u32 s34, 256, s28')
    a('v_max_i32 v22, s34, v22')
    a('v_add_u32 v23, 256, v14')
    a('v_sub_u32 v23, v23, v22')
    a('v_lshlrev_b32 v40, 2, v17')
    a('v_sub_u32 v22, v40, v22')
    a('s_nop 7')
    a('v_mov_b32 v41, 0xf149f2ca')
    a('v_mov_b32 v42, 0xf149f2ca')
    a('s_mov_b32 s35, 0x3e3504f3')
    for t in range(NT):
        for r in range(4):
            s = 64 + t * 4 + r
            a(f'v_cvt_pk_bf16_f32 v43, v{s}, v{s}')
            a('v_lshlrev_b32 v43, 16, v43')
            a('v_mul_f32 v43, s35, v43')
            a('v_cvt_pk_bf16_f32 v43, v43, v43')
            a(f'v_lshlrev_b32 v{s}, 16, v43')
            a(f'v_add_u32 v44, {16*t + r}, v22')
            a('v_cmp_le_u32 vcc, v44, v23')
            a('s_nop 1')
            a(f'v_cndmask_b32 v{s}, v41, v{s}, vcc')
            a(f'v_max_f32 v42, v42, v{s}')
    a('ds_swizzle_b32 v43, v42 offset:0x401F')
    a('s_waitcnt lgkmcnt(0)')
    a('v_max_f32 v42, v42, v43')
    a('v_lshlrev_b32 v45, 2, v0')
    a('v_xor_b32 v45, 128, v45')
    a('ds_bpermute_b32 v43, v45, v42')
    a('s_waitcnt lgkmcnt(0)')
    a('v_max_f32 v42, v42, v43')
    a('s_mov_b32 s36, 0x3fb8aa3b')
    a('v_mov_b32 v46, 0')
    for t in range(NT):
        for r in range(4):
            s = 64 + t * 4 + r
            a(f'v_sub_f32 v{s}, v{s}, v42')
            a(f'v_mul_f32 v{s}, s36, v{s}')
            a(f'v_exp_f32 v{s}, v{s}')
            a('s_nop 0')
            a(f'v_add_f32 v46, v46, v{s}')
    a('ds_swizzle_b32 v43, v46 offset:0x401F')
    a('s_waitcnt lgkmcnt(0)')
    a('v_add_f32 v46, v46, v43')
    a('ds_bpermute_b32 v43, v45, v46')
    a('s_waitcnt lgkmcnt(0)')
    a('v_add_f32 v46, v46, v43')
    a('v_rcp_f32 v46, v46')
    a('s_nop 0')
    for t in range(NT):
        s = 64 + t * 4
        for r in range(4):
            a(f'v_mul_f32 v{s+r}, v{s+r}, v46')
        a(f'v_cvt_pk_bf16_f32 v{132+t*2}, v{s}, v{s+1}')
        a(f'v_cvt_pk_bf16_f32 v{133+t*2}, v{s+2}, v{s+3}')
    for i in range(48, 56):
        a(f'v_mov_b32 v{i}, 0')
    for tp in range(8):
        t0 = tp * 2
        rb = 24 + (tp & 1) * 8
        for dhh in range(2):
            a(f'ds_read_b64_tr_b16 v[{rb+dhh*4}:{rb+dhh*4+1}], v21 offset:{t0*1024 + dhh*32}')
            a(f'ds_read_b64_tr_b16 v[{rb+dhh*4+2}:{rb+dhh*4+3}], v21 offset:{(t0+1)*1024 + dhh*32}')
        a('s_waitcnt lgkmcnt(0)')
        for dhh in range(2):
            a(f'v_mfma_f32_16x16x32_bf16 v[{48+dhh*4}:{48+dhh*4+3}], v[{rb+dhh*4}:{rb+dhh*4+3}], v[{132+t0*2}:{132+t0*2+3}], v[{48+dhh*4}:{48+dhh*4+3}]')
    for dhh in range(2):
        a(f'ds_read_b64_tr_b16 v[{24+dhh*2}:{24+dhh*2+1}], v21 offset:{16*1024 + dhh*32}')
    a('s_waitcnt lgkmcnt(0)')
    for dhh in range(2):
        a(f'v_mfma_f32_16x16x16_bf16 v[{48+dhh*4}:{48+dhh*4+3}], v[{24+dhh*2}:{24+dhh*2+1}], v[{132+32}:{132+33}], v[{48+dhh*4}:{48+dhh*4+3}]')
    a('s_nop 15')
    a('s_mov_b32 s29, %d' % LD_OH)
    a('v_mul_lo_u32 v16, v15, s29')
    a('v_lshlrev_b32 v18, 3, v17')
    a('v_add_u32 v16, v16, v18')
    a('v_add_u32 v16, s30, v16')
    for dhh in range(2):
        a(f'v_cvt_pk_bf16_f32 v12, v{48+dhh*4}, v{49+dhh*4}')
        a(f'v_cvt_pk_bf16_f32 v13, v{50+dhh*4}, v{51+dhh*4}')
        a(f'buffer_store_dwordx2 v[12:13], v16, s[{sO}:{sO+3}], 0 offen offset:{dhh*32}')
        a('s_nop 0')
    a.label('AT_done')
    a('s_endpgm')
    return kernel_desc(name, 168, 48)


def gen_gemm2(a):
    name = 'gemm2_kernel'
    kernel_header(a, name)
    STAGE = 24576
    NST = 4
    sA, sB, sO, sX = 4, 8, 12, 44
    a('s_cmp_ge_u32 s2, 256')
    a('s_cbranch_scc1 G2_done')
    a('s_load_dwordx2 s[16:17], s[0:1], 16')
    a('s_load_dwordx2 s[18:19], s[0:1], 48')
    a('s_load_dwordx2 s[20:21], s[0:1], 0')
    a('s_load_dwordx2 s[22:23], s[0:1], 72')
    a('s_load_dwordx2 s[48:49], s[0:1], 56')
    a('v_lshrrev_b32 v1, 6, v0')
    a('v_and_b32 v0, 63, v0')
    a('s_nop 0')
    a('v_readfirstlane_b32 s24, v1')
    a('s_and_b32 s25, s2, 7')
    a('s_lshr_b32 s26, s2, 3')
    a('s_and_b32 s27, s26, 1')
    a('s_lshl_b32 s29, s25, 1')
    a('s_add_u32 s27, s27, s29')
    a('s_lshr_b32 s28, s26, 1')
    a('s_lshr_b32 s30, s24, 1')
    a('s_and_b32 s31, s24, 1')
    a('s_waitcnt lgkmcnt(0)')
    srd_from(a, sA, 22, 2048 * LD_OH, OH_OFF)
    srd_from(a, sB, 16, 1024 * 2048)
    srd_from(a, sO, 48, 2048 * 2048)
    srd_from(a, sX, 20, 2048 * 2048)
    a('v_lshrrev_b32 v10, 3, v0')
    a('v_and_b32 v11, 7, v0')
    a('v_lshrrev_b32 v12, 4, v0')
    a('s_lshl_b32 s34, s27, 7')
    a('s_lshl_b32 s35, s24, 5')
    a('s_add_u32 s34, s34, s35')
    a('v_add_u32 v13, s34, v10')
    a('s_mov_b32 s36, %d' % LD_OH)
    a('v_mul_lo_u32 v13, v13, s36')
    a('v_xor_b32 v14, v11, v12')
    a('v_lshlrev_b32 v14, 4, v14')
    a('v_xor_b32 v15, 4, v11')
    a('v_xor_b32 v15, v15, v12')
    a('v_lshlrev_b32 v15, 4, v15')
    a('v_add_u32 v2, v13, v14')
    a('v_add_u32 v3, v13, v15')
    a(f'v_add_u32 v3, {8*LD_OH}, v3')
    a(f'v_add_u32 v4, {16*LD_OH}, v2')
    a(f'v_add_u32 v5, {16*LD_OH}, v3')
    a('s_lshl_b32 s35, s24, 4')
    a('v_add_u32 v13, s35, v10')
    a('v_lshlrev_b32 v13, 11, v13')
    a('v_and_b32 v14, 1, v12')
    a('v_lshlrev_b32 v14, 2, v14')
    a('v_xor_b32 v14, v14, v11')
    a('v_lshlrev_b32 v14, 4, v14')
    a('v_add_u32 v13, v13, v14')
    a('s_lshl_b32 s33, s28, 7')
    a('v_add_u32 v6, s33, v13')
    a('v_add_u32 v7, 0x4000, v6')
    a('s_lshl_b32 s38, s24, 12')
    a('s_lshl_b32 s39, s24, 11')
    a('v_and_b32 v10, 31, v0')
    a('s_lshl_b32 s35, s30, 6')
    a('v_add_u32 v10, s35, v10')
    a('v_lshrrev_b32 v11, 1, v10')
    a('v_and_b32 v11, 7, v11')
    a('v_lshrrev_b32 v12, 5, v0')
    a('v_lshlrev_b32 v10, 7, v10')
    a('s_lshl_b32 s35, s31, 2')
    for j in range(2):
        a(f'v_add_u32 v13, {j*2}, v12')
        a('v_add_u32 v13, s35, v13')
        a('v_xor_b32 v13, v13, v11')
        a('v_lshlrev_b32 v13, 4, v13')
        a(f'v_add_u32 v{16+j}, v10, v13')
    a('v_lshrrev_b32 v10, 4, v0')
    a('v_and_b32 v11, 15, v0')
    a('v_lshrrev_b32 v12, 1, v10')
    a('v_lshlrev_b32 v12, 3, v12')
    a('v_lshrrev_b32 v13, 2, v11')
    a('v_add_u32 v12, v12, v13')
    a('v_lshlrev_b32 v12, 7, v12')
    a('v_and_b32 v13, 1, v10')
    a('v_lshlrev_b32 v13, 1, v13')
    a('v_bfe_u32 v14, v11, 1, 1')
    a('v_add_u32 v13, v13, v14')
    a('v_bfe_u32 v14, v11, 3, 1')
    a('v_lshlrev_b32 v14, 2, v14')
    a('v_and_b32 v15, 1, v11')
    a('v_lshlrev_b32 v15, 3, v15')
    a('v_add_u32 v12, v12, v15')
    a('s_lshl_b32 s35, s31, 12')
    a('v_add_u32 v12, s35, v12')
    a('v_add_u32 v12, 16384, v12')
    for t in range(2):
        a(f'v_add_u32 v15, {t*4}, v13')
        a('v_xor_b32 v15, v15, v14')
        a('v_lshlrev_b32 v15, 4, v15')
        a(f'v_add_u32 v{20+t}, v12, v15')
    a('v_add_u32 v18, 49152, v16')
    a('v_add_u32 v19, 49152, v17')
    a('v_add_u32 v22, 49152, v20')
    a('v_add_u32 v23, 49152, v21')
    for i in range(64, 128):
        a(f'v_mov_b32 v{i}, 0')
    a('s_mov_b32 s40, 0')
    a('s_mov_b32 s41, 0')
    a('s_mov_b32 s43, 0')

    def dma(stage):
        a('s_cmp_eq_u32 s43, 16')
        a('s_cselect_b32 s8, s18, s8')
        a('s_cselect_b32 s9, s19, s9')
        a('s_cselect_b32 s10, %d, s10' % (3584 * 2048))
        a('s_cselect_b32 s41, 0, s41')
        for i in range(4):
            a(f's_add_u32 m0, s38, {stage*STAGE + i*1024}')
            a('s_nop 0')
            a(f'buffer_load_dwordx4 v{2+i}, s[{sA}:{sA+3}], s40 offen lds')
        for i in range(2):
            a(f's_add_u32 m0, s39, {stage*STAGE + 16384 + i*1024}')
            a('s_nop 0')
            a(f'buffer_load_dwordx4 v{6+i}, s[{sB}:{sB+3}], s41 offen lds')
        a('s_add_u32 s40, s40, 128')
        a('s_add_u32 s41, s41, 0x20000')
        a('s_add_u32 s43, s43, 1')

    def compute(stage):
        for j in range(2):
            base = 32 + j * 16
            for mb in range(2):
                a(f'ds_read_b128 v[{base+mb*4}:{base+mb*4+3}], v{16+j+2*(stage>>1)} offset:{(stage&1)*STAGE + mb*4096}')
            for t in range(2):
                for half in range(2):
                    r = base + 8 + t * 4 + half * 2
                    a(f'ds_read_b64_tr_b16 v[{r}:{r+1}], v{20+t+2*(stage>>1)} offset:{(stage&1)*STAGE + j*2048 + half*512}')
        for j in range(2):
            a(f's_waitcnt lgkmcnt({6 if j == 0 else 0})')
            base = 32 + j * 16
            for t in range(2):
                for mb in range(2):
                    acc = 64 + (t * 2 + mb) * 16
                    a(f'v_mfma_f32_32x32x16_bf16 v[{acc}:{acc+15}], v[{base+8+t*4}:{base+8+t*4+3}], v[{base+mb*4}:{base+mb*4+3}], v[{acc}:{acc+15}]')

    for s in range(3):
        dma(s)
    a('s_mov_b32 s42, 0')
    a.label('G2_loop')
    for u in range(NST):
        a('s_waitcnt vmcnt(12)')
        a('s_barrier')
        a('s_cmp_ge_u32 s43, 72')
        a(f's_cbranch_scc1 G2_nl{u}')
        dma((u + 3) % NST)
        a(f's_branch G2_c{u}')
        a.label(f'G2_nl{u}')
        a('s_waitcnt vmcnt(0)')
        a('s_barrier')
        a.label(f'G2_c{u}')
        compute(u)
    a('s_add_u32 s42, s42, 4')
    a('s_cmp_lt_u32 s42, 72')
    a('s_cbranch_scc1 G2_loop')
    a('s_nop 15')
    a('s_barrier')
    a('v_lshlrev_b32 v10, 2, v0')
    a('s_xor_b32 s35, s24, 1')
    a('s_lshl_b32 s35, s35, 13')
    a('v_add_u32 v10, s35, v10')
    a('v_lshlrev_b32 v11, 2, v0')
    a('s_lshl_b32 s35, s24, 13')
    a('v_add_u32 v11, s35, v11')
    a('s_cmp_eq_u32 s31, 0')
    a('s_cbranch_scc0 G2_x1')
    for t in range(2):
        acc = 64 + (t * 2 + 1) * 16
        for r in range(16):
            a(f'ds_write_b32 v10, v{acc+r} offset:{(t*16+r)*256}')
    a('s_branch G2_x2')
    a.label('G2_x1')
    for t in range(2):
        acc = 64 + (t * 2 + 0) * 16
        for r in range(16):
            a(f'ds_write_b32 v10, v{acc+r} offset:{(t*16+r)*256}')
    for t in range(2):
        for r in range(16):
            a(f'v_mov_b32 v{64+(t*2)*16+r}, v{64+(t*2+1)*16+r}')
    a.label('G2_x2')
    a('s_waitcnt lgkmcnt(0)')
    a('s_barrier')
    for t in range(2):
        for r in range(16):
            a(f'ds_read_b32 v{32+(r&7)}, v11 offset:{(t*16+r)*256}')
            if (r & 7) == 7:
                a('s_waitcnt lgkmcnt(0)')
                for rr in range(r - 7, r + 1):
                    a(f'v_add_f32 v{64+(t*2)*16+rr}, v{64+(t*2)*16+rr}, v{32+(rr&7)}')
    a('v_and_b32 v10, 31, v0')
    a('s_lshl_b32 s34, s27, 7')
    a('s_lshl_b32 s35, s30, 6')
    a('s_add_u32 s34, s34, s35')
    a('s_lshl_b32 s35, s31, 5')
    a('s_add_u32 s34, s34, s35')
    a('v_add_u32 v10, s34, v10')
    a('v_lshlrev_b32 v10, 11, v10')
    a('v_lshrrev_b32 v11, 5, v0')
    a('v_lshlrev_b32 v11, 3, v11')
    a('v_add_u32 v10, v10, v11')
    a('v_add_u32 v10, s33, v10')
    for t in range(2):
        for rq in range(4):
            a(f'buffer_load_dwordx2 v[{32+(t*4+rq)*2}:{33+(t*4+rq)*2}], v10, s[{sX}:{sX+3}], 0 offen offset:{t*64 + rq*16}')
    a('s_waitcnt vmcnt(0)')
    for t in range(2):
        acc = 64 + (t * 2) * 16
        for rq in range(4):
            xr = 32 + (t * 4 + rq) * 2
            a(f'v_lshlrev_b32 v12, 16, v{xr}')
            a(f'v_and_b32 v13, 0xffff0000, v{xr}')
            a(f'v_lshlrev_b32 v14, 16, v{xr+1}')
            a(f'v_and_b32 v15, 0xffff0000, v{xr+1}')
            for q in range(4):
                a(f'v_add_f32 v{12+q}, v{12+q}, v{acc+rq*4+q}')
            a('v_cvt_pk_bf16_f32 v12, v12, v13')
            a('v_cvt_pk_bf16_f32 v13, v14, v15')
            a(f'buffer_store_dwordx2 v[12:13], v10, s[{sO}:{sO+3}], 0 offen offset:{t*64 + rq*16}')
            a('s_nop 0')
    a.label('G2_done')
    a('s_endpgm')
    return kernel_desc(name, 128, 56)


def main():
    a = A()
    launches = []
    descs = []
    head = open(f'cdna_kernels/{NAME}.s.ref').read().split('\n')
    hdr = [l for l in head if l.startswith(';') and '@launch' not in l and 'Override launch' not in l and 'grid=ceil' not in l]
    which = sys.argv[1:] or ['ln', 'gemm1', 'attn', 'gemm2']
    body = A()
    if 'ln' in which:
        launches.append('; @launch kernel=ln_kernel grid=(512,1,1) block=(256,1,1) lds=0')
        descs.append(gen_ln(body))
    if 'gemm1' in which:
        launches.append('; @launch kernel=gemm1_kernel grid=(1280,1,1) block=(256,1,1) lds=65536')
        descs.append(gen_gemm1(body))
    if 'attn' in which:
        launches.append('; @launch kernel=attn_kernel grid=(1024,1,1) block=(256,1,1) lds=40960')
        descs.append(gen_attn(body))
    if 'gemm2' in which:
        launches.append('; @launch kernel=gemm2_kernel grid=(256,1,1) block=(256,1,1) lds=98304')
        descs.append(gen_gemm2(body))
    out = '\n'.join(hdr) + '\n' + '\n'.join(launches) + '\n'
    out += '.amdgcn_target "amdgcn-amd-amdhsa--gfx950"\n.text\n'
    out += body.text()
    out += '.section .rodata,"a"\n.p2align 6\n' + '.p2align 6\n'.join(descs)
    open(f'cdna_kernels/{NAME}.s', 'w').write(out)


main()
```

```python
import sys

NAME = 'parallel_sum__sliding_block__glu_gated_reglu__prompt'
XN_OFF, QKV_OFF, OH_OFF = 0, 4 << 20, 16 << 20
LD_OH = 4608 * 2
LD_QKV = 3072 * 2


P = {'g1_nst': 2}
import os, json
if os.environ.get('GP'):
    P.update(json.loads(os.environ['GP']))

class A:
    def __init__(self):
        self.lines = []

    def __call__(self, s):
        for l in s.strip('\n').split('\n'):
            self.lines.append('    ' + l.strip())

    def label(self, s):
        self.lines.append(s + ':')

    def raw(self, s):
        self.lines.append(s)

    def text(self):
        return '\n'.join(self.lines) + '\n'


def kernel_header(a, name):
    a.raw(f'.globl {name}')
    a.raw('.p2align 8')
    a.raw(f'.type {name},@function')
    a.label(name)


def kernel_desc(name, vgpr, sgpr, accum=None, wgy=False):
    accum = accum or ((vgpr + 3) // 4 * 4)
    return f'''.amdhsa_kernel {name}
  .amdhsa_next_free_vgpr {vgpr}
  .amdhsa_next_free_sgpr {sgpr}
  .amdhsa_accum_offset {accum}
  .amdhsa_group_segment_fixed_size 0
  .amdhsa_kernarg_size 80
  .amdhsa_user_sgpr_count 2
  .amdhsa_user_sgpr_kernarg_segment_ptr 1
  .amdhsa_system_sgpr_workgroup_id_x 1
.end_amdhsa_kernel
'''


def srd_from(a, dst, ptr, nbytes, off=0):
    if off:
        a(f's_add_u32 s{dst}, s{ptr}, {off}')
        a(f's_addc_u32 s{dst+1}, s{ptr+1}, 0')
    else:
        a(f's_mov_b32 s{dst}, s{ptr}')
        a(f's_mov_b32 s{dst+1}, s{ptr+1}')
    a(f's_mov_b32 s{dst+2}, {nbytes}')
    a(f's_mov_b32 s{dst+3}, 0x00020000')


def wave_sum(a, v, tmp, sdst):
    for off in (0x041F, 0x081F, 0x101F, 0x201F, 0x401F):
        a(f'ds_swizzle_b32 v{tmp}, v{v} offset:{off}')
        a('s_waitcnt lgkmcnt(0)')
        a(f'v_add_f32 v{v}, v{v}, v{tmp}')
    a('s_nop 0')
    a(f'v_readlane_b32 s{sdst}, v{v}, 32')
    a('s_nop 1')
    a(f'v_add_f32 v{v}, s{sdst}, v{v}')
    a('s_nop 0')
    a(f'v_readlane_b32 s{sdst}, v{v}, 0')
    a('s_nop 3')


def gen_ln(a):
    name = 'ln_kernel'
    kernel_header(a, name)
    a('s_cmp_ge_u32 s2, 512')
    a('s_cbranch_scc1 LN_done')
    a('s_load_dwordx2 s[4:5], s[0:1], 0')
    a('s_load_dwordx2 s[6:7], s[0:1], 72')
    a('v_lshrrev_b32 v1, 6, v0')
    a('v_and_b32 v2, 63, v0')
    a('s_lshl_b32 s3, s2, 2')
    a('v_add_u32 v1, s3, v1')
    a('v_lshlrev_b32 v1, 11, v1')
    a('v_lshlrev_b32 v2, 5, v2')
    a('v_add_u32 v1, v1, v2')
    a('s_waitcnt lgkmcnt(0)')
    srd_from(a, 8, 4, 2048 * 2048)
    srd_from(a, 12, 6, 2048 * 2048, XN_OFF)
    a('buffer_load_dwordx4 v[4:7], v1, s[8:11], 0 offen')
    a('buffer_load_dwordx4 v[8:11], v1, s[8:11], 0 offen offset:16')
    a('s_waitcnt vmcnt(0)')
    for i in range(8):
        a(f'v_lshlrev_b32 v{16+2*i}, 16, v{4+i}')
        a(f'v_and_b32 v{17+2*i}, 0xffff0000, v{4+i}')
    a('v_add_f32 v12, v16, v17')
    for i in range(18, 32):
        a(f'v_add_f32 v12, v12, v{i}')
    wave_sum(a, 12, 13, 20)
    a('v_mov_b32 v14, 0x3a800000')
    a('v_mul_f32 v14, s20, v14')
    a('v_mov_b32 v12, 0')
    for i in range(16, 32):
        a(f'v_sub_f32 v13, v{i}, v14')
        a(f'v_fmac_f32 v12, v13, v13')
    wave_sum(a, 12, 13, 21)
    a('v_mov_b32 v15, 0x3a800000')
    a('v_mul_f32 v15, s21, v15')
    a('v_cvt_pk_bf16_f32 v12, v14, v15')
    a('v_lshlrev_b32 v14, 16, v12')
    a('v_and_b32 v15, 0xffff0000, v12')
    a('v_mov_b32 v13, 0x3727c5ac')
    a('v_add_f32 v15, v15, v13')
    a('v_cvt_pk_bf16_f32 v15, v15, v15')
    a('v_lshlrev_b32 v15, 16, v15')
    a('v_sqrt_f32 v15, v15')
    a('s_nop 0')
    a('v_cvt_pk_bf16_f32 v15, v15, v15')
    a('v_lshlrev_b32 v15, 16, v15')
    a('v_rcp_f32 v15, v15')
    a('s_nop 0')
    for i in range(8):
        a(f'v_sub_f32 v{16+2*i}, v{16+2*i}, v14')
        a(f'v_sub_f32 v{17+2*i}, v{17+2*i}, v14')
        a(f'v_cvt_pk_bf16_f32 v12, v{16+2*i}, v{17+2*i}')
        a(f'v_lshlrev_b32 v{16+2*i}, 16, v12')
        a(f'v_and_b32 v{17+2*i}, 0xffff0000, v12')
        a(f'v_mul_f32 v{16+2*i}, v{16+2*i}, v15')
        a(f'v_mul_f32 v{17+2*i}, v{17+2*i}, v15')
        a(f'v_cvt_pk_bf16_f32 v{4+i}, v{16+2*i}, v{17+2*i}')
    a('buffer_store_dwordx4 v[4:7], v1, s[12:15], 0 offen')
    a('buffer_store_dwordx4 v[8:11], v1, s[12:15], 0 offen offset:16')
    a.label('LN_done')
    a('s_endpgm')
    return kernel_desc(name, 32, 32)


def gen_gemm1(a):
    name = 'gemm1_kernel'
    kernel_header(a, name)
    STAGE = 32768
    sA, sB, sO = 4, 8, 12
    a('s_cmp_ge_u32 s2, 1280')
    a('s_cbranch_scc1 G1_done')
    a('s_load_dwordx2 s[16:17], s[0:1], 8')
    a('s_load_dwordx2 s[18:19], s[0:1], 32')
    a('s_load_dwordx2 s[20:21], s[0:1], 40')
    a('s_load_dwordx2 s[22:23], s[0:1], 72')
    a('v_lshrrev_b32 v1, 6, v0')
    a('v_and_b32 v0, 63, v0')
    a('s_nop 0')
    a('v_readfirstlane_b32 s24, v1')
    a('s_and_b32 s25, s2, 7')
    a('s_lshr_b32 s26, s2, 3')
    a('s_and_b32 s27, s26, 15')
    a('s_lshr_b32 s28, s26, 4')
    a('s_mul_i32 s29, s25, 10')
    a('s_add_u32 s28, s28, s29')
    a('s_lshr_b32 s30, s24, 1')
    a('s_and_b32 s31, s24, 1')
    a('s_waitcnt lgkmcnt(0)')
    srd_from(a, sA, 22, 2048 * 2048, XN_OFF)
    a('s_cmp_lt_u32 s28, 24')
    a('s_cbranch_scc0 G1_ffn')
    srd_from(a, sB, 16, 1024 * 6144)
    a('s_mov_b32 s32, 6144')
    a('s_lshl_b32 s33, s28, 8')
    a('s_lshl_b32 s34, s30, 7')
    a('s_add_u32 s33, s33, s34')
    a('s_branch G1_bdone')
    a.label('G1_ffn')
    a('s_cmp_eq_u32 s30, 0')
    a('s_cselect_b32 s8, s18, s20')
    a('s_cselect_b32 s9, s19, s21')
    a('s_mov_b32 s10, 7340032')
    a('s_mov_b32 s11, 0x00020000')
    a('s_mov_b32 s32, 7168')
    a('s_sub_u32 s33, s28, 24')
    a('s_lshl_b32 s33, s33, 7')
    a.label('G1_bdone')
    a('v_lshrrev_b32 v10, 3, v0')
    a('v_and_b32 v11, 7, v0')
    a('v_lshrrev_b32 v12, 4, v0')
    a('s_lshl_b32 s34, s27, 7')
    a('s_lshl_b32 s35, s24, 5')
    a('s_add_u32 s34, s34, s35')
    a('v_add_u32 v13, s34, v10')
    a('v_lshlrev_b32 v13, 11, v13')
    a('v_xor_b32 v14, v11, v12')
    a('v_lshlrev_b32 v14, 4, v14')
    a('v_xor_b32 v15, 4, v11')
    a('v_xor_b32 v15, v15, v12')
    a('v_lshlrev_b32 v15, 4, v15')
    a('v_add_u32 v2, v13, v14')
    a('v_add_u32 v3, v13, v15')
    a('v_add_u32 v3, 0x4000, v3')
    a('v_add_u32 v4, 0x8000, v2')
    a('v_add_u32 v5, 0x8000, v3')
    if P.get('seg64'):
        a('v_lshrrev_b32 v13, 2, v0')
        a('v_add_u32 v13, s34, v13')
        a('v_lshlrev_b32 v13, 11, v13')
        a('v_and_b32 v14, 3, v0')
        a('v_lshlrev_b32 v14, 4, v14')
        a('v_add_u32 v2, v13, v14')
        a('v_add_u32 v3, 64, v2')
        a('v_add_u32 v4, 0x8000, v2')
        a('v_add_u32 v5, 0x8000, v3')
    if P.get('contigA'):
        a('v_lshlrev_b32 v2, 4, v0')
        a('s_lshl_b32 s35, s24, 12')
        a('v_add_u32 v2, s35, v2')
        a('s_lshl_b32 s35, s27, 18')
        a('v_add_u32 v2, s35, v2')
        a('v_add_u32 v3, 1024, v2')
        a('v_add_u32 v4, 2048, v2')
        a('v_add_u32 v5, 3072, v2')
    a('s_lshl_b32 s35, s31, 5')
    a('v_add_u32 v13, s35, v10')
    a('v_mul_lo_u32 v13, v13, s32')
    a('v_and_b32 v14, 1, v12')
    a('v_lshlrev_b32 v14, 2, v14')
    a('v_xor_b32 v14, v14, v11')
    a('v_lshlrev_b32 v14, 4, v14')
    a('v_add_u32 v13, v13, v14')
    a('v_add_u32 v6, s33, v13')
    a('s_lshl_b32 s36, s32, 3')
    a('v_add_u32 v7, s36, v6')
    a('v_add_u32 v8, s36, v7')
    a('v_add_u32 v9, s36, v8')
    a('s_lshl_b32 s37, s32, 6')
    a('s_lshl_b32 s38, s24, 12')
    a('v_and_b32 v10, 31, v0')
    a('s_lshl_b32 s35, s30, 6')
    a('v_add_u32 v10, s35, v10')
    a('v_lshrrev_b32 v11, 1, v10')
    a('v_and_b32 v11, 7, v11')
    a('v_lshrrev_b32 v12, 5, v0')
    a('v_lshlrev_b32 v10, 7, v10')
    for ks in range(4):
        a(f'v_add_u32 v13, {ks*2}, v12')
        a('v_xor_b32 v13, v13, v11')
        a('v_lshlrev_b32 v13, 4, v13')
        a(f'v_add_u32 v{16+ks}, v10, v13')
    a('v_lshrrev_b32 v10, 4, v0')
    a('v_and_b32 v11, 15, v0')
    a('v_lshrrev_b32 v12, 1, v10')
    a('v_lshlrev_b32 v12, 3, v12')
    a('v_lshrrev_b32 v13, 2, v11')
    a('v_add_u32 v12, v12, v13')
    a('v_lshlrev_b32 v12, 7, v12')
    a('v_and_b32 v13, 1, v10')
    a('v_lshlrev_b32 v13, 1, v13')
    a('v_bfe_u32 v14, v11, 1, 1')
    a('v_add_u32 v13, v13, v14')
    a('s_lshl_b32 s35, s31, 2')
    a('v_add_u32 v13, s35, v13')
    a('v_bfe_u32 v14, v11, 3, 1')
    a('v_lshlrev_b32 v14, 2, v14')
    a('v_xor_b32 v13, v13, v14')
    a('v_lshlrev_b32 v13, 4, v13')
    a('v_add_u32 v12, v12, v13')
    a('v_and_b32 v13, 1, v11')
    a('v_lshlrev_b32 v13, 3, v13')
    a('v_add_u32 v12, v12, v13')
    a('v_add_u32 v20, 16384, v12')
    for i in range(64, 128):
        a(f'v_mov_b32 v{i}, 0')
    a('s_mov_b32 s40, 0')
    a('s_mov_b32 s41, 0')

    NST = P['g1_nst']
    PD = NST - 1
    NSTEP = 16

    def dma_one(stage, idx):
        if idx < 4:
            a(f's_add_u32 m0, s38, {stage*STAGE + idx*1024}')
            a('s_nop 0')
            if P.get('vgprload'):
                a(f'buffer_load_dwordx4 v[{96+idx*4}:{99+idx*4}], v{2+idx}, s[{sA}:{sA+3}], s40 offen')
            else:
                a(f'buffer_load_dwordx4 v{2+idx}, s[{sA}:{sA+3}], s40 offen lds')
        else:
            i = idx - 4
            a(f's_add_u32 m0, s38, {stage*STAGE + 16384 + i*1024}')
            a('s_nop 0')
            if P.get('vgprload'):
                a(f'buffer_load_dwordx4 v[{96+idx*4}:{99+idx*4}], v{6+i}, s[{sB}:{sB+3}], s41 offen')
            else:
                a(f'buffer_load_dwordx4 v{6+i}, s[{sB}:{sB+3}], s41 offen lds')
        if idx == 7:
            a('s_add_u32 s40, s40, %d' % (16384 if P.get('contigA') else 128))
            a('s_add_u32 s41, s41, s37')

    addr_hi = {}
    def reads(stage, ks, st):
        if P.get('noreads'):
            return
        base = 32 + st * 16
        off = stage * STAGE
        xa, wa = 16 + ks, 20
        if off >= 65536 - 8192:
            xa, wa = 24 + ks, 28
            off -= 65536
            off += 65536
        for mb in range(2):
            o = stage*STAGE + mb*4096
            if stage >= 2:
                a(f'ds_read_b128 v[{base+mb*4}:{base+mb*4+3}], v{24+ks} offset:{o - 65536}')
            else:
                a(f'ds_read_b128 v[{base+mb*4}:{base+mb*4+3}], v{16+ks} offset:{o}')
        for t in range(2):
            for half in range(2):
                r = base + 8 + t * 4 + half * 2
                o = stage*STAGE + t*8192 + ks*2048 + half*512
                if stage >= 2:
                    a(f'ds_read_b64_tr_b16 v[{r}:{r+1}], v28 offset:{o - 65536}')
                else:
                    a(f'ds_read_b64_tr_b16 v[{r}:{r+1}], v20 offset:{o}')

    for ks in range(4):
        a(f'v_add_u32 v{24+ks}, 0x10000, v{16+ks}')
    a('v_add_u32 v28, 0x10000, v20')

    for s in range(PD):
        for idx in range(8):
            dma_one(s % NST, idx)
    for s in range(NSTEP):
        stage = s % NST
        newer = min(PD - 1, NSTEP - 1 - s)
        a(f's_waitcnt vmcnt({newer*8})')
        a('s_barrier')
        reads(stage, 0, 0)
        for ks in range(4):
            if ks < 3:
                reads(stage, ks + 1, (ks + 1) & 1)
            if s + PD < NSTEP:
                dma_one((s + PD) % NST, ks * 2)
                dma_one((s + PD) % NST, ks * 2 + 1)
            elif s + PD == NSTEP and ks == 0:
                pass
            a(f's_waitcnt lgkmcnt({6 if ks < 3 else 0})')
            base = 32 + (ks & 1) * 16
            for t in range(2):
                for mb in range(2):
                    acc = 64 + (t * 2 + mb) * 16
                    if not P.get('nomfma'):
                        a(f'v_mfma_f32_32x32x16_bf16 v[{acc}:{acc+15}], v[{base+8+t*4}:{base+8+t*4+3}], v[{base+mb*4}:{base+mb*4+3}], v[{acc}:{acc+15}]')
        a('s_nop 15')
    a('v_and_b32 v10, 31, v0')
    a('s_lshl_b32 s34, s27, 7')
    a('s_lshl_b32 s35, s30, 6')
    a('s_add_u32 s34, s34, s35')
    a('v_add_u32 v10, s34, v10')
    a('v_lshrrev_b32 v11, 5, v0')
    a('v_lshlrev_b32 v11, 3, v11')
    a('s_lshl_b32 s35, s31, 6')
    a('v_add_u32 v11, s35, v11')
    a('s_cmp_lt_u32 s28, 24')
    a('s_cbranch_scc0 G1_epi_ffn')
    srd_from(a, sO, 22, 2048 * LD_QKV, QKV_OFF)
    a('s_mov_b32 s36, %d' % LD_QKV)
    a('v_mul_lo_u32 v10, v10, s36')
    a('v_add_u32 v10, v10, v11')
    a('s_lshl_b32 s35, s28, 8')
    a('v_add_u32 v10, s35, v10')
    a(f'v_add_u32 v11, {32*LD_QKV}, v10')
    for t in range(2):
        for mb in range(2):
            acc = 64 + (t * 2 + mb) * 16
            for rq in range(4):
                a(f'v_cvt_pk_bf16_f32 v12, v{acc+rq*4}, v{acc+rq*4+1}')
                a(f'v_cvt_pk_bf16_f32 v13, v{acc+rq*4+2}, v{acc+rq*4+3}')
                a(f'buffer_store_dwordx2 v[12:13], v{10+mb}, s[{sO}:{sO+3}], 0 offen offset:{t*128 + rq*16}')
                a('s_nop 0')
    a('s_branch G1_done')
    a.label('G1_epi_ffn')
    srd_from(a, sO, 22, 2048 * LD_OH, OH_OFF)
    a('s_mov_b32 s36, %d' % LD_OH)
    a('v_mul_lo_u32 v10, v10, s36')
    a('v_add_u32 v10, v10, v11')
    a('s_sub_u32 s35, s28, 24')
    a('s_lshl_b32 s35, s35, 7')
    a('s_add_u32 s35, s35, 2048')
    a('v_add_u32 v10, s35, v10')
    a(f'v_add_u32 v11, {32*LD_OH}, v10')
    for mb in range(2):
        g = 64 + (0 * 2 + mb) * 16
        u = 64 + (1 * 2 + mb) * 16
        for rq in range(4):
            for p in range(2):
                r = rq * 4 + p * 2
                a(f'v_cvt_pk_bf16_f32 v14, v{g+r}, v{g+r+1}')
                a(f'v_cvt_pk_bf16_f32 v15, v{u+r}, v{u+r+1}')
                a('v_lshlrev_b32 v16, 16, v14')
                a('v_and_b32 v17, 0xffff0000, v14')
                a('v_lshlrev_b32 v18, 16, v15')
                a('v_and_b32 v19, 0xffff0000, v15')
                a('v_max_f32 v16, 0, v16')
                a('v_max_f32 v17, 0, v17')
                a('v_mul_f32 v16, v16, v18')
                a('v_mul_f32 v17, v17, v19')
                a(f'v_cvt_pk_bf16_f32 v{12+p}, v16, v17')
            a(f'buffer_store_dwordx2 v[12:13], v{10+mb}, s[{sO}:{sO+3}], 0 offen offset:{rq*16}')
            a('s_nop 0')
    a.label('G1_done')
    a('s_endpgm')
    return kernel_desc(name, 128, 48)


def gen_attn(a):
    name = 'attn_kernel'
    kernel_header(a, name)
    sQ, sO = 4, 8
    KOFF, VOFF = 0, 20480
    a('s_cmp_ge_u32 s2, 1024')
    a('s_cbranch_scc1 AT_done')
    a('s_load_dwordx2 s[16:17], s[0:1], 72')
    a('v_lshrrev_b32 v1, 6, v0')
    a('v_and_b32 v0, 63, v0')
    a('s_nop 0')
    a('v_readfirstlane_b32 s24, v1')
    a('s_and_b32 s25, s2, 31')
    a('s_lshr_b32 s26, s2, 5')
    a('s_lshl_b32 s27, s26, 6')
    a('s_waitcnt lgkmcnt(0)')
    srd_from(a, sQ, 16, 2048 * LD_QKV, QKV_OFF)
    srd_from(a, sO, 16, 2048 * LD_OH, OH_OFF)
    a('v_lshrrev_b32 v10, 2, v0')
    a('v_and_b32 v11, 3, v0')
    a('s_lshl_b32 s28, s24, 4')
    a('s_add_u32 s28, s28, s27')
    a('s_sub_u32 s28, s28, 256')
    a('v_add_u32 v10, s28, v10')
    a('s_mov_b32 s29, %d' % LD_QKV)
    a('v_mul_lo_u32 v10, v10, s29')
    a('v_lshlrev_b32 v11, 4, v11')
    a('v_add_u32 v10, v10, v11')
    a('s_lshl_b32 s30, s25, 6')
    a('v_add_u32 v10, s30, v10')
    a('v_add_u32 v12, 2048, v10')
    a('v_add_u32 v13, 4096, v10')
    a('s_lshl_b32 s31, s24, 10')
    a('s_mov_b32 s33, 0')
    for j in range(5):
        a(f's_add_u32 m0, s31, {KOFF + j*4096}')
        a('s_nop 0')
        a(f'buffer_load_dwordx4 v12, s[{sQ}:{sQ+3}], s33 offen lds')
        a(f's_add_u32 m0, s31, {VOFF + j*4096}')
        a('s_nop 0')
        a(f'buffer_load_dwordx4 v13, s[{sQ}:{sQ+3}], s33 offen lds')
        if j < 4:
            a(f'v_add_u32 v12, {64*LD_QKV}, v12')
            a(f'v_add_u32 v13, {64*LD_QKV}, v13')
    a('v_and_b32 v14, 15, v0')
    a('s_lshl_b32 s28, s24, 4')
    a('s_add_u32 s28, s28, s27')
    a('v_add_u32 v15, s28, v14')
    a('v_mul_lo_u32 v16, v15, s29')
    a('v_lshrrev_b32 v17, 4, v0')
    a('v_lshlrev_b32 v18, 4, v17')
    a('v_add_u32 v16, v16, v18')
    a('v_add_u32 v16, s30, v16')
    a(f'buffer_load_dwordx4 v[4:7], v16, s[{sQ}:{sQ+3}], 0 offen')
    a('v_lshlrev_b32 v20, 6, v14')
    a('v_add_u32 v20, v20, v18')
    a('v_add_u32 v20, s31, v20')
    a('v_lshlrev_b32 v21, 2, v17')
    a('v_lshrrev_b32 v22, 2, v14')
    a('v_add_u32 v21, v21, v22')
    a('v_lshlrev_b32 v21, 6, v21')
    a('v_and_b32 v22, 3, v14')
    a('v_lshlrev_b32 v22, 3, v22')
    a('v_add_u32 v21, v21, v22')
    a('v_add_u32 v21, s31, v21')
    a(f'v_add_u32 v21, {VOFF}, v21')
    a('s_waitcnt vmcnt(0)')
    a('s_barrier')
    NT = 17
    for t in range(NT):
        r = 24 + (t & 3) * 4
        a(f'ds_read_b128 v[{r}:{r+3}], v20 offset:{KOFF + t*1024}')
        if t >= 1:
            tp = t - 1
            rp = 24 + (tp & 3) * 4
            a('s_waitcnt lgkmcnt(1)')
            a(f'v_mfma_f32_16x16x32_bf16 v[{64+tp*4}:{64+tp*4+3}], v[{rp}:{rp+3}], v[4:7], 0')
    a('s_waitcnt lgkmcnt(0)')
    tp = NT - 1
    rp = 24 + (tp & 3) * 4
    a(f'v_mfma_f32_16x16x32_bf16 v[{64+tp*4}:{64+tp*4+3}], v[{rp}:{rp+3}], v[4:7], 0')
    a('v_add_u32 v22, 1, v14')
    a('s_sub_u32 s34, 256, s28')
    a('v_max_i32 v22, s34, v22')
    a('v_add_u32 v23, 256, v14')
    a('v_sub_u32 v23, v23, v22')
    a('v_lshlrev_b32 v40, 2, v17')
    a('v_sub_u32 v22, v40, v22')
    a('s_nop 7')
    a('v_mov_b32 v41, 0xf149f2ca')
    a('v_mov_b32 v42, 0xf149f2ca')
    a('s_mov_b32 s35, 0x3e3504f3')
    for t in range(NT):
        for r in range(4):
            s = 64 + t * 4 + r
            a(f'v_cvt_pk_bf16_f32 v43, v{s}, v{s}')
            a('v_lshlrev_b32 v43, 16, v43')
            a('v_mul_f32 v43, s35, v43')
            a('v_cvt_pk_bf16_f32 v43, v43, v43')
            a(f'v_lshlrev_b32 v{s}, 16, v43')
            a(f'v_add_u32 v44, {16*t + r}, v22')
            a('v_cmp_le_u32 vcc, v44, v23')
            a('s_nop 1')
            a(f'v_cndmask_b32 v{s}, v41, v{s}, vcc')
            a(f'v_max_f32 v42, v42, v{s}')
    a('ds_swizzle_b32 v43, v42 offset:0x401F')
    a('s_waitcnt lgkmcnt(0)')
    a('v_max_f32 v42, v42, v43')
    a('v_lshlrev_b32 v45, 2, v0')
    a('v_xor_b32 v45, 128, v45')
    a('ds_bpermute_b32 v43, v45, v42')
    a('s_waitcnt lgkmcnt(0)')
    a('v_max_f32 v42, v42, v43')
    a('s_mov_b32 s36, 0x3fb8aa3b')
    a('v_mov_b32 v46, 0')
    for t in range(NT):
        for r in range(4):
            s = 64 + t * 4 + r
            a(f'v_sub_f32 v{s}, v{s}, v42')
            a(f'v_mul_f32 v{s}, s36, v{s}')
            a(f'v_exp_f32 v{s}, v{s}')
            a('s_nop 0')
            a(f'v_add_f32 v46, v46, v{s}')
    a('ds_swizzle_b32 v43, v46 offset:0x401F')
    a('s_waitcnt lgkmcnt(0)')
    a('v_add_f32 v46, v46, v43')
    a('ds_bpermute_b32 v43, v45, v46')
    a('s_waitcnt lgkmcnt(0)')
    a('v_add_f32 v46, v46, v43')
    a('v_rcp_f32 v46, v46')
    a('s_nop 0')
    for t in range(NT):
        s = 64 + t * 4
        for r in range(4):
            a(f'v_mul_f32 v{s+r}, v{s+r}, v46')
        a(f'v_cvt_pk_bf16_f32 v{132+t*2}, v{s}, v{s+1}')
        a(f'v_cvt_pk_bf16_f32 v{133+t*2}, v{s+2}, v{s+3}')
    for i in range(48, 56):
        a(f'v_mov_b32 v{i}, 0')
    for tp in range(8):
        t0 = tp * 2
        rb = 24 + (tp & 1) * 8
        for dhh in range(2):
            a(f'ds_read_b64_tr_b16 v[{rb+dhh*4}:{rb+dhh*4+1}], v21 offset:{t0*1024 + dhh*32}')
            a(f'ds_read_b64_tr_b16 v[{rb+dhh*4+2}:{rb+dhh*4+3}], v21 offset:{(t0+1)*1024 + dhh*32}')
        a('s_waitcnt lgkmcnt(0)')
        for dhh in range(2):
            a(f'v_mfma_f32_16x16x32_bf16 v[{48+dhh*4}:{48+dhh*4+3}], v[{rb+dhh*4}:{rb+dhh*4+3}], v[{132+t0*2}:{132+t0*2+3}], v[{48+dhh*4}:{48+dhh*4+3}]')
    for dhh in range(2):
        a(f'ds_read_b64_tr_b16 v[{24+dhh*2}:{24+dhh*2+1}], v21 offset:{16*1024 + dhh*32}')
    a('s_waitcnt lgkmcnt(0)')
    for dhh in range(2):
        a(f'v_mfma_f32_16x16x16_bf16 v[{48+dhh*4}:{48+dhh*4+3}], v[{24+dhh*2}:{24+dhh*2+1}], v[{132+32}:{132+33}], v[{48+dhh*4}:{48+dhh*4+3}]')
    a('s_nop 15')
    a('s_mov_b32 s29, %d' % LD_OH)
    a('v_mul_lo_u32 v16, v15, s29')
    a('v_lshlrev_b32 v18, 3, v17')
    a('v_add_u32 v16, v16, v18')
    a('v_add_u32 v16, s30, v16')
    for dhh in range(2):
        a(f'v_cvt_pk_bf16_f32 v12, v{48+dhh*4}, v{49+dhh*4}')
        a(f'v_cvt_pk_bf16_f32 v13, v{50+dhh*4}, v{51+dhh*4}')
        a(f'buffer_store_dwordx2 v[12:13], v16, s[{sO}:{sO+3}], 0 offen offset:{dhh*32}')
        a('s_nop 0')
    a.label('AT_done')
    a('s_endpgm')
    return kernel_desc(name, 168, 48)


def gen_gemm2(a):
    name = 'gemm2_kernel'
    kernel_header(a, name)
    STAGE = 24576
    NST = 4
    sA, sB, sO, sX = 4, 8, 12, 44
    a('s_cmp_ge_u32 s2, 256')
    a('s_cbranch_scc1 G2_done')
    a('s_load_dwordx2 s[16:17], s[0:1], 16')
    a('s_load_dwordx2 s[18:19], s[0:1], 48')
    a('s_load_dwordx2 s[20:21], s[0:1], 0')
    a('s_load_dwordx2 s[22:23], s[0:1], 72')
    a('s_load_dwordx2 s[48:49], s[0:1], 56')
    a('v_lshrrev_b32 v1, 6, v0')
    a('v_and_b32 v0, 63, v0')
    a('s_nop 0')
    a('v_readfirstlane_b32 s24, v1')
    a('s_and_b32 s25, s2, 7')
    a('s_lshr_b32 s26, s2, 3')
    a('s_and_b32 s27, s26, 1')
    a('s_lshl_b32 s29, s25, 1')
    a('s_add_u32 s27, s27, s29')
    a('s_lshr_b32 s28, s26, 1')
    a('s_lshr_b32 s30, s24, 1')
    a('s_and_b32 s31, s24, 1')
    a('s_waitcnt lgkmcnt(0)')
    srd_from(a, sA, 22, 2048 * LD_OH, OH_OFF)
    srd_from(a, sB, 16, 1024 * 2048)
    srd_from(a, sO, 48, 2048 * 2048)
    srd_from(a, sX, 20, 2048 * 2048)
    a('v_lshrrev_b32 v10, 3, v0')
    a('v_and_b32 v11, 7, v0')
    a('v_lshrrev_b32 v12, 4, v0')
    a('s_lshl_b32 s34, s27, 7')
    a('s_lshl_b32 s35, s24, 5')
    a('s_add_u32 s34, s34, s35')
    a('v_add_u32 v13, s34, v10')
    a('s_mov_b32 s36, %d' % LD_OH)
    a('v_mul_lo_u32 v13, v13, s36')
    a('v_xor_b32 v14, v11, v12')
    a('v_lshlrev_b32 v14, 4, v14')
    a('v_xor_b32 v15, 4, v11')
    a('v_xor_b32 v15, v15, v12')
    a('v_lshlrev_b32 v15, 4, v15')
    a('v_add_u32 v2, v13, v14')
    a('v_add_u32 v3, v13, v15')
    a(f'v_add_u32 v3, {8*LD_OH}, v3')
    a(f'v_add_u32 v4, {16*LD_OH}, v2')
    a(f'v_add_u32 v5, {16*LD_OH}, v3')
    a('s_lshl_b32 s35, s24, 4')
    a('v_add_u32 v13, s35, v10')
    a('v_lshlrev_b32 v13, 11, v13')
    a('v_and_b32 v14, 1, v12')
    a('v_lshlrev_b32 v14, 2, v14')
    a('v_xor_b32 v14, v14, v11')
    a('v_lshlrev_b32 v14, 4, v14')
    a('v_add_u32 v13, v13, v14')
    a('s_lshl_b32 s33, s28, 7')
    a('v_add_u32 v6, s33, v13')
    a('v_add_u32 v7, 0x4000, v6')
    a('s_lshl_b32 s38, s24, 12')
    a('s_lshl_b32 s39, s24, 11')
    a('v_and_b32 v10, 31, v0')
    a('s_lshl_b32 s35, s30, 6')
    a('v_add_u32 v10, s35, v10')
    a('v_lshrrev_b32 v11, 1, v10')
    a('v_and_b32 v11, 7, v11')
    a('v_lshrrev_b32 v12, 5, v0')
    a('v_lshlrev_b32 v10, 7, v10')
    a('s_lshl_b32 s35, s31, 2')
    for j in range(2):
        a(f'v_add_u32 v13, {j*2}, v12')
        a('v_add_u32 v13, s35, v13')
        a('v_xor_b32 v13, v13, v11')
        a('v_lshlrev_b32 v13, 4, v13')
        a(f'v_add_u32 v{16+j}, v10, v13')
    a('v_lshrrev_b32 v10, 4, v0')
    a('v_and_b32 v11, 15, v0')
    a('v_lshrrev_b32 v12, 1, v10')
    a('v_lshlrev_b32 v12, 3, v12')
    a('v_lshrrev_b32 v13, 2, v11')
    a('v_add_u32 v12, v12, v13')
    a('v_lshlrev_b32 v12, 7, v12')
    a('v_and_b32 v13, 1, v10')
    a('v_lshlrev_b32 v13, 1, v13')
    a('v_bfe_u32 v14, v11, 1, 1')
    a('v_add_u32 v13, v13, v14')
    a('v_bfe_u32 v14, v11, 3, 1')
    a('v_lshlrev_b32 v14, 2, v14')
    a('v_and_b32 v15, 1, v11')
    a('v_lshlrev_b32 v15, 3, v15')
    a('v_add_u32 v12, v12, v15')
    a('s_lshl_b32 s35, s31, 12')
    a('v_add_u32 v12, s35, v12')
    a('v_add_u32 v12, 16384, v12')
    for t in range(2):
        a(f'v_add_u32 v15, {t*4}, v13')
        a('v_xor_b32 v15, v15, v14')
        a('v_lshlrev_b32 v15, 4, v15')
        a(f'v_add_u32 v{20+t}, v12, v15')
    a('v_add_u32 v18, 49152, v16')
    a('v_add_u32 v19, 49152, v17')
    a('v_add_u32 v22, 49152, v20')
    a('v_add_u32 v23, 49152, v21')
    for i in range(64, 128):
        a(f'v_mov_b32 v{i}, 0')
    a('s_mov_b32 s40, 0')
    a('s_mov_b32 s41, 0')
    a('s_mov_b32 s43, 0')

    def dma(stage):
        a('s_cmp_eq_u32 s43, 16')
        a('s_cselect_b32 s8, s18, s8')
        a('s_cselect_b32 s9, s19, s9')
        a('s_cselect_b32 s10, %d, s10' % (3584 * 2048))
        a('s_cselect_b32 s41, 0, s41')
        for i in range(4):
            a(f's_add_u32 m0, s38, {stage*STAGE + i*1024}')
            a('s_nop 0')
            a(f'buffer_load_dwordx4 v{2+i}, s[{sA}:{sA+3}], s40 offen lds')
        for i in range(2):
            a(f's_add_u32 m0, s39, {stage*STAGE + 16384 + i*1024}')
            a('s_nop 0')
            a(f'buffer_load_dwordx4 v{6+i}, s[{sB}:{sB+3}], s41 offen lds')
        a('s_add_u32 s40, s40, 128')
        a('s_add_u32 s41, s41, 0x20000')
        a('s_add_u32 s43, s43, 1')

    def compute(stage):
        for j in range(2):
            base = 32 + j * 16
            for mb in range(2):
                a(f'ds_read_b128 v[{base+mb*4}:{base+mb*4+3}], v{16+j+2*(stage>>1)} offset:{(stage&1)*STAGE + mb*4096}')
            for t in range(2):
                for half in range(2):
                    r = base + 8 + t * 4 + half * 2
                    a(f'ds_read_b64_tr_b16 v[{r}:{r+1}], v{20+t+2*(stage>>1)} offset:{(stage&1)*STAGE + j*2048 + half*512}')
        for j in range(2):
            a(f's_waitcnt lgkmcnt({6 if j == 0 else 0})')
            base = 32 + j * 16
            for t in range(2):
                for mb in range(2):
                    acc = 64 + (t * 2 + mb) * 16
                    a(f'v_mfma_f32_32x32x16_bf16 v[{acc}:{acc+15}], v[{base+8+t*4}:{base+8+t*4+3}], v[{base+mb*4}:{base+mb*4+3}], v[{acc}:{acc+15}]')

    for s in range(3):
        dma(s)
    a('s_mov_b32 s42, 0')
    a.label('G2_loop')
    for u in range(NST):
        a('s_waitcnt vmcnt(12)')
        a('s_barrier')
        a('s_cmp_ge_u32 s43, 72')
        a(f's_cbranch_scc1 G2_nl{u}')
        dma((u + 3) % NST)
        a(f's_branch G2_c{u}')
        a.label(f'G2_nl{u}')
        a('s_waitcnt vmcnt(0)')
        a('s_barrier')
        a.label(f'G2_c{u}')
        compute(u)
    a('s_add_u32 s42, s42, 4')
    a('s_cmp_lt_u32 s42, 72')
    a('s_cbranch_scc1 G2_loop')
    a('s_nop 15')
    a('s_barrier')
    a('v_lshlrev_b32 v10, 2, v0')
    a('s_xor_b32 s35, s24, 1')
    a('s_lshl_b32 s35, s35, 13')
    a('v_add_u32 v10, s35, v10')
    a('v_lshlrev_b32 v11, 2, v0')
    a('s_lshl_b32 s35, s24, 13')
    a('v_add_u32 v11, s35, v11')
    a('s_cmp_eq_u32 s31, 0')
    a('s_cbranch_scc0 G2_x1')
    for t in range(2):
        acc = 64 + (t * 2 + 1) * 16
        for r in range(16):
            a(f'ds_write_b32 v10, v{acc+r} offset:{(t*16+r)*256}')
    a('s_branch G2_x2')
    a.label('G2_x1')
    for t in range(2):
        acc = 64 + (t * 2 + 0) * 16
        for r in range(16):
            a(f'ds_write_b32 v10, v{acc+r} offset:{(t*16+r)*256}')
    for t in range(2):
        for r in range(16):
            a(f'v_mov_b32 v{64+(t*2)*16+r}, v{64+(t*2+1)*16+r}')
    a.label('G2_x2')
    a('s_waitcnt lgkmcnt(0)')
    a('s_barrier')
    for t in range(2):
        for r in range(16):
            a(f'ds_read_b32 v{32+(r&7)}, v11 offset:{(t*16+r)*256}')
            if (r & 7) == 7:
                a('s_waitcnt lgkmcnt(0)')
                for rr in range(r - 7, r + 1):
                    a(f'v_add_f32 v{64+(t*2)*16+rr}, v{64+(t*2)*16+rr}, v{32+(rr&7)}')
    a('v_and_b32 v10, 31, v0')
    a('s_lshl_b32 s34, s27, 7')
    a('s_lshl_b32 s35, s30, 6')
    a('s_add_u32 s34, s34, s35')
    a('s_lshl_b32 s35, s31, 5')
    a('s_add_u32 s34, s34, s35')
    a('v_add_u32 v10, s34, v10')
    a('v_lshlrev_b32 v10, 11, v10')
    a('v_lshrrev_b32 v11, 5, v0')
    a('v_lshlrev_b32 v11, 3, v11')
    a('v_add_u32 v10, v10, v11')
    a('v_add_u32 v10, s33, v10')
    for t in range(2):
        for rq in range(4):
            a(f'buffer_load_dwordx2 v[{32+(t*4+rq)*2}:{33+(t*4+rq)*2}], v10, s[{sX}:{sX+3}], 0 offen offset:{t*64 + rq*16}')
    a('s_waitcnt vmcnt(0)')
    for t in range(2):
        acc = 64 + (t * 2) * 16
        for rq in range(4):
            xr = 32 + (t * 4 + rq) * 2
            a(f'v_lshlrev_b32 v12, 16, v{xr}')
            a(f'v_and_b32 v13, 0xffff0000, v{xr}')
            a(f'v_lshlrev_b32 v14, 16, v{xr+1}')
            a(f'v_and_b32 v15, 0xffff0000, v{xr+1}')
            for q in range(4):
                a(f'v_add_f32 v{12+q}, v{12+q}, v{acc+rq*4+q}')
            a('v_cvt_pk_bf16_f32 v12, v12, v13')
            a('v_cvt_pk_bf16_f32 v13, v14, v15')
            a(f'buffer_store_dwordx2 v[12:13], v10, s[{sO}:{sO+3}], 0 offen offset:{t*64 + rq*16}')
            a('s_nop 0')
    a.label('G2_done')
    a('s_endpgm')
    return kernel_desc(name, 128, 56)


def gen_gemm1v2(a):
    name = 'gemm1_kernel'
    kernel_header(a, name)
    STAGE = 73728
    BOFF = 32768
    sA, sO = 4, 12
    a('s_cmp_ge_u32 s2, 256')
    a('s_cbranch_scc1 G1_done')
    a('s_load_dwordx2 s[16:17], s[0:1], 8')
    a('s_load_dwordx2 s[18:19], s[0:1], 32')
    a('s_load_dwordx2 s[20:21], s[0:1], 40')
    a('s_load_dwordx2 s[22:23], s[0:1], 72')
    a('v_lshrrev_b32 v1, 6, v0')
    a('v_and_b32 v0, 63, v0')
    a('s_nop 0')
    a('v_readfirstlane_b32 s24, v1')
    a('s_and_b32 s25, s2, 7')
    a('s_lshr_b32 s26, s2, 3')
    a('s_and_b32 s27, s26, 7')
    a('s_lshr_b32 s28, s26, 3')
    a('s_lshl_b32 s29, s25, 2')
    a('s_add_u32 s28, s28, s29')
    a('s_lshr_b32 s30, s24, 1')
    a('s_and_b32 s31, s24, 1')
    a('s_waitcnt lgkmcnt(0)')
    srd_from(a, sA, 22, 2048 * 2048, XN_OFF)
    a('v_lshrrev_b32 v10, 3, v0')
    a('v_and_b32 v11, 7, v0')
    a('v_lshrrev_b32 v12, 4, v0')
    a('s_lshl_b32 s34, s27, 8')
    a('s_lshl_b32 s35, s24, 5')
    a('s_add_u32 s34, s34, s35')
    a('v_add_u32 v13, s34, v10')
    a('v_lshlrev_b32 v13, 11, v13')
    a('v_xor_b32 v14, v11, v12')
    a('v_lshlrev_b32 v14, 4, v14')
    a('v_xor_b32 v15, 4, v11')
    a('v_xor_b32 v15, v15, v12')
    a('v_lshlrev_b32 v15, 4, v15')
    a('v_add_u32 v2, v13, v14')
    a('v_add_u32 v3, v13, v15')
    a('v_add_u32 v3, 0x4000, v3')
    a('v_add_u32 v4, 0x8000, v2')
    a('v_add_u32 v5, 0x8000, v3')
    a('s_mul_i32 s34, s28, 192')
    a('s_mul_i32 s35, s28, 224')
    for i in range(5):
        A0, A1, ST = 6 + 2 * i, 7 + 2 * i, 16 + i
        a(f'v_add_u32 v21, {64*i}, v0')
        a('v_mul_u32_u24 v22, 0xcccd, v21')
        a('v_lshrrev_b32 v22, 21, v22')
        a('v_mul_u32_u24 v23, 40, v22')
        a('v_sub_u32 v23, v21, v23')
        a('s_lshl_b32 s36, s24, 3')
        a('v_add_u32 v22, s36, v22')
        a('v_bfe_u32 v21, v22, 1, 1')
        a('v_bfe_u32 v24, v22, 3, 1')
        a('v_lshlrev_b32 v24, 1, v24')
        a('v_add_u32 v21, v21, v24')
        a('v_lshlrev_b32 v21, 1, v21')
        a('v_xor_b32 v23, v23, v21')
        a('v_lshlrev_b32 v24, 4, v23')
        a('v_add_u32 v25, s35, v24')
        a(f'v_subrev_u32 v26, {16*30 - 64}, v25')
        a('v_mov_b32 v27, s20')
        a('v_mov_b32 v28, s21')
        a('v_mov_b32 v29, 7168')
        a('v_cmp_gt_u32 vcc, 30, v23')
        a('s_nop 1')
        a(f'v_subrev_u32 v21, {16*20 - 64}, v25')
        a('v_cndmask_b32 v26, v26, v21, vcc')
        a('v_mov_b32 v21, s18')
        a('v_cndmask_b32 v27, v27, v21, vcc')
        a('v_mov_b32 v21, s19')
        a('v_cndmask_b32 v28, v28, v21, vcc')
        a('v_cmp_gt_u32 vcc, 20, v23')
        a('s_nop 1')
        a(f'v_subrev_u32 v21, {16*16}, v25')
        a('v_cndmask_b32 v26, v26, v21, vcc')
        a('v_mov_b32 v21, s20')
        a('v_cndmask_b32 v27, v27, v21, vcc')
        a('v_mov_b32 v21, s21')
        a('v_cndmask_b32 v28, v28, v21, vcc')
        a('v_cmp_gt_u32 vcc, 16, v23')
        a('s_nop 1')
        a(f'v_subrev_u32 v21, {16*12}, v25')
        a('v_cndmask_b32 v26, v26, v21, vcc')
        a('v_mov_b32 v21, s18')
        a('v_cndmask_b32 v27, v27, v21, vcc')
        a('v_mov_b32 v21, s19')
        a('v_cndmask_b32 v28, v28, v21, vcc')
        a('v_cmp_gt_u32 vcc, 12, v23')
        a('s_nop 1')
        a('v_add_u32 v21, s34, v24')
        a('v_cndmask_b32 v26, v26, v21, vcc')
        a('v_mov_b32 v21, s16')
        a('v_cndmask_b32 v27, v27, v21, vcc')
        a('v_mov_b32 v21, s17')
        a('v_cndmask_b32 v28, v28, v21, vcc')
        a('v_mov_b32 v21, 6144')
        a('v_cndmask_b32 v29, v29, v21, vcc')
        a('v_mul_lo_u32 v21, v22, v29')
        a('v_add_u32 v21, v21, v26')
        a(f'v_add_co_u32 v{A0}, vcc, v27, v21')
        a('s_nop 1')
        a(f'v_addc_co_u32 v{A1}, vcc, 0, v28, vcc')
        a(f'v_lshlrev_b32 v{ST}, 6, v29')
    a('s_lshl_b32 s38, s24, 12')
    a('s_mul_i32 s39, s24, 5120')
    a('v_and_b32 v24, 15, v0')
    a('v_lshrrev_b32 v25, 4, v0')
    a('s_lshl_b32 s35, s30, 6')
    a('v_add_u32 v26, s35, v24')
    a('v_lshlrev_b32 v26, 7, v26')
    a('v_lshrrev_b32 v27, 1, v24')
    for ks in range(2):
        a(f'v_add_u32 v28, {ks*4}, v25')
        a('v_xor_b32 v28, v28, v27')
        a('v_lshlrev_b32 v28, 4, v28')
        a(f'v_add_u32 v{21+ks}, v26, v28')
    a('v_lshlrev_b32 v26, 3, v25')
    a('v_lshrrev_b32 v27, 2, v24')
    a('v_add_u32 v26, v26, v27')
    a('v_mul_u32_u24 v26, 640, v26')
    a('v_and_b32 v27, 1, v24')
    a('v_lshlrev_b32 v27, 3, v27')
    a('v_add_u32 v26, v26, v27')
    a(f'v_add_u32 v26, {BOFF}, v26')
    a('v_bfe_u32 v27, v24, 3, 1')
    a('v_lshlrev_b32 v27, 1, v27')
    a('v_and_b32 v32, 1, v25')
    a('v_lshlrev_b32 v32, 2, v32')
    a('v_add_u32 v27, v27, v32')
    a('v_bfe_u32 v32, v24, 1, 1')
    a('s_lshl_b32 s35, s31, 1')
    a('s_mul_i32 s36, s31, 10')
    for j in range(4):
        a(f's_add_u32 s37, s35, {j}')
        a('s_and_b32 s37, s37, 3')
        a('s_lshl_b32 s37, s37, 1')
        a('v_add_u32 v33, s37, v32')
        a('v_xor_b32 v33, v33, v27')
        a('v_lshlrev_b32 v33, 4, v33')
        a(f's_add_u32 s37, s36, {j}')
        a('s_lshr_b32 s37, s37, 2')
        a('s_lshl_b32 s37, s37, 7')
        a('v_add_u32 v33, s37, v33')
        a(f'v_add_u32 v{28+j}, v26, v33')
    a(f'v_add_u32 v23, {STAGE}, v21')
    a(f'v_add_u32 v24, {STAGE}, v22')
    for j in range(4):
        a(f'v_add_u32 v{32+j}, {STAGE}, v{28+j}')
    XF = 36
    WF = [52, 72]
    ACC = 96
    for i in range(ACC, 256):
        a(f'v_mov_b32 v{i}, 0')
    a('s_mov_b32 s40, 0')

    def dma_one(stage, idx):
        if idx < 4:
            a(f's_add_u32 m0, s38, {stage*STAGE + idx*1024}')
            a('s_nop 0')
            a(f'buffer_load_dwordx4 v{2+idx}, s[{sA}:{sA+3}], s40 offen lds')
        else:
            i = idx - 4
            a(f's_add_u32 m0, s39, {stage*STAGE + BOFF + i*1024}')
            a('s_nop 0')
            a(f'global_load_lds_dwordx4 v[{6+2*i}:{7+2*i}], off')
            a(f'v_add_co_u32 v{6+2*i}, vcc, v{6+2*i}, v{16+i}')
            a('s_nop 1')
            a(f'v_addc_co_u32 v{7+2*i}, vcc, 0, v{7+2*i}, vcc')
        if idx == 8:
            a('s_add_u32 s40, s40, 128')

    def xreads(stage, ks):
        for mb in range(4):
            a(f'ds_read_b128 v[{XF+mb*4}:{XF+mb*4+3}], v{21+ks+2*stage} offset:{mb*2048}')

    def wreads(stage, ks, hb, st):
        for bb in range(5):
            b = hb * 5 + bb
            for half in range(2):
                r = WF[st] + bb * 4 + half * 2
                a(f'ds_read_b64_tr_b16 v[{r}:{r+1}], v{28+4*stage+(b&3)} offset:{(b>>2)*128 + (ks*32 + half*4)*640}')

    def mfmas(hb, st, dmas):
        n = 0
        for bb in range(5):
            b = hb * 5 + bb
            for mb in range(4):
                acc = ACC + (b * 4 + mb) * 4
                a(f'v_mfma_f32_16x16x32_bf16 v[{acc}:{acc+3}], v[{WF[st]+bb*4}:{WF[st]+bb*4+3}], v[{XF+mb*4}:{XF+mb*4+3}], v[{acc}:{acc+3}]')
                n += 1
                if n % 4 == 0 and dmas:
                    dmas.pop(0)()

    NSTEP = 16
    for idx in range(9):
        dma_one(0, idx)
    for s in range(NSTEP):
        stage = s & 1
        a('s_waitcnt vmcnt(0)')
        a('s_barrier')
        dm = []
        if s + 1 < NSTEP:
            dm = [(lambda idx=idx: dma_one(stage ^ 1, idx)) for idx in range(9)]
        xreads(stage, 0)
        wreads(stage, 0, 0, 0)
        a('s_waitcnt lgkmcnt(0)')
        wreads(stage, 0, 1, 1)
        mfmas(0, 0, dm)
        a('s_waitcnt lgkmcnt(0)')
        wreads(stage, 1, 0, 0)
        mfmas(1, 1, dm)
        xreads(stage, 1)
        a('s_waitcnt lgkmcnt(0)')
        wreads(stage, 1, 1, 1)
        mfmas(0, 0, None)
        a('s_waitcnt lgkmcnt(0)')
        mfmas(1, 1, None)
        assert not dm
    a('s_nop 15')
    srd_from(a, sO, 22, 2048 * LD_OH, OH_OFF)
    a('v_and_b32 v10, 15, v0')
    a('s_lshl_b32 s34, s27, 8')
    a('s_lshl_b32 s35, s30, 6')
    a('s_add_u32 s34, s34, s35')
    a('v_add_u32 v10, s34, v10')
    a('v_lshrrev_b32 v11, 4, v0')
    a('v_lshlrev_b32 v11, 3, v11')
    a('s_mov_b32 s36, %d' % LD_OH)
    a('v_mul_lo_u32 v12, v10, s36')
    a('v_add_u32 v12, v12, v11')
    a('s_mul_i32 s35, s28, 224')
    a('s_add_u32 s35, s35, 2048')
    a('v_add_u32 v12, s35, v12')

    def hstore(gb, ub, foff_bytes):
        for mb in range(4):
            g = ACC + (gb * 4 + mb) * 4
            u = ACC + (ub * 4 + mb) * 4
            for p in range(2):
                a(f'v_cvt_pk_bf16_f32 v14, v{g+2*p}, v{g+2*p+1}')
                a(f'v_cvt_pk_bf16_f32 v15, v{u+2*p}, v{u+2*p+1}')
                a('v_lshlrev_b32 v16, 16, v14')
                a('v_and_b32 v17, 0xffff0000, v14')
                a('v_lshlrev_b32 v18, 16, v15')
                a('v_and_b32 v19, 0xffff0000, v15')
                a('v_max_f32 v16, 0, v16')
                a('v_max_f32 v17, 0, v17')
                a('v_mul_f32 v16, v16, v18')
                a('v_mul_f32 v17, v17, v19')
                a(f'v_cvt_pk_bf16_f32 v{20+p}, v16, v17')
            a(f'v_add_u32 v13, {mb*16*LD_OH}, v12')
            a(f'buffer_store_dwordx2 v[20:21], v13, s[{sO}:{sO+3}], 0 offen offset:{foff_bytes}')
            a('s_nop 0')

    a('s_cmp_eq_u32 s31, 0')
    a('s_cbranch_scc0 G1_epi1')
    hstore(6, 8, 0)
    hstore(7, 9, 32)
    srd_from(a, sO, 22, 2048 * LD_QKV, QKV_OFF)
    a('s_mov_b32 s36, %d' % LD_QKV)
    a('v_mul_lo_u32 v12, v10, s36')
    a('v_add_u32 v12, v12, v11')
    a('s_mul_i32 s35, s28, 192')
    a('v_add_u32 v12, s35, v12')
    for b in range(6):
        for mb in range(4):
            q = ACC + (b * 4 + mb) * 4
            a(f'v_cvt_pk_bf16_f32 v20, v{q}, v{q+1}')
            a(f'v_cvt_pk_bf16_f32 v21, v{q+2}, v{q+3}')
            a(f'v_add_u32 v13, {mb*16*LD_QKV}, v12')
            a(f'buffer_store_dwordx2 v[20:21], v13, s[{sO}:{sO+3}], 0 offen offset:{b*32}')
            a('s_nop 0')
    a('s_branch G1_done')
    a.label('G1_epi1')
    for bb in range(5):
        hstore(bb, 5 + bb, 64 + bb * 32)
    a.label('G1_done')
    a('s_endpgm')
    return kernel_desc(name, 256, 48)


class LdsSB:
    def __init__(self, a):
        self.a = a
        self.q = []
    def issue(self, tag):
        self.q.append(tag)
        assert len(self.q) <= 15
    def need(self, tags):
        last = -1
        for i, t in enumerate(self.q):
            if t in tags:
                last = i
        if last < 0:
            return
        n = len(self.q) - 1 - last
        self.a(f's_waitcnt lgkmcnt({n})')
        self.q = self.q[last + 1:]


def gen_gemm1v3(a):
    name = 'gemm1_kernel'
    kernel_header(a, name)
    STAGE = 36864
    BOFF = 16384
    NST = 4
    sA, sO = 4, 12
    a('s_cmp_ge_u32 s2, 256')
    a('s_cbranch_scc1 G1_done')
    a('s_load_dwordx2 s[16:17], s[0:1], 8')
    a('s_load_dwordx2 s[18:19], s[0:1], 32')
    a('s_load_dwordx2 s[20:21], s[0:1], 40')
    a('s_load_dwordx2 s[22:23], s[0:1], 72')
    a('v_lshrrev_b32 v1, 6, v0')
    a('v_and_b32 v0, 63, v0')
    a('s_nop 0')
    a('v_readfirstlane_b32 s24, v1')
    a('s_and_b32 s25, s2, 7')
    a('s_lshr_b32 s26, s2, 3')
    a('s_and_b32 s27, s26, 7')
    a('s_lshr_b32 s28, s26, 3')
    a('s_lshl_b32 s29, s25, 2')
    a('s_add_u32 s28, s28, s29')
    a('s_lshr_b32 s30, s24, 1')
    a('s_and_b32 s31, s24, 1')
    a('s_waitcnt lgkmcnt(0)')
    srd_from(a, sA, 22, 2048 * 2048, XN_OFF)
    a('v_lshrrev_b32 v10, 2, v0')
    a('v_and_b32 v11, 3, v0')
    a('v_lshrrev_b32 v12, 4, v0')
    a('v_sub_u32 v12, 0, v12')
    a('v_and_b32 v12, 3, v12')
    a('v_xor_b32 v11, v11, v12')
    a('v_lshlrev_b32 v11, 4, v11')
    a('s_lshl_b32 s34, s27, 8')
    a('s_lshl_b32 s35, s24, 5')
    a('s_add_u32 s34, s34, s35')
    a('v_add_u32 v13, s34, v10')
    a('v_lshlrev_b32 v13, 11, v13')
    a('v_add_u32 v2, v13, v11')
    a('v_add_u32 v3, 0x8000, v2')
    a('s_mul_i32 s34, s28, 192')
    a('s_mul_i32 s35, s28, 224')
    for i in range(3):
        A0, A1, ST = 6 + 2 * i, 7 + 2 * i, 16 + i
        a('s_lshl_b32 s36, s24, 6')
        a(f's_add_u32 s36, s36, {512*i}')
        a('v_add_u32 v21, s36, v0')
        a('v_mul_u32_u24 v22, 0xcccd, v21')
        a('v_lshrrev_b32 v22, 21, v22')
        a('v_mul_u32_u24 v23, 40, v22')
        a('v_sub_u32 v23, v21, v23')
        a('v_bfe_u32 v21, v22, 1, 1')
        a('v_bfe_u32 v24, v22, 3, 1')
        a('v_lshlrev_b32 v24, 1, v24')
        a('v_add_u32 v21, v21, v24')
        a('v_lshlrev_b32 v21, 1, v21')
        a('v_xor_b32 v23, v23, v21')
        a('v_lshlrev_b32 v24, 4, v23')
        a('v_add_u32 v25, s35, v24')
        a(f'v_subrev_u32 v26, {16*30 - 64}, v25')
        a('v_mov_b32 v27, s20')
        a('v_mov_b32 v28, s21')
        a('v_mov_b32 v29, 7168')
        for (lim, sub, lo, hi) in ((30, 16*20 - 64, 18, 19), (20, 16*16, 20, 21), (16, 16*12, 18, 19)):
            a(f'v_cmp_gt_u32 vcc, {lim}, v23')
            a(f'v_subrev_u32 v21, {sub}, v25')
            a('s_nop 0')
            a('v_cndmask_b32 v26, v26, v21, vcc')
            a(f'v_mov_b32 v21, s{lo}')
            a('v_cndmask_b32 v27, v27, v21, vcc')
            a(f'v_mov_b32 v21, s{hi}')
            a('v_cndmask_b32 v28, v28, v21, vcc')
        a('v_cmp_gt_u32 vcc, 12, v23')
        a('v_add_u32 v21, s34, v24')
        a('s_nop 0')
        a('v_cndmask_b32 v26, v26, v21, vcc')
        a('v_mov_b32 v21, s16')
        a('v_cndmask_b32 v27, v27, v21, vcc')
        a('v_mov_b32 v21, s17')
        a('v_cndmask_b32 v28, v28, v21, vcc')
        a('v_mov_b32 v21, 6144')
        a('v_cndmask_b32 v29, v29, v21, vcc')
        a('v_mul_lo_u32 v21, v22, v29')
        a('v_add_u32 v21, v21, v26')
        a(f'v_add_co_u32 v{A0}, vcc, v27, v21')
        a('s_nop 1')
        a(f'v_addc_co_u32 v{A1}, vcc, 0, v28, vcc')
        a(f'v_lshlrev_b32 v{ST}, 5, v29')
    a('s_lshl_b32 s38, s24, 11')
    a('s_lshl_b32 s39, s24, 10')
    a('v_and_b32 v24, 15, v0')
    a('v_lshrrev_b32 v25, 4, v0')
    a('s_lshl_b32 s35, s30, 6')
    a('v_add_u32 v26, s35, v24')
    a('v_lshlrev_b32 v26, 6, v26')
    a('v_lshrrev_b32 v27, 2, v24')
    a('v_sub_u32 v27, 0, v27')
    a('v_and_b32 v27, 3, v27')
    a('v_xor_b32 v27, v27, v25')
    a('v_lshlrev_b32 v27, 4, v27')
    a('v_add_u32 v21, v26, v27')
    a('v_lshlrev_b32 v26, 3, v25')
    a('v_lshrrev_b32 v27, 2, v24')
    a('v_add_u32 v26, v26, v27')
    a('v_mul_u32_u24 v26, 640, v26')
    a('v_and_b32 v27, 1, v24')
    a('v_lshlrev_b32 v27, 3, v27')
    a('v_add_u32 v26, v26, v27')
    a(f'v_add_u32 v26, {BOFF}, v26')
    a('v_bfe_u32 v27, v24, 3, 1')
    a('v_lshlrev_b32 v27, 1, v27')
    a('v_and_b32 v32, 1, v25')
    a('v_lshlrev_b32 v32, 2, v32')
    a('v_add_u32 v27, v27, v32')
    a('v_bfe_u32 v32, v24, 1, 1')
    a('s_lshl_b32 s35, s31, 1')
    a('s_mul_i32 s36, s31, 10')
    for j in range(4):
        a(f's_add_u32 s37, s35, {j}')
        a('s_and_b32 s37, s37, 3')
        a('s_lshl_b32 s37, s37, 1')
        a('v_add_u32 v33, s37, v32')
        a('v_xor_b32 v33, v33, v27')
        a('v_lshlrev_b32 v33, 4, v33')
        a(f's_add_u32 s37, s36, {j}')
        a('s_lshr_b32 s37, s37, 2')
        a('s_lshl_b32 s37, s37, 7')
        a('v_add_u32 v33, s37, v33')
        a(f'v_add_u32 v{28+j}, v26, v33')
    a(f'v_add_u32 v22, {2*STAGE}, v21')
    for j in range(4):
        a(f'v_add_u32 v{32+j}, {2*STAGE}, v{28+j}')
    XF = [36, 52]
    WR = 68
    RING = 6
    PF = 4
    ACC = 96
    for i in range(ACC, 256):
        a(f'v_mov_b32 v{i}, 0')
    a('s_mov_b32 s40, 0')

    def dma_one(stage, idx):
        if idx < 2:
            a(f's_add_u32 m0, s38, {stage*STAGE + idx*1024}')
            a('s_nop 0')
            a(f'buffer_load_dwordx4 v{2+idx}, s[{sA}:{sA+3}], s40 offen lds')
            if idx == 1:
                a('s_add_u32 s40, s40, 64')
        else:
            i = idx - 2
            if i == 2:
                a('s_cmp_ge_u32 s24, 4')
                a(f's_cbranch_scc1 G1_sk{dma_one.n}')
            a(f's_add_u32 m0, s39, {stage*STAGE + BOFF + i*8192}')
            a('s_nop 0')
            a(f'global_load_lds_dwordx4 v[{6+2*i}:{7+2*i}], off')
            a(f'v_add_co_u32 v{6+2*i}, vcc, v{6+2*i}, v{16+i}')
            a('s_nop 1')
            a(f'v_addc_co_u32 v{7+2*i}, vcc, 0, v{7+2*i}, vcc')
            if i == 2:
                a.label(f'G1_sk{dma_one.n}')
                dma_one.n += 1
    dma_one.n = 0

    sb = LdsSB(a)
    NSTEP = 32

    def xread(s, mb):
        stage = s % NST
        a(f'ds_read_b128 v[{XF[s&1]+mb*4}:{XF[s&1]+mb*4+3}], v{21+(stage>>1)} offset:{(stage&1)*STAGE + mb*1024}')
        sb.issue(('x', s, mb))

    def wread(n):
        s, b = divmod(n, 10)
        stage = s % NST
        r = WR + (n % RING) * 4
        for half in range(2):
            a(f'ds_read_b64_tr_b16 v[{r+half*2}:{r+half*2+1}], v{28+4*(stage>>1)+(b&3)} offset:{(stage&1)*STAGE + (b>>2)*128 + half*4*640}')
            sb.issue(('w', n))

    for s in range(3):
        for idx in range(5):
            dma_one(s, idx)
    a('s_waitcnt vmcnt(8)')
    a('s_barrier')
    for mb in range(4):
        xread(0, mb)
    for n in range(PF):
        wread(n)
    NSLOT = NSTEP * 10
    for n in range(NSLOT):
        s, b = divmod(n, 10)
        if b == 0:
            if s + 1 < NSTEP:
                newer = 4 if s + 2 < NSTEP else 0
                a(f's_waitcnt vmcnt({newer})')
                a('s_barrier')
        if n + PF < NSLOT:
            wread(n + PF)
        if 5 <= b <= 8 and s + 1 < NSTEP:
            xread(s + 1, b - 5)
        sb.need([('w', n)] + [('x', s, mb) for mb in range(4)])
        r = WR + (n % RING) * 4
        for mb in range(4):
            acc = ACC + (b * 4 + mb) * 4
            a(f'v_mfma_f32_16x16x32_bf16 v[{acc}:{acc+3}], v[{r}:{r+3}], v[{XF[s&1]+mb*4}:{XF[s&1]+mb*4+3}], v[{acc}:{acc+3}]')
        if b < 5 and s + 3 < NSTEP:
            dma_one((s + 3) % NST, b)
    a('s_nop 15')
    srd_from(a, sO, 22, 2048 * LD_OH, OH_OFF)
    a('v_and_b32 v10, 15, v0')
    a('s_lshl_b32 s34, s27, 8')
    a('s_lshl_b32 s35, s30, 6')
    a('s_add_u32 s34, s34, s35')
    a('v_add_u32 v10, s34, v10')
    a('v_lshrrev_b32 v11, 4, v0')
    a('v_lshlrev_b32 v11, 3, v11')
    a('s_mov_b32 s36, %d' % LD_OH)
    a('v_mul_lo_u32 v12, v10, s36')
    a('v_add_u32 v12, v12, v11')
    a('s_mul_i32 s35, s28, 224')
    a('s_add_u32 s35, s35, 2048')
    a('v_add_u32 v12, s35, v12')

    def hstore(gb, ub, foff_bytes):
        for mb in range(4):
            g = ACC + (gb * 4 + mb) * 4
            u = ACC + (ub * 4 + mb) * 4
            for p in range(2):
                a(f'v_cvt_pk_bf16_f32 v14, v{g+2*p}, v{g+2*p+1}')
                a(f'v_cvt_pk_bf16_f32 v15, v{u+2*p}, v{u+2*p+1}')
                a('v_lshlrev_b32 v16, 16, v14')
                a('v_and_b32 v17, 0xffff0000, v14')
                a('v_lshlrev_b32 v18, 16, v15')
                a('v_and_b32 v19, 0xffff0000, v15')
                a('v_max_f32 v16, 0, v16')
                a('v_max_f32 v17, 0, v17')
                a('v_mul_f32 v16, v16, v18')
                a('v_mul_f32 v17, v17, v19')
                a(f'v_cvt_pk_bf16_f32 v{20+p}, v16, v17')
            a(f'v_add_u32 v13, {mb*16*LD_OH}, v12')
            a(f'buffer_store_dwordx2 v[20:21], v13, s[{sO}:{sO+3}], 0 offen offset:{foff_bytes}')
            a('s_nop 0')

    a('s_cmp_eq_u32 s31, 0')
    a('s_cbranch_scc0 G1_epi1')
    hstore(6, 8, 0)
    hstore(7, 9, 32)
    srd_from(a, sO, 22, 2048 * LD_QKV, QKV_OFF)
    a('s_mov_b32 s36, %d' % LD_QKV)
    a('v_mul_lo_u32 v12, v10, s36')
    a('v_add_u32 v12, v12, v11')
    a('s_mul_i32 s35, s28, 192')
    a('v_add_u32 v12, s35, v12')
    for b in range(6):
        for mb in range(4):
            q = ACC + (b * 4 + mb) * 4
            a(f'v_cvt_pk_bf16_f32 v20, v{q}, v{q+1}')
            a(f'v_cvt_pk_bf16_f32 v21, v{q+2}, v{q+3}')
            a(f'v_add_u32 v13, {mb*16*LD_QKV}, v12')
            a(f'buffer_store_dwordx2 v[20:21], v13, s[{sO}:{sO+3}], 0 offen offset:{b*32}')
            a('s_nop 0')
    a('s_branch G1_done')
    a.label('G1_epi1')
    for bb in range(5):
        hstore(bb, 5 + bb, 64 + bb * 32)
    a.label('G1_done')
    a('s_endpgm')
    return kernel_desc(name, 256, 48)


def main():
    a = A()
    launches = []
    descs = []
    head = open(f'cdna_kernels/{NAME}.s.ref').read().split('\n')
    hdr = [l for l in head if l.startswith(';') and '@launch' not in l and 'Override launch' not in l and 'grid=ceil' not in l]
    which = sys.argv[1:] or ['ln', 'gemm1v3', 'attn', 'gemm2']
    body = A()
    if 'ln' in which:
        launches.append('; @launch kernel=ln_kernel grid=(512,1,1) block=(256,1,1) lds=0')
        descs.append(gen_ln(body))
    if 'gemm1v3' in which:
        launches.append('; @launch kernel=gemm1_kernel grid=(256,1,1) block=(512,1,1) lds=147456')
        descs.append(gen_gemm1v3(body))
    if 'gemm1v2' in which:
        launches.append('; @launch kernel=gemm1_kernel grid=(256,1,1) block=(512,1,1) lds=147456')
        descs.append(gen_gemm1v2(body))
    if 'gemm1' in which:
        launches.append(f'; @launch kernel=gemm1_kernel grid=(1280,1,1) block=(256,1,1) lds={32768*P["g1_nst"]}')
        descs.append(gen_gemm1(body))
    if 'attn' in which:
        launches.append('; @launch kernel=attn_kernel grid=(1024,1,1) block=(256,1,1) lds=40960')
        descs.append(gen_attn(body))
    if 'gemm2' in which:
        launches.append('; @launch kernel=gemm2_kernel grid=(256,1,1) block=(256,1,1) lds=98304')
        descs.append(gen_gemm2(body))
    out = '\n'.join(hdr) + '\n' + '\n'.join(launches) + '\n'
    out += '.amdgcn_target "amdgcn-amd-amdhsa--gfx950"\n.text\n'
    out += body.text()
    out += '.section .rodata,"a"\n.p2align 6\n' + '.p2align 6\n'.join(descs)
    open(os.environ.get('OUT', f'cdna_kernels/{NAME}.s'), 'w').write(out)


main()
```

```python
import sys

NAME = 'parallel_sum__sliding_block__glu_gated_reglu__prompt'
XN_OFF, QKV_OFF, OH_OFF = 0, 4 << 20, 16 << 20
LD_OH = 4608 * 2
LD_QKV = 3072 * 2


P = {'g1_nst': 2}
import os, json
if os.environ.get('GP'):
    P.update(json.loads(os.environ['GP']))

class A:
    def __init__(self):
        self.lines = []

    def __call__(self, s):
        for l in s.strip('\n').split('\n'):
            self.lines.append('    ' + l.strip())

    def label(self, s):
        self.lines.append(s + ':')

    def raw(self, s):
        self.lines.append(s)

    def text(self):
        return '\n'.join(self.lines) + '\n'


def kernel_header(a, name):
    a.raw(f'.globl {name}')
    a.raw('.p2align 8')
    a.raw(f'.type {name},@function')
    a.label(name)


def kernel_desc(name, vgpr, sgpr, accum=None, wgy=False):
    accum = accum or ((vgpr + 3) // 4 * 4)
    return f'''.amdhsa_kernel {name}
  .amdhsa_next_free_vgpr {vgpr}
  .amdhsa_next_free_sgpr {sgpr}
  .amdhsa_accum_offset {accum}
  .amdhsa_group_segment_fixed_size 0
  .amdhsa_kernarg_size 80
  .amdhsa_user_sgpr_count 2
  .amdhsa_user_sgpr_kernarg_segment_ptr 1
  .amdhsa_system_sgpr_workgroup_id_x 1
.end_amdhsa_kernel
'''


def srd_from(a, dst, ptr, nbytes, off=0):
    if off:
        a(f's_add_u32 s{dst}, s{ptr}, {off}')
        a(f's_addc_u32 s{dst+1}, s{ptr+1}, 0')
    else:
        a(f's_mov_b32 s{dst}, s{ptr}')
        a(f's_mov_b32 s{dst+1}, s{ptr+1}')
    a(f's_mov_b32 s{dst+2}, {nbytes}')
    a(f's_mov_b32 s{dst+3}, 0x00020000')


def wave_sum(a, v, tmp, sdst):
    for off in (0x041F, 0x081F, 0x101F, 0x201F, 0x401F):
        a(f'ds_swizzle_b32 v{tmp}, v{v} offset:{off}')
        a('s_waitcnt lgkmcnt(0)')
        a(f'v_add_f32 v{v}, v{v}, v{tmp}')
    a('s_nop 0')
    a(f'v_readlane_b32 s{sdst}, v{v}, 32')
    a('s_nop 1')
    a(f'v_add_f32 v{v}, s{sdst}, v{v}')
    a('s_nop 0')
    a(f'v_readlane_b32 s{sdst}, v{v}, 0')
    a('s_nop 3')


def gen_ln(a):
    name = 'ln_kernel'
    kernel_header(a, name)
    a('s_cmp_ge_u32 s2, 512')
    a('s_cbranch_scc1 LN_done')
    a('s_load_dwordx2 s[4:5], s[0:1], 0')
    a('s_load_dwordx2 s[6:7], s[0:1], 72')
    a('v_lshrrev_b32 v1, 6, v0')
    a('v_and_b32 v2, 63, v0')
    a('s_lshl_b32 s3, s2, 2')
    a('v_add_u32 v1, s3, v1')
    a('v_lshlrev_b32 v1, 11, v1')
    a('v_lshlrev_b32 v2, 5, v2')
    a('v_add_u32 v1, v1, v2')
    a('s_waitcnt lgkmcnt(0)')
    srd_from(a, 8, 4, 2048 * 2048)
    srd_from(a, 12, 6, 2048 * 2048, XN_OFF)
    a('buffer_load_dwordx4 v[4:7], v1, s[8:11], 0 offen')
    a('buffer_load_dwordx4 v[8:11], v1, s[8:11], 0 offen offset:16')
    a('s_waitcnt vmcnt(0)')
    for i in range(8):
        a(f'v_lshlrev_b32 v{16+2*i}, 16, v{4+i}')
        a(f'v_and_b32 v{17+2*i}, 0xffff0000, v{4+i}')
    a('v_add_f32 v12, v16, v17')
    for i in range(18, 32):
        a(f'v_add_f32 v12, v12, v{i}')
    wave_sum(a, 12, 13, 20)
    a('v_mov_b32 v14, 0x3a800000')
    a('v_mul_f32 v14, s20, v14')
    a('v_mov_b32 v12, 0')
    for i in range(16, 32):
        a(f'v_sub_f32 v13, v{i}, v14')
        a(f'v_fmac_f32 v12, v13, v13')
    wave_sum(a, 12, 13, 21)
    a('v_mov_b32 v15, 0x3a800000')
    a('v_mul_f32 v15, s21, v15')
    a('v_cvt_pk_bf16_f32 v12, v14, v15')
    a('v_lshlrev_b32 v14, 16, v12')
    a('v_and_b32 v15, 0xffff0000, v12')
    a('v_mov_b32 v13, 0x3727c5ac')
    a('v_add_f32 v15, v15, v13')
    a('v_cvt_pk_bf16_f32 v15, v15, v15')
    a('v_lshlrev_b32 v15, 16, v15')
    a('v_sqrt_f32 v15, v15')
    a('s_nop 0')
    a('v_cvt_pk_bf16_f32 v15, v15, v15')
    a('v_lshlrev_b32 v15, 16, v15')
    a('v_rcp_f32 v15, v15')
    a('s_nop 0')
    for i in range(8):
        a(f'v_sub_f32 v{16+2*i}, v{16+2*i}, v14')
        a(f'v_sub_f32 v{17+2*i}, v{17+2*i}, v14')
        a(f'v_cvt_pk_bf16_f32 v12, v{16+2*i}, v{17+2*i}')
        a(f'v_lshlrev_b32 v{16+2*i}, 16, v12')
        a(f'v_and_b32 v{17+2*i}, 0xffff0000, v12')
        a(f'v_mul_f32 v{16+2*i}, v{16+2*i}, v15')
        a(f'v_mul_f32 v{17+2*i}, v{17+2*i}, v15')
        a(f'v_cvt_pk_bf16_f32 v{4+i}, v{16+2*i}, v{17+2*i}')
    a('buffer_store_dwordx4 v[4:7], v1, s[12:15], 0 offen')
    a('buffer_store_dwordx4 v[8:11], v1, s[12:15], 0 offen offset:16')
    a.label('LN_done')
    a('s_endpgm')
    return kernel_desc(name, 32, 32)


def gen_gemm1(a):
    name = 'gemm1_kernel'
    kernel_header(a, name)
    STAGE = 32768
    sA, sB, sO = 4, 8, 12
    a('s_cmp_ge_u32 s2, 1280')
    a('s_cbranch_scc1 G1_done')
    a('s_load_dwordx2 s[16:17], s[0:1], 8')
    a('s_load_dwordx2 s[18:19], s[0:1], 32')
    a('s_load_dwordx2 s[20:21], s[0:1], 40')
    a('s_load_dwordx2 s[22:23], s[0:1], 72')
    a('v_lshrrev_b32 v1, 6, v0')
    a('v_and_b32 v0, 63, v0')
    a('s_nop 0')
    a('v_readfirstlane_b32 s24, v1')
    a('s_and_b32 s25, s2, 7')
    a('s_lshr_b32 s26, s2, 3')
    a('s_and_b32 s27, s26, 15')
    a('s_lshr_b32 s28, s26, 4')
    a('s_mul_i32 s29, s25, 10')
    a('s_add_u32 s28, s28, s29')
    a('s_lshr_b32 s30, s24, 1')
    a('s_and_b32 s31, s24, 1')
    a('s_waitcnt lgkmcnt(0)')
    srd_from(a, sA, 22, 2048 * 2048, XN_OFF)
    a('s_cmp_lt_u32 s28, 24')
    a('s_cbranch_scc0 G1_ffn')
    srd_from(a, sB, 16, 1024 * 6144)
    a('s_mov_b32 s32, 6144')
    a('s_lshl_b32 s33, s28, 8')
    a('s_lshl_b32 s34, s30, 7')
    a('s_add_u32 s33, s33, s34')
    a('s_branch G1_bdone')
    a.label('G1_ffn')
    a('s_cmp_eq_u32 s30, 0')
    a('s_cselect_b32 s8, s18, s20')
    a('s_cselect_b32 s9, s19, s21')
    a('s_mov_b32 s10, 7340032')
    a('s_mov_b32 s11, 0x00020000')
    a('s_mov_b32 s32, 7168')
    a('s_sub_u32 s33, s28, 24')
    a('s_lshl_b32 s33, s33, 7')
    a.label('G1_bdone')
    a('v_lshrrev_b32 v10, 3, v0')
    a('v_and_b32 v11, 7, v0')
    a('v_lshrrev_b32 v12, 4, v0')
    a('s_lshl_b32 s34, s27, 7')
    a('s_lshl_b32 s35, s24, 5')
    a('s_add_u32 s34, s34, s35')
    a('v_add_u32 v13, s34, v10')
    a('v_lshlrev_b32 v13, 11, v13')
    a('v_xor_b32 v14, v11, v12')
    a('v_lshlrev_b32 v14, 4, v14')
    a('v_xor_b32 v15, 4, v11')
    a('v_xor_b32 v15, v15, v12')
    a('v_lshlrev_b32 v15, 4, v15')
    a('v_add_u32 v2, v13, v14')
    a('v_add_u32 v3, v13, v15')
    a('v_add_u32 v3, 0x4000, v3')
    a('v_add_u32 v4, 0x8000, v2')
    a('v_add_u32 v5, 0x8000, v3')
    if P.get('seg64'):
        a('v_lshrrev_b32 v13, 2, v0')
        a('v_add_u32 v13, s34, v13')
        a('v_lshlrev_b32 v13, 11, v13')
        a('v_and_b32 v14, 3, v0')
        a('v_lshlrev_b32 v14, 4, v14')
        a('v_add_u32 v2, v13, v14')
        a('v_add_u32 v3, 64, v2')
        a('v_add_u32 v4, 0x8000, v2')
        a('v_add_u32 v5, 0x8000, v3')
    if P.get('contigA'):
        a('v_lshlrev_b32 v2, 4, v0')
        a('s_lshl_b32 s35, s24, 12')
        a('v_add_u32 v2, s35, v2')
        a('s_lshl_b32 s35, s27, 18')
        a('v_add_u32 v2, s35, v2')
        a('v_add_u32 v3, 1024, v2')
        a('v_add_u32 v4, 2048, v2')
        a('v_add_u32 v5, 3072, v2')
    a('s_lshl_b32 s35, s31, 5')
    a('v_add_u32 v13, s35, v10')
    a('v_mul_lo_u32 v13, v13, s32')
    a('v_and_b32 v14, 1, v12')
    a('v_lshlrev_b32 v14, 2, v14')
    a('v_xor_b32 v14, v14, v11')
    a('v_lshlrev_b32 v14, 4, v14')
    a('v_add_u32 v13, v13, v14')
    a('v_add_u32 v6, s33, v13')
    a('s_lshl_b32 s36, s32, 3')
    a('v_add_u32 v7, s36, v6')
    a('v_add_u32 v8, s36, v7')
    a('v_add_u32 v9, s36, v8')
    a('s_lshl_b32 s37, s32, 6')
    a('s_lshl_b32 s38, s24, 12')
    a('v_and_b32 v10, 31, v0')
    a('s_lshl_b32 s35, s30, 6')
    a('v_add_u32 v10, s35, v10')
    a('v_lshrrev_b32 v11, 1, v10')
    a('v_and_b32 v11, 7, v11')
    a('v_lshrrev_b32 v12, 5, v0')
    a('v_lshlrev_b32 v10, 7, v10')
    for ks in range(4):
        a(f'v_add_u32 v13, {ks*2}, v12')
        a('v_xor_b32 v13, v13, v11')
        a('v_lshlrev_b32 v13, 4, v13')
        a(f'v_add_u32 v{16+ks}, v10, v13')
    a('v_lshrrev_b32 v10, 4, v0')
    a('v_and_b32 v11, 15, v0')
    a('v_lshrrev_b32 v12, 1, v10')
    a('v_lshlrev_b32 v12, 3, v12')
    a('v_lshrrev_b32 v13, 2, v11')
    a('v_add_u32 v12, v12, v13')
    a('v_lshlrev_b32 v12, 7, v12')
    a('v_and_b32 v13, 1, v10')
    a('v_lshlrev_b32 v13, 1, v13')
    a('v_bfe_u32 v14, v11, 1, 1')
    a('v_add_u32 v13, v13, v14')
    a('s_lshl_b32 s35, s31, 2')
    a('v_add_u32 v13, s35, v13')
    a('v_bfe_u32 v14, v11, 3, 1')
    a('v_lshlrev_b32 v14, 2, v14')
    a('v_xor_b32 v13, v13, v14')
    a('v_lshlrev_b32 v13, 4, v13')
    a('v_add_u32 v12, v12, v13')
    a('v_and_b32 v13, 1, v11')
    a('v_lshlrev_b32 v13, 3, v13')
    a('v_add_u32 v12, v12, v13')
    a('v_add_u32 v20, 16384, v12')
    for i in range(64, 128):
        a(f'v_mov_b32 v{i}, 0')
    a('s_mov_b32 s40, 0')
    a('s_mov_b32 s41, 0')

    NST = P['g1_nst']
    PD = NST - 1
    NSTEP = 16

    def dma_one(stage, idx):
        if idx < 4:
            a(f's_add_u32 m0, s38, {stage*STAGE + idx*1024}')
            a('s_nop 0')
            if P.get('vgprload'):
                a(f'buffer_load_dwordx4 v[{96+idx*4}:{99+idx*4}], v{2+idx}, s[{sA}:{sA+3}], s40 offen')
            else:
                a(f'buffer_load_dwordx4 v{2+idx}, s[{sA}:{sA+3}], s40 offen lds')
        else:
            i = idx - 4
            a(f's_add_u32 m0, s38, {stage*STAGE + 16384 + i*1024}')
            a('s_nop 0')
            if P.get('vgprload'):
                a(f'buffer_load_dwordx4 v[{96+idx*4}:{99+idx*4}], v{6+i}, s[{sB}:{sB+3}], s41 offen')
            else:
                a(f'buffer_load_dwordx4 v{6+i}, s[{sB}:{sB+3}], s41 offen lds')
        if idx == 7:
            a('s_add_u32 s40, s40, %d' % (16384 if P.get('contigA') else 128))
            a('s_add_u32 s41, s41, s37')

    addr_hi = {}
    def reads(stage, ks, st):
        if P.get('noreads'):
            return
        base = 32 + st * 16
        off = stage * STAGE
        xa, wa = 16 + ks, 20
        if off >= 65536 - 8192:
            xa, wa = 24 + ks, 28
            off -= 65536
            off += 65536
        for mb in range(2):
            o = stage*STAGE + mb*4096
            if stage >= 2:
                a(f'ds_read_b128 v[{base+mb*4}:{base+mb*4+3}], v{24+ks} offset:{o - 65536}')
            else:
                a(f'ds_read_b128 v[{base+mb*4}:{base+mb*4+3}], v{16+ks} offset:{o}')
        for t in range(2):
            for half in range(2):
                r = base + 8 + t * 4 + half * 2
                o = stage*STAGE + t*8192 + ks*2048 + half*512
                if stage >= 2:
                    a(f'ds_read_b64_tr_b16 v[{r}:{r+1}], v28 offset:{o - 65536}')
                else:
                    a(f'ds_read_b64_tr_b16 v[{r}:{r+1}], v20 offset:{o}')

    for ks in range(4):
        a(f'v_add_u32 v{24+ks}, 0x10000, v{16+ks}')
    a('v_add_u32 v28, 0x10000, v20')

    for s in range(PD):
        for idx in range(8):
            dma_one(s % NST, idx)
    for s in range(NSTEP):
        stage = s % NST
        newer = min(PD - 1, NSTEP - 1 - s)
        a(f's_waitcnt vmcnt({newer*8})')
        a('s_barrier')
        reads(stage, 0, 0)
        for ks in range(4):
            if ks < 3:
                reads(stage, ks + 1, (ks + 1) & 1)
            if s + PD < NSTEP:
                dma_one((s + PD) % NST, ks * 2)
                dma_one((s + PD) % NST, ks * 2 + 1)
            elif s + PD == NSTEP and ks == 0:
                pass
            a(f's_waitcnt lgkmcnt({6 if ks < 3 else 0})')
            base = 32 + (ks & 1) * 16
            for t in range(2):
                for mb in range(2):
                    acc = 64 + (t * 2 + mb) * 16
                    if not P.get('nomfma'):
                        a(f'v_mfma_f32_32x32x16_bf16 v[{acc}:{acc+15}], v[{base+8+t*4}:{base+8+t*4+3}], v[{base+mb*4}:{base+mb*4+3}], v[{acc}:{acc+15}]')
        a('s_nop 15')
    a('v_and_b32 v10, 31, v0')
    a('s_lshl_b32 s34, s27, 7')
    a('s_lshl_b32 s35, s30, 6')
    a('s_add_u32 s34, s34, s35')
    a('v_add_u32 v10, s34, v10')
    a('v_lshrrev_b32 v11, 5, v0')
    a('v_lshlrev_b32 v11, 3, v11')
    a('s_lshl_b32 s35, s31, 6')
    a('v_add_u32 v11, s35, v11')
    a('s_cmp_lt_u32 s28, 24')
    a('s_cbranch_scc0 G1_epi_ffn')
    srd_from(a, sO, 22, 2048 * LD_QKV, QKV_OFF)
    a('s_mov_b32 s36, %d' % LD_QKV)
    a('v_mul_lo_u32 v10, v10, s36')
    a('v_add_u32 v10, v10, v11')
    a('s_lshl_b32 s35, s28, 8')
    a('v_add_u32 v10, s35, v10')
    a(f'v_add_u32 v11, {32*LD_QKV}, v10')
    for t in range(2):
        for mb in range(2):
            acc = 64 + (t * 2 + mb) * 16
            for rq in range(4):
                a(f'v_cvt_pk_bf16_f32 v12, v{acc+rq*4}, v{acc+rq*4+1}')
                a(f'v_cvt_pk_bf16_f32 v13, v{acc+rq*4+2}, v{acc+rq*4+3}')
                a(f'buffer_store_dwordx2 v[12:13], v{10+mb}, s[{sO}:{sO+3}], 0 offen offset:{t*128 + rq*16}')
                a('s_nop 0')
    a('s_branch G1_done')
    a.label('G1_epi_ffn')
    srd_from(a, sO, 22, 2048 * LD_OH, OH_OFF)
    a('s_mov_b32 s36, %d' % LD_OH)
    a('v_mul_lo_u32 v10, v10, s36')
    a('v_add_u32 v10, v10, v11')
    a('s_sub_u32 s35, s28, 24')
    a('s_lshl_b32 s35, s35, 7')
    a('s_add_u32 s35, s35, 2048')
    a('v_add_u32 v10, s35, v10')
    a(f'v_add_u32 v11, {32*LD_OH}, v10')
    for mb in range(2):
        g = 64 + (0 * 2 + mb) * 16
        u = 64 + (1 * 2 + mb) * 16
        for rq in range(4):
            for p in range(2):
                r = rq * 4 + p * 2
                a(f'v_cvt_pk_bf16_f32 v14, v{g+r}, v{g+r+1}')
                a(f'v_cvt_pk_bf16_f32 v15, v{u+r}, v{u+r+1}')
                a('v_lshlrev_b32 v16, 16, v14')
                a('v_and_b32 v17, 0xffff0000, v14')
                a('v_lshlrev_b32 v18, 16, v15')
                a('v_and_b32 v19, 0xffff0000, v15')
                a('v_max_f32 v16, 0, v16')
                a('v_max_f32 v17, 0, v17')
                a('v_mul_f32 v16, v16, v18')
                a('v_mul_f32 v17, v17, v19')
                a(f'v_cvt_pk_bf16_f32 v{12+p}, v16, v17')
            a(f'buffer_store_dwordx2 v[12:13], v{10+mb}, s[{sO}:{sO+3}], 0 offen offset:{rq*16}')
            a('s_nop 0')
    a.label('G1_done')
    a('s_endpgm')
    return kernel_desc(name, 128, 48)


def gen_attn(a):
    name = 'attn_kernel'
    kernel_header(a, name)
    sQ, sO = 4, 8
    KOFF, VOFF = 0, 20480
    a('s_cmp_ge_u32 s2, 1024')
    a('s_cbranch_scc1 AT_done')
    a('s_load_dwordx2 s[16:17], s[0:1], 72')
    a('v_lshrrev_b32 v1, 6, v0')
    a('v_and_b32 v0, 63, v0')
    a('s_nop 0')
    a('v_readfirstlane_b32 s24, v1')
    a('s_and_b32 s25, s2, 31')
    a('s_lshr_b32 s26, s2, 5')
    a('s_lshl_b32 s27, s26, 6')
    a('s_waitcnt lgkmcnt(0)')
    srd_from(a, sQ, 16, 2048 * LD_QKV, QKV_OFF)
    srd_from(a, sO, 16, 2048 * LD_OH, OH_OFF)
    a('v_lshrrev_b32 v10, 2, v0')
    a('v_and_b32 v11, 3, v0')
    a('s_lshl_b32 s28, s24, 4')
    a('s_add_u32 s28, s28, s27')
    a('s_sub_u32 s28, s28, 256')
    a('v_add_u32 v10, s28, v10')
    a('s_mov_b32 s29, %d' % LD_QKV)
    a('v_mul_lo_u32 v10, v10, s29')
    a('v_lshlrev_b32 v11, 4, v11')
    a('v_add_u32 v10, v10, v11')
    a('s_lshl_b32 s30, s25, 6')
    a('v_add_u32 v10, s30, v10')
    a('v_add_u32 v12, 2048, v10')
    a('v_add_u32 v13, 4096, v10')
    a('s_lshl_b32 s31, s24, 10')
    a('s_mov_b32 s33, 0')
    for j in range(5):
        a(f's_add_u32 m0, s31, {KOFF + j*4096}')
        a('s_nop 0')
        a(f'buffer_load_dwordx4 v12, s[{sQ}:{sQ+3}], s33 offen lds')
        a(f's_add_u32 m0, s31, {VOFF + j*4096}')
        a('s_nop 0')
        a(f'buffer_load_dwordx4 v13, s[{sQ}:{sQ+3}], s33 offen lds')
        if j < 4:
            a(f'v_add_u32 v12, {64*LD_QKV}, v12')
            a(f'v_add_u32 v13, {64*LD_QKV}, v13')
    a('v_and_b32 v14, 15, v0')
    a('s_lshl_b32 s28, s24, 4')
    a('s_add_u32 s28, s28, s27')
    a('v_add_u32 v15, s28, v14')
    a('v_mul_lo_u32 v16, v15, s29')
    a('v_lshrrev_b32 v17, 4, v0')
    a('v_lshlrev_b32 v18, 4, v17')
    a('v_add_u32 v16, v16, v18')
    a('v_add_u32 v16, s30, v16')
    a(f'buffer_load_dwordx4 v[4:7], v16, s[{sQ}:{sQ+3}], 0 offen')
    a('v_lshlrev_b32 v20, 6, v14')
    a('v_add_u32 v20, v20, v18')
    a('v_add_u32 v20, s31, v20')
    a('v_lshlrev_b32 v21, 2, v17')
    a('v_lshrrev_b32 v22, 2, v14')
    a('v_add_u32 v21, v21, v22')
    a('v_lshlrev_b32 v21, 6, v21')
    a('v_and_b32 v22, 3, v14')
    a('v_lshlrev_b32 v22, 3, v22')
    a('v_add_u32 v21, v21, v22')
    a('v_add_u32 v21, s31, v21')
    a(f'v_add_u32 v21, {VOFF}, v21')
    a('s_waitcnt vmcnt(0)')
    a('s_barrier')
    NT = 17
    SB = 56
    for t in range(3):
        a(f'ds_read_b128 v[{24+t*4}:{24+t*4+3}], v20 offset:{KOFF + t*1024}')
    for t in range(NT):
        if t + 3 < NT:
            r = 24 + ((t + 3) & 3) * 4
            a(f'ds_read_b128 v[{r}:{r+3}], v20 offset:{KOFF + (t+3)*1024}')
        a(f's_waitcnt lgkmcnt({min(3, NT-1-t)})')
        rp = 24 + (t & 3) * 4
        a(f'v_mfma_f32_16x16x32_bf16 v[{SB+t*4}:{SB+t*4+3}], v[{rp}:{rp+3}], v[4:7], 0')
    a('v_add_u32 v22, 1, v14')
    a('s_sub_u32 s34, 256, s28')
    a('v_max_i32 v22, s34, v22')
    a('v_add_u32 v23, 256, v14')
    a('v_sub_u32 v23, v23, v22')
    a('v_lshlrev_b32 v40, 2, v17')
    a('v_sub_u32 v22, v40, v22')
    a('s_nop 7')
    a('v_mov_b32 v41, 0xf149f2ca')
    a('v_mov_b32 v42, 0xf149f2ca')
    a('s_mov_b32 s35, 0x3e3504f3')
    a('s_cmp_lt_u32 s28, 256')
    a('s_cbranch_scc1 AT_slow')
    for path in ('fast', 'slow'):
        if path == 'slow':
            a.label('AT_slow')
        for t in range(NT):
            for p in range(2):
                s = SB + t * 4 + p * 2
                a(f'v_cvt_pk_bf16_f32 v43, v{s}, v{s+1}')
                a(f'v_lshlrev_b32 v{s}, 16, v43')
                a(f'v_and_b32 v{s+1}, 0xffff0000, v43')
                a(f'v_mul_f32 v{s}, s35, v{s}')
                a(f'v_mul_f32 v{s+1}, s35, v{s+1}')
                a(f'v_cvt_pk_bf16_f32 v43, v{s}, v{s+1}')
                a(f'v_lshlrev_b32 v{s}, 16, v43')
                a(f'v_and_b32 v{s+1}, 0xffff0000, v43')
                if path == 'slow' or t == 0 or t == NT - 1:
                    for r in range(2):
                        a(f'v_add_u32 v44, {16*t + p*2 + r}, v22')
                        a('v_cmp_le_u32 vcc, v44, v23')
                        a('s_nop 1')
                        a(f'v_cndmask_b32 v{s+r}, v41, v{s+r}, vcc')
                a(f'v_max3_f32 v42, v42, v{s}, v{s+1}')
        if path == 'fast':
            a('s_branch AT_join')
    a.label('AT_join')
    a('ds_swizzle_b32 v43, v42 offset:0x401F')
    a('s_waitcnt lgkmcnt(0)')
    a('v_max_f32 v42, v42, v43')
    a('v_lshlrev_b32 v45, 2, v0')
    a('v_xor_b32 v45, 128, v45')
    a('ds_bpermute_b32 v43, v45, v42')
    a('s_waitcnt lgkmcnt(0)')
    a('v_max_f32 v42, v42, v43')
    a('s_mov_b32 s36, 0x3fb8aa3b')
    a('v_mul_f32 v42, s36, v42')
    a('v_mov_b32 v46, 0')
    a('v_mov_b32 v47, s36')
    for t in range(NT):
        for r in range(4):
            s = SB + t * 4 + r
            a(f'v_fma_f32 v{s}, v{s}, v47, -v42')
            a(f'v_exp_f32 v{s}, v{s}')
        for r in range(4):
            s = SB + t * 4 + r
            a(f'v_add_f32 v46, v46, v{s}')
    a('ds_swizzle_b32 v43, v46 offset:0x401F')
    a('s_waitcnt lgkmcnt(0)')
    a('v_add_f32 v46, v46, v43')
    a('ds_bpermute_b32 v43, v45, v46')
    a('s_waitcnt lgkmcnt(0)')
    a('v_add_f32 v46, v46, v43')
    a('v_rcp_f32 v46, v46')
    a('s_nop 0')
    for t in range(NT):
        s = SB + t * 4
        for r in range(4):
            a(f'v_mul_f32 v{s+r}, v{s+r}, v46')
        a(f'v_cvt_pk_bf16_f32 v{SB+t*2}, v{s}, v{s+1}')
        a(f'v_cvt_pk_bf16_f32 v{SB+1+t*2}, v{s+2}, v{s+3}')
    for i in range(48, 56):
        a(f'v_mov_b32 v{i}, 0')
    def vreads(tp):
        t0 = tp * 2
        rb = 24 + (tp & 1) * 8
        for dhh in range(2):
            a(f'ds_read_b64_tr_b16 v[{rb+dhh*4}:{rb+dhh*4+1}], v21 offset:{t0*1024 + dhh*32}')
            a(f'ds_read_b64_tr_b16 v[{rb+dhh*4+2}:{rb+dhh*4+3}], v21 offset:{(t0+1)*1024 + dhh*32}')
    vreads(0)
    for tp in range(8):
        t0 = tp * 2
        rb = 24 + (tp & 1) * 8
        if tp < 7:
            vreads(tp + 1)
            a('s_waitcnt lgkmcnt(4)')
        else:
            a('s_waitcnt lgkmcnt(0)')
        for dhh in range(2):
            a(f'v_mfma_f32_16x16x32_bf16 v[{48+dhh*4}:{48+dhh*4+3}], v[{rb+dhh*4}:{rb+dhh*4+3}], v[{SB+t0*2}:{SB+t0*2+3}], v[{48+dhh*4}:{48+dhh*4+3}]')
    for dhh in range(2):
        a(f'ds_read_b64_tr_b16 v[{24+dhh*2}:{24+dhh*2+1}], v21 offset:{16*1024 + dhh*32}')
    a('s_waitcnt lgkmcnt(0)')
    for dhh in range(2):
        a(f'v_mfma_f32_16x16x16_bf16 v[{48+dhh*4}:{48+dhh*4+3}], v[{24+dhh*2}:{24+dhh*2+1}], v[{SB+32}:{SB+33}], v[{48+dhh*4}:{48+dhh*4+3}]')
    a('s_nop 15')
    a('s_mov_b32 s29, %d' % LD_OH)
    a('v_mul_lo_u32 v16, v15, s29')
    a('v_lshlrev_b32 v18, 3, v17')
    a('v_add_u32 v16, v16, v18')
    a('v_add_u32 v16, s30, v16')
    for dhh in range(2):
        a(f'v_cvt_pk_bf16_f32 v12, v{48+dhh*4}, v{49+dhh*4}')
        a(f'v_cvt_pk_bf16_f32 v13, v{50+dhh*4}, v{51+dhh*4}')
        a(f'buffer_store_dwordx2 v[12:13], v16, s[{sO}:{sO+3}], 0 offen offset:{dhh*32}')
        a('s_nop 0')
    a.label('AT_done')
    a('s_endpgm')
    return kernel_desc(name, 128, 48)


def gen_gemm2(a):
    name = 'gemm2_kernel'
    kernel_header(a, name)
    STAGE = 24576
    NST = 4
    sA, sB, sO, sX = 4, 8, 12, 44
    a('s_cmp_ge_u32 s2, 256')
    a('s_cbranch_scc1 G2_done')
    a('s_load_dwordx2 s[16:17], s[0:1], 16')
    a('s_load_dwordx2 s[18:19], s[0:1], 48')
    a('s_load_dwordx2 s[20:21], s[0:1], 0')
    a('s_load_dwordx2 s[22:23], s[0:1], 72')
    a('s_load_dwordx2 s[48:49], s[0:1], 56')
    a('v_lshrrev_b32 v1, 6, v0')
    a('v_and_b32 v0, 63, v0')
    a('s_nop 0')
    a('v_readfirstlane_b32 s24, v1')
    a('s_and_b32 s25, s2, 7')
    a('s_lshr_b32 s26, s2, 3')
    a('s_and_b32 s27, s26, 1')
    a('s_lshl_b32 s29, s25, 1')
    a('s_add_u32 s27, s27, s29')
    a('s_lshr_b32 s28, s26, 1')
    a('s_lshr_b32 s30, s24, 1')
    a('s_and_b32 s31, s24, 1')
    a('s_waitcnt lgkmcnt(0)')
    srd_from(a, sA, 22, 2048 * LD_OH, OH_OFF)
    srd_from(a, sB, 16, 1024 * 2048)
    srd_from(a, sO, 48, 2048 * 2048)
    srd_from(a, sX, 20, 2048 * 2048)
    a('v_lshrrev_b32 v10, 3, v0')
    a('v_and_b32 v11, 7, v0')
    a('v_lshrrev_b32 v12, 4, v0')
    a('s_lshl_b32 s34, s27, 7')
    a('s_lshl_b32 s35, s24, 5')
    a('s_add_u32 s34, s34, s35')
    a('v_add_u32 v13, s34, v10')
    a('s_mov_b32 s36, %d' % LD_OH)
    a('v_mul_lo_u32 v13, v13, s36')
    a('v_xor_b32 v14, v11, v12')
    a('v_lshlrev_b32 v14, 4, v14')
    a('v_xor_b32 v15, 4, v11')
    a('v_xor_b32 v15, v15, v12')
    a('v_lshlrev_b32 v15, 4, v15')
    a('v_add_u32 v2, v13, v14')
    a('v_add_u32 v3, v13, v15')
    a(f'v_add_u32 v3, {8*LD_OH}, v3')
    a(f'v_add_u32 v4, {16*LD_OH}, v2')
    a(f'v_add_u32 v5, {16*LD_OH}, v3')
    a('s_lshl_b32 s35, s24, 4')
    a('v_add_u32 v13, s35, v10')
    a('v_lshlrev_b32 v13, 11, v13')
    a('v_and_b32 v14, 1, v12')
    a('v_lshlrev_b32 v14, 2, v14')
    a('v_xor_b32 v14, v14, v11')
    a('v_lshlrev_b32 v14, 4, v14')
    a('v_add_u32 v13, v13, v14')
    a('s_lshl_b32 s33, s28, 7')
    a('v_add_u32 v6, s33, v13')
    a('v_add_u32 v7, 0x4000, v6')
    a('s_lshl_b32 s38, s24, 12')
    a('s_lshl_b32 s39, s24, 11')
    a('v_and_b32 v10, 31, v0')
    a('s_lshl_b32 s35, s30, 6')
    a('v_add_u32 v10, s35, v10')
    a('v_lshrrev_b32 v11, 1, v10')
    a('v_and_b32 v11, 7, v11')
    a('v_lshrrev_b32 v12, 5, v0')
    a('v_lshlrev_b32 v10, 7, v10')
    a('s_lshl_b32 s35, s31, 2')
    for j in range(2):
        a(f'v_add_u32 v13, {j*2}, v12')
        a('v_add_u32 v13, s35, v13')
        a('v_xor_b32 v13, v13, v11')
        a('v_lshlrev_b32 v13, 4, v13')
        a(f'v_add_u32 v{16+j}, v10, v13')
    a('v_lshrrev_b32 v10, 4, v0')
    a('v_and_b32 v11, 15, v0')
    a('v_lshrrev_b32 v12, 1, v10')
    a('v_lshlrev_b32 v12, 3, v12')
    a('v_lshrrev_b32 v13, 2, v11')
    a('v_add_u32 v12, v12, v13')
    a('v_lshlrev_b32 v12, 7, v12')
    a('v_and_b32 v13, 1, v10')
    a('v_lshlrev_b32 v13, 1, v13')
    a('v_bfe_u32 v14, v11, 1, 1')
    a('v_add_u32 v13, v13, v14')
    a('v_bfe_u32 v14, v11, 3, 1')
    a('v_lshlrev_b32 v14, 2, v14')
    a('v_and_b32 v15, 1, v11')
    a('v_lshlrev_b32 v15, 3, v15')
    a('v_add_u32 v12, v12, v15')
    a('s_lshl_b32 s35, s31, 12')
    a('v_add_u32 v12, s35, v12')
    a('v_add_u32 v12, 16384, v12')
    for t in range(2):
        a(f'v_add_u32 v15, {t*4}, v13')
        a('v_xor_b32 v15, v15, v14')
        a('v_lshlrev_b32 v15, 4, v15')
        a(f'v_add_u32 v{20+t}, v12, v15')
    a('v_add_u32 v18, 49152, v16')
    a('v_add_u32 v19, 49152, v17')
    a('v_add_u32 v22, 49152, v20')
    a('v_add_u32 v23, 49152, v21')
    for i in range(64, 128):
        a(f'v_mov_b32 v{i}, 0')
    a('s_mov_b32 s40, 0')
    a('s_mov_b32 s41, 0')
    a('s_mov_b32 s43, 0')

    def dma(stage):
        a('s_cmp_eq_u32 s43, 16')
        a('s_cselect_b32 s8, s18, s8')
        a('s_cselect_b32 s9, s19, s9')
        a('s_cselect_b32 s10, %d, s10' % (3584 * 2048))
        a('s_cselect_b32 s41, 0, s41')
        for i in range(4):
            a(f's_add_u32 m0, s38, {stage*STAGE + i*1024}')
            a('s_nop 0')
            a(f'buffer_load_dwordx4 v{2+i}, s[{sA}:{sA+3}], s40 offen lds')
        for i in range(2):
            a(f's_add_u32 m0, s39, {stage*STAGE + 16384 + i*1024}')
            a('s_nop 0')
            a(f'buffer_load_dwordx4 v{6+i}, s[{sB}:{sB+3}], s41 offen lds')
        a('s_add_u32 s40, s40, 128')
        a('s_add_u32 s41, s41, 0x20000')
        a('s_add_u32 s43, s43, 1')

    def compute(stage):
        for j in range(2):
            base = 32 + j * 16
            for mb in range(2):
                a(f'ds_read_b128 v[{base+mb*4}:{base+mb*4+3}], v{16+j+2*(stage>>1)} offset:{(stage&1)*STAGE + mb*4096}')
            for t in range(2):
                for half in range(2):
                    r = base + 8 + t * 4 + half * 2
                    a(f'ds_read_b64_tr_b16 v[{r}:{r+1}], v{20+t+2*(stage>>1)} offset:{(stage&1)*STAGE + j*2048 + half*512}')
        for j in range(2):
            a(f's_waitcnt lgkmcnt({6 if j == 0 else 0})')
            base = 32 + j * 16
            for t in range(2):
                for mb in range(2):
                    acc = 64 + (t * 2 + mb) * 16
                    a(f'v_mfma_f32_32x32x16_bf16 v[{acc}:{acc+15}], v[{base+8+t*4}:{base+8+t*4+3}], v[{base+mb*4}:{base+mb*4+3}], v[{acc}:{acc+15}]')

    for s in range(3):
        dma(s)
    a('s_mov_b32 s42, 0')
    a.label('G2_loop')
    for u in range(NST):
        a('s_waitcnt vmcnt(12)')
        a('s_barrier')
        a('s_cmp_ge_u32 s43, 72')
        a(f's_cbranch_scc1 G2_nl{u}')
        dma((u + 3) % NST)
        a(f's_branch G2_c{u}')
        a.label(f'G2_nl{u}')
        a('s_waitcnt vmcnt(0)')
        a('s_barrier')
        a.label(f'G2_c{u}')
        compute(u)
    a('s_add_u32 s42, s42, 4')
    a('s_cmp_lt_u32 s42, 72')
    a('s_cbranch_scc1 G2_loop')
    a('s_nop 15')
    a('s_barrier')
    a('v_lshlrev_b32 v10, 2, v0')
    a('s_xor_b32 s35, s24, 1')
    a('s_lshl_b32 s35, s35, 13')
    a('v_add_u32 v10, s35, v10')
    a('v_lshlrev_b32 v11, 2, v0')
    a('s_lshl_b32 s35, s24, 13')
    a('v_add_u32 v11, s35, v11')
    a('s_cmp_eq_u32 s31, 0')
    a('s_cbranch_scc0 G2_x1')
    for t in range(2):
        acc = 64 + (t * 2 + 1) * 16
        for r in range(16):
            a(f'ds_write_b32 v10, v{acc+r} offset:{(t*16+r)*256}')
    a('s_branch G2_x2')
    a.label('G2_x1')
    for t in range(2):
        acc = 64 + (t * 2 + 0) * 16
        for r in range(16):
            a(f'ds_write_b32 v10, v{acc+r} offset:{(t*16+r)*256}')
    for t in range(2):
        for r in range(16):
            a(f'v_mov_b32 v{64+(t*2)*16+r}, v{64+(t*2+1)*16+r}')
    a.label('G2_x2')
    a('s_waitcnt lgkmcnt(0)')
    a('s_barrier')
    for t in range(2):
        for r in range(16):
            a(f'ds_read_b32 v{32+(r&7)}, v11 offset:{(t*16+r)*256}')
            if (r & 7) == 7:
                a('s_waitcnt lgkmcnt(0)')
                for rr in range(r - 7, r + 1):
                    a(f'v_add_f32 v{64+(t*2)*16+rr}, v{64+(t*2)*16+rr}, v{32+(rr&7)}')
    a('v_and_b32 v10, 31, v0')
    a('s_lshl_b32 s34, s27, 7')
    a('s_lshl_b32 s35, s30, 6')
    a('s_add_u32 s34, s34, s35')
    a('s_lshl_b32 s35, s31, 5')
    a('s_add_u32 s34, s34, s35')
    a('v_add_u32 v10, s34, v10')
    a('v_lshlrev_b32 v10, 11, v10')
    a('v_lshrrev_b32 v11, 5, v0')
    a('v_lshlrev_b32 v11, 3, v11')
    a('v_add_u32 v10, v10, v11')
    a('v_add_u32 v10, s33, v10')
    for t in range(2):
        for rq in range(4):
            a(f'buffer_load_dwordx2 v[{32+(t*4+rq)*2}:{33+(t*4+rq)*2}], v10, s[{sX}:{sX+3}], 0 offen offset:{t*64 + rq*16}')
    a('s_waitcnt vmcnt(0)')
    for t in range(2):
        acc = 64 + (t * 2) * 16
        for rq in range(4):
            xr = 32 + (t * 4 + rq) * 2
            a(f'v_lshlrev_b32 v12, 16, v{xr}')
            a(f'v_and_b32 v13, 0xffff0000, v{xr}')
            a(f'v_lshlrev_b32 v14, 16, v{xr+1}')
            a(f'v_and_b32 v15, 0xffff0000, v{xr+1}')
            for q in range(4):
                a(f'v_add_f32 v{12+q}, v{12+q}, v{acc+rq*4+q}')
            a('v_cvt_pk_bf16_f32 v12, v12, v13')
            a('v_cvt_pk_bf16_f32 v13, v14, v15')
            a(f'buffer_store_dwordx2 v[12:13], v10, s[{sO}:{sO+3}], 0 offen offset:{t*64 + rq*16}')
            a('s_nop 0')
    a.label('G2_done')
    a('s_endpgm')
    return kernel_desc(name, 128, 56)


def gen_gemm1v2(a):
    name = 'gemm1_kernel'
    kernel_header(a, name)
    STAGE = 73728
    BOFF = 32768
    sA, sO = 4, 12
    a('s_cmp_ge_u32 s2, 256')
    a('s_cbranch_scc1 G1_done')
    a('s_load_dwordx2 s[16:17], s[0:1], 8')
    a('s_load_dwordx2 s[18:19], s[0:1], 32')
    a('s_load_dwordx2 s[20:21], s[0:1], 40')
    a('s_load_dwordx2 s[22:23], s[0:1], 72')
    a('v_lshrrev_b32 v1, 6, v0')
    a('v_and_b32 v0, 63, v0')
    a('s_nop 0')
    a('v_readfirstlane_b32 s24, v1')
    a('s_and_b32 s25, s2, 7')
    a('s_lshr_b32 s26, s2, 3')
    a('s_and_b32 s27, s26, 7')
    a('s_lshr_b32 s28, s26, 3')
    a('s_lshl_b32 s29, s25, 2')
    a('s_add_u32 s28, s28, s29')
    a('s_lshr_b32 s30, s24, 1')
    a('s_and_b32 s31, s24, 1')
    a('s_waitcnt lgkmcnt(0)')
    srd_from(a, sA, 22, 2048 * 2048, XN_OFF)
    a('v_lshrrev_b32 v10, 3, v0')
    a('v_and_b32 v11, 7, v0')
    a('v_lshrrev_b32 v12, 4, v0')
    a('s_lshl_b32 s34, s27, 8')
    a('s_lshl_b32 s35, s24, 5')
    a('s_add_u32 s34, s34, s35')
    a('v_add_u32 v13, s34, v10')
    a('v_lshlrev_b32 v13, 11, v13')
    a('v_xor_b32 v14, v11, v12')
    a('v_lshlrev_b32 v14, 4, v14')
    a('v_xor_b32 v15, 4, v11')
    a('v_xor_b32 v15, v15, v12')
    a('v_lshlrev_b32 v15, 4, v15')
    a('v_add_u32 v2, v13, v14')
    a('v_add_u32 v3, v13, v15')
    a('v_add_u32 v3, 0x4000, v3')
    a('v_add_u32 v4, 0x8000, v2')
    a('v_add_u32 v5, 0x8000, v3')
    a('s_mul_i32 s34, s28, 192')
    a('s_mul_i32 s35, s28, 224')
    for i in range(5):
        A0, A1, ST = 6 + 2 * i, 7 + 2 * i, 16 + i
        a(f'v_add_u32 v21, {64*i}, v0')
        a('v_mul_u32_u24 v22, 0xcccd, v21')
        a('v_lshrrev_b32 v22, 21, v22')
        a('v_mul_u32_u24 v23, 40, v22')
        a('v_sub_u32 v23, v21, v23')
        a('s_lshl_b32 s36, s24, 3')
        a('v_add_u32 v22, s36, v22')
        a('v_bfe_u32 v21, v22, 1, 1')
        a('v_bfe_u32 v24, v22, 3, 1')
        a('v_lshlrev_b32 v24, 1, v24')
        a('v_add_u32 v21, v21, v24')
        a('v_lshlrev_b32 v21, 1, v21')
        a('v_xor_b32 v23, v23, v21')
        a('v_lshlrev_b32 v24, 4, v23')
        a('v_add_u32 v25, s35, v24')
        a(f'v_subrev_u32 v26, {16*30 - 64}, v25')
        a('v_mov_b32 v27, s20')
        a('v_mov_b32 v28, s21')
        a('v_mov_b32 v29, 7168')
        a('v_cmp_gt_u32 vcc, 30, v23')
        a('s_nop 1')
        a(f'v_subrev_u32 v21, {16*20 - 64}, v25')
        a('v_cndmask_b32 v26, v26, v21, vcc')
        a('v_mov_b32 v21, s18')
        a('v_cndmask_b32 v27, v27, v21, vcc')
        a('v_mov_b32 v21, s19')
        a('v_cndmask_b32 v28, v28, v21, vcc')
        a('v_cmp_gt_u32 vcc, 20, v23')
        a('s_nop 1')
        a(f'v_subrev_u32 v21, {16*16}, v25')
        a('v_cndmask_b32 v26, v26, v21, vcc')
        a('v_mov_b32 v21, s20')
        a('v_cndmask_b32 v27, v27, v21, vcc')
        a('v_mov_b32 v21, s21')
        a('v_cndmask_b32 v28, v28, v21, vcc')
        a('v_cmp_gt_u32 vcc, 16, v23')
        a('s_nop 1')
        a(f'v_subrev_u32 v21, {16*12}, v25')
        a('v_cndmask_b32 v26, v26, v21, vcc')
        a('v_mov_b32 v21, s18')
        a('v_cndmask_b32 v27, v27, v21, vcc')
        a('v_mov_b32 v21, s19')
        a('v_cndmask_b32 v28, v28, v21, vcc')
        a('v_cmp_gt_u32 vcc, 12, v23')
        a('s_nop 1')
        a('v_add_u32 v21, s34, v24')
        a('v_cndmask_b32 v26, v26, v21, vcc')
        a('v_mov_b32 v21, s16')
        a('v_cndmask_b32 v27, v27, v21, vcc')
        a('v_mov_b32 v21, s17')
        a('v_cndmask_b32 v28, v28, v21, vcc')
        a('v_mov_b32 v21, 6144')
        a('v_cndmask_b32 v29, v29, v21, vcc')
        a('v_mul_lo_u32 v21, v22, v29')
        a('v_add_u32 v21, v21, v26')
        a(f'v_add_co_u32 v{A0}, vcc, v27, v21')
        a('s_nop 1')
        a(f'v_addc_co_u32 v{A1}, vcc, 0, v28, vcc')
        a(f'v_lshlrev_b32 v{ST}, 6, v29')
    a('s_lshl_b32 s38, s24, 12')
    a('s_mul_i32 s39, s24, 5120')
    a('v_and_b32 v24, 15, v0')
    a('v_lshrrev_b32 v25, 4, v0')
    a('s_lshl_b32 s35, s30, 6')
    a('v_add_u32 v26, s35, v24')
    a('v_lshlrev_b32 v26, 7, v26')
    a('v_lshrrev_b32 v27, 1, v24')
    for ks in range(2):
        a(f'v_add_u32 v28, {ks*4}, v25')
        a('v_xor_b32 v28, v28, v27')
        a('v_lshlrev_b32 v28, 4, v28')
        a(f'v_add_u32 v{21+ks}, v26, v28')
    a('v_lshlrev_b32 v26, 3, v25')
    a('v_lshrrev_b32 v27, 2, v24')
    a('v_add_u32 v26, v26, v27')
    a('v_mul_u32_u24 v26, 640, v26')
    a('v_and_b32 v27, 1, v24')
    a('v_lshlrev_b32 v27, 3, v27')
    a('v_add_u32 v26, v26, v27')
    a(f'v_add_u32 v26, {BOFF}, v26')
    a('v_bfe_u32 v27, v24, 3, 1')
    a('v_lshlrev_b32 v27, 1, v27')
    a('v_and_b32 v32, 1, v25')
    a('v_lshlrev_b32 v32, 2, v32')
    a('v_add_u32 v27, v27, v32')
    a('v_bfe_u32 v32, v24, 1, 1')
    a('s_lshl_b32 s35, s31, 1')
    a('s_mul_i32 s36, s31, 10')
    for j in range(4):
        a(f's_add_u32 s37, s35, {j}')
        a('s_and_b32 s37, s37, 3')
        a('s_lshl_b32 s37, s37, 1')
        a('v_add_u32 v33, s37, v32')
        a('v_xor_b32 v33, v33, v27')
        a('v_lshlrev_b32 v33, 4, v33')
        a(f's_add_u32 s37, s36, {j}')
        a('s_lshr_b32 s37, s37, 2')
        a('s_lshl_b32 s37, s37, 7')
        a('v_add_u32 v33, s37, v33')
        a(f'v_add_u32 v{28+j}, v26, v33')
    a(f'v_add_u32 v23, {STAGE}, v21')
    a(f'v_add_u32 v24, {STAGE}, v22')
    for j in range(4):
        a(f'v_add_u32 v{32+j}, {STAGE}, v{28+j}')
    XF = 36
    WF = [52, 72]
    ACC = 96
    for i in range(ACC, 256):
        a(f'v_mov_b32 v{i}, 0')
    a('s_mov_b32 s40, 0')

    def dma_one(stage, idx):
        if idx < 4:
            a(f's_add_u32 m0, s38, {stage*STAGE + idx*1024}')
            a('s_nop 0')
            a(f'buffer_load_dwordx4 v{2+idx}, s[{sA}:{sA+3}], s40 offen lds')
        else:
            i = idx - 4
            a(f's_add_u32 m0, s39, {stage*STAGE + BOFF + i*1024}')
            a('s_nop 0')
            a(f'global_load_lds_dwordx4 v[{6+2*i}:{7+2*i}], off')
            a(f'v_add_co_u32 v{6+2*i}, vcc, v{6+2*i}, v{16+i}')
            a('s_nop 1')
            a(f'v_addc_co_u32 v{7+2*i}, vcc, 0, v{7+2*i}, vcc')
        if idx == 8:
            a('s_add_u32 s40, s40, 128')

    def xreads(stage, ks):
        for mb in range(4):
            a(f'ds_read_b128 v[{XF+mb*4}:{XF+mb*4+3}], v{21+ks+2*stage} offset:{mb*2048}')

    def wreads(stage, ks, hb, st):
        for bb in range(5):
            b = hb * 5 + bb
            for half in range(2):
                r = WF[st] + bb * 4 + half * 2
                a(f'ds_read_b64_tr_b16 v[{r}:{r+1}], v{28+4*stage+(b&3)} offset:{(b>>2)*128 + (ks*32 + half*4)*640}')

    def mfmas(hb, st, dmas):
        n = 0
        for bb in range(5):
            b = hb * 5 + bb
            for mb in range(4):
                acc = ACC + (b * 4 + mb) * 4
                a(f'v_mfma_f32_16x16x32_bf16 v[{acc}:{acc+3}], v[{WF[st]+bb*4}:{WF[st]+bb*4+3}], v[{XF+mb*4}:{XF+mb*4+3}], v[{acc}:{acc+3}]')
                n += 1
                if n % 4 == 0 and dmas:
                    dmas.pop(0)()

    NSTEP = 16
    for idx in range(9):
        dma_one(0, idx)
    for s in range(NSTEP):
        stage = s & 1
        a('s_waitcnt vmcnt(0)')
        a('s_barrier')
        dm = []
        if s + 1 < NSTEP:
            dm = [(lambda idx=idx: dma_one(stage ^ 1, idx)) for idx in range(9)]
        xreads(stage, 0)
        wreads(stage, 0, 0, 0)
        a('s_waitcnt lgkmcnt(0)')
        wreads(stage, 0, 1, 1)
        mfmas(0, 0, dm)
        a('s_waitcnt lgkmcnt(0)')
        wreads(stage, 1, 0, 0)
        mfmas(1, 1, dm)
        xreads(stage, 1)
        a('s_waitcnt lgkmcnt(0)')
        wreads(stage, 1, 1, 1)
        mfmas(0, 0, None)
        a('s_waitcnt lgkmcnt(0)')
        mfmas(1, 1, None)
        assert not dm
    a('s_nop 15')
    srd_from(a, sO, 22, 2048 * LD_OH, OH_OFF)
    a('v_and_b32 v10, 15, v0')
    a('s_lshl_b32 s34, s27, 8')
    a('s_lshl_b32 s35, s30, 6')
    a('s_add_u32 s34, s34, s35')
    a('v_add_u32 v10, s34, v10')
    a('v_lshrrev_b32 v11, 4, v0')
    a('v_lshlrev_b32 v11, 3, v11')
    a('s_mov_b32 s36, %d' % LD_OH)
    a('v_mul_lo_u32 v12, v10, s36')
    a('v_add_u32 v12, v12, v11')
    a('s_mul_i32 s35, s28, 224')
    a('s_add_u32 s35, s35, 2048')
    a('v_add_u32 v12, s35, v12')

    def hstore(gb, ub, foff_bytes):
        for mb in range(4):
            g = ACC + (gb * 4 + mb) * 4
            u = ACC + (ub * 4 + mb) * 4
            for p in range(2):
                a(f'v_cvt_pk_bf16_f32 v14, v{g+2*p}, v{g+2*p+1}')
                a(f'v_cvt_pk_bf16_f32 v15, v{u+2*p}, v{u+2*p+1}')
                a('v_lshlrev_b32 v16, 16, v14')
                a('v_and_b32 v17, 0xffff0000, v14')
                a('v_lshlrev_b32 v18, 16, v15')
                a('v_and_b32 v19, 0xffff0000, v15')
                a('v_max_f32 v16, 0, v16')
                a('v_max_f32 v17, 0, v17')
                a('v_mul_f32 v16, v16, v18')
                a('v_mul_f32 v17, v17, v19')
                a(f'v_cvt_pk_bf16_f32 v{20+p}, v16, v17')
            a(f'v_add_u32 v13, {mb*16*LD_OH}, v12')
            a(f'buffer_store_dwordx2 v[20:21], v13, s[{sO}:{sO+3}], 0 offen offset:{foff_bytes}')
            a('s_nop 0')

    a('s_cmp_eq_u32 s31, 0')
    a('s_cbranch_scc0 G1_epi1')
    hstore(6, 8, 0)
    hstore(7, 9, 32)
    srd_from(a, sO, 22, 2048 * LD_QKV, QKV_OFF)
    a('s_mov_b32 s36, %d' % LD_QKV)
    a('v_mul_lo_u32 v12, v10, s36')
    a('v_add_u32 v12, v12, v11')
    a('s_mul_i32 s35, s28, 192')
    a('v_add_u32 v12, s35, v12')
    for b in range(6):
        for mb in range(4):
            q = ACC + (b * 4 + mb) * 4
            a(f'v_cvt_pk_bf16_f32 v20, v{q}, v{q+1}')
            a(f'v_cvt_pk_bf16_f32 v21, v{q+2}, v{q+3}')
            a(f'v_add_u32 v13, {mb*16*LD_QKV}, v12')
            a(f'buffer_store_dwordx2 v[20:21], v13, s[{sO}:{sO+3}], 0 offen offset:{b*32}')
            a('s_nop 0')
    a('s_branch G1_done')
    a.label('G1_epi1')
    for bb in range(5):
        hstore(bb, 5 + bb, 64 + bb * 32)
    a.label('G1_done')
    a('s_endpgm')
    return kernel_desc(name, 256, 48)


class LdsSB:
    def __init__(self, a):
        self.a = a
        self.q = []
    def issue(self, tag):
        self.q.append(tag)
        assert len(self.q) <= 15
    def need(self, tags):
        last = -1
        for i, t in enumerate(self.q):
            if t in tags:
                last = i
        if last < 0:
            return
        n = len(self.q) - 1 - last
        self.a(f's_waitcnt lgkmcnt({n})')
        self.q = self.q[last + 1:]


def gen_gemm1v3(a):
    name = 'gemm1_kernel'
    kernel_header(a, name)
    STAGE = 36864
    BOFF = 16384
    NST = 4
    sA, sO = 4, 12
    a('s_cmp_ge_u32 s2, 256')
    a('s_cbranch_scc1 G1_done')
    a('s_load_dwordx2 s[16:17], s[0:1], 8')
    a('s_load_dwordx2 s[18:19], s[0:1], 32')
    a('s_load_dwordx2 s[20:21], s[0:1], 40')
    a('s_load_dwordx2 s[22:23], s[0:1], 72')
    a('v_lshrrev_b32 v1, 6, v0')
    a('v_and_b32 v0, 63, v0')
    a('s_nop 0')
    a('v_readfirstlane_b32 s24, v1')
    a('s_and_b32 s25, s2, 7')
    a('s_lshr_b32 s26, s2, 3')
    a('s_and_b32 s27, s26, 7')
    a('s_lshr_b32 s28, s26, 3')
    a('s_lshl_b32 s29, s25, 2')
    a('s_add_u32 s28, s28, s29')
    a('s_lshr_b32 s30, s24, 1')
    a('s_and_b32 s31, s24, 1')
    a('s_waitcnt lgkmcnt(0)')
    srd_from(a, sA, 22, 2048 * 2048, XN_OFF)
    a('v_lshrrev_b32 v10, 2, v0')
    a('v_and_b32 v11, 3, v0')
    a('v_lshrrev_b32 v12, 4, v0')
    a('v_sub_u32 v12, 0, v12')
    a('v_and_b32 v12, 3, v12')
    a('v_xor_b32 v11, v11, v12')
    a('v_lshlrev_b32 v11, 4, v11')
    a('s_lshl_b32 s34, s27, 8')
    a('s_lshl_b32 s35, s24, 5')
    a('s_add_u32 s34, s34, s35')
    a('v_add_u32 v13, s34, v10')
    a('v_lshlrev_b32 v13, 11, v13')
    a('v_add_u32 v2, v13, v11')
    a('v_add_u32 v3, 0x8000, v2')
    a('s_mul_i32 s34, s28, 192')
    a('s_mul_i32 s35, s28, 224')
    for i in range(3):
        A0, A1, ST = 6 + 2 * i, 7 + 2 * i, 16 + i
        a('s_lshl_b32 s36, s24, 6')
        a(f's_add_u32 s36, s36, {512*i}')
        a('v_add_u32 v21, s36, v0')
        a('v_mul_u32_u24 v22, 0xcccd, v21')
        a('v_lshrrev_b32 v22, 21, v22')
        a('v_mul_u32_u24 v23, 40, v22')
        a('v_sub_u32 v23, v21, v23')
        a('v_bfe_u32 v21, v22, 1, 1')
        a('v_bfe_u32 v24, v22, 3, 1')
        a('v_lshlrev_b32 v24, 1, v24')
        a('v_add_u32 v21, v21, v24')
        a('v_lshlrev_b32 v21, 1, v21')
        a('v_xor_b32 v23, v23, v21')
        a('v_lshlrev_b32 v24, 4, v23')
        a('v_add_u32 v25, s35, v24')
        a(f'v_subrev_u32 v26, {16*30 - 64}, v25')
        a('v_mov_b32 v27, s20')
        a('v_mov_b32 v28, s21')
        a('v_mov_b32 v29, 7168')
        for (lim, sub, lo, hi) in ((30, 16*20 - 64, 18, 19), (20, 16*16, 20, 21), (16, 16*12, 18, 19)):
            a(f'v_cmp_gt_u32 vcc, {lim}, v23')
            a(f'v_subrev_u32 v21, {sub}, v25')
            a('s_nop 0')
            a('v_cndmask_b32 v26, v26, v21, vcc')
            a(f'v_mov_b32 v21, s{lo}')
            a('v_cndmask_b32 v27, v27, v21, vcc')
            a(f'v_mov_b32 v21, s{hi}')
            a('v_cndmask_b32 v28, v28, v21, vcc')
        a('v_cmp_gt_u32 vcc, 12, v23')
        a('v_add_u32 v21, s34, v24')
        a('s_nop 0')
        a('v_cndmask_b32 v26, v26, v21, vcc')
        a('v_mov_b32 v21, s16')
        a('v_cndmask_b32 v27, v27, v21, vcc')
        a('v_mov_b32 v21, s17')
        a('v_cndmask_b32 v28, v28, v21, vcc')
        a('v_mov_b32 v21, 6144')
        a('v_cndmask_b32 v29, v29, v21, vcc')
        a('v_mul_lo_u32 v21, v22, v29')
        a('v_add_u32 v21, v21, v26')
        a(f'v_add_co_u32 v{A0}, vcc, v27, v21')
        a('s_nop 1')
        a(f'v_addc_co_u32 v{A1}, vcc, 0, v28, vcc')
        a(f'v_lshlrev_b32 v{ST}, 5, v29')
    a('s_lshl_b32 s38, s24, 11')
    a('s_lshl_b32 s39, s24, 10')
    a('v_and_b32 v24, 15, v0')
    a('v_lshrrev_b32 v25, 4, v0')
    a('s_lshl_b32 s35, s30, 6')
    a('v_add_u32 v26, s35, v24')
    a('v_lshlrev_b32 v26, 6, v26')
    a('v_lshrrev_b32 v27, 2, v24')
    a('v_sub_u32 v27, 0, v27')
    a('v_and_b32 v27, 3, v27')
    a('v_xor_b32 v27, v27, v25')
    a('v_lshlrev_b32 v27, 4, v27')
    a('v_add_u32 v21, v26, v27')
    a('v_lshlrev_b32 v26, 3, v25')
    a('v_lshrrev_b32 v27, 2, v24')
    a('v_add_u32 v26, v26, v27')
    a('v_mul_u32_u24 v26, 640, v26')
    a('v_and_b32 v27, 1, v24')
    a('v_lshlrev_b32 v27, 3, v27')
    a('v_add_u32 v26, v26, v27')
    a(f'v_add_u32 v26, {BOFF}, v26')
    a('v_bfe_u32 v27, v24, 3, 1')
    a('v_lshlrev_b32 v27, 1, v27')
    a('v_and_b32 v32, 1, v25')
    a('v_lshlrev_b32 v32, 2, v32')
    a('v_add_u32 v27, v27, v32')
    a('v_bfe_u32 v32, v24, 1, 1')
    a('s_lshl_b32 s35, s31, 1')
    a('s_mul_i32 s36, s31, 10')
    for j in range(4):
        a(f's_add_u32 s37, s35, {j}')
        a('s_and_b32 s37, s37, 3')
        a('s_lshl_b32 s37, s37, 1')
        a('v_add_u32 v33, s37, v32')
        a('v_xor_b32 v33, v33, v27')
        a('v_lshlrev_b32 v33, 4, v33')
        a(f's_add_u32 s37, s36, {j}')
        a('s_lshr_b32 s37, s37, 2')
        a('s_lshl_b32 s37, s37, 7')
        a('v_add_u32 v33, s37, v33')
        a(f'v_add_u32 v{28+j}, v26, v33')
    a(f'v_add_u32 v22, {2*STAGE}, v21')
    for j in range(4):
        a(f'v_add_u32 v{32+j}, {2*STAGE}, v{28+j}')
    XF = [36, 52]
    WR = 68
    RING = 6
    PF = 4
    ACC = 96
    for i in range(ACC, 256):
        a(f'v_mov_b32 v{i}, 0')
    a('s_mov_b32 s40, 0')

    def dma_one(stage, idx):
        if P.get('nodma'):
            return
        if idx < 2:
            a(f's_add_u32 m0, s38, {stage*STAGE + idx*1024}')
            a('s_nop 0')
            a(f'buffer_load_dwordx4 v{2+idx}, s[{sA}:{sA+3}], s40 offen lds')
            if idx == 1:
                a('s_add_u32 s40, s40, 64')
        else:
            i = idx - 2
            if i == 2:
                a('s_cmp_ge_u32 s24, 4')
                a(f's_cbranch_scc1 G1_sk{dma_one.n}')
            a(f's_add_u32 m0, s39, {stage*STAGE + BOFF + i*8192}')
            a('s_nop 0')
            a(f'global_load_lds_dwordx4 v[{6+2*i}:{7+2*i}], off')
            a(f'v_add_co_u32 v{6+2*i}, vcc, v{6+2*i}, v{16+i}')
            a('s_nop 1')
            a(f'v_addc_co_u32 v{7+2*i}, vcc, 0, v{7+2*i}, vcc')
            if i == 2:
                a.label(f'G1_sk{dma_one.n}')
                dma_one.n += 1
    dma_one.n = 0

    sb = LdsSB(a)
    NSTEP = 32

    def xread(s, mb):
        stage = s % NST
        a(f'ds_read_b128 v[{XF[s&1]+mb*4}:{XF[s&1]+mb*4+3}], v{21+(stage>>1)} offset:{(stage&1)*STAGE + mb*1024}')
        sb.issue(('x', s, mb))

    def wread(n):
        s, b = divmod(n, 10)
        stage = s % NST
        r = WR + (n % RING) * 4
        for half in range(2):
            a(f'ds_read_b64_tr_b16 v[{r+half*2}:{r+half*2+1}], v{28+4*(stage>>1)+(b&3)} offset:{(stage&1)*STAGE + (b>>2)*128 + half*4*640}')
            sb.issue(('w', n))

    for s in range(3):
        for idx in range(5):
            dma_one(s, idx)
    a('s_waitcnt vmcnt(8)')
    a('s_barrier')
    for mb in range(4):
        xread(0, mb)
    for n in range(PF):
        wread(n)
    NSLOT = NSTEP * 10
    for n in range(NSLOT):
        s, b = divmod(n, 10)
        if b == 0:
            if s + 1 < NSTEP:
                newer = 4 if s + 2 < NSTEP else 0
                a(f's_waitcnt vmcnt({newer})')
                a('s_barrier')
        if n + PF < NSLOT:
            wread(n + PF)
        if 5 <= b <= 8 and s + 1 < NSTEP:
            xread(s + 1, b - 5)
        sb.need([('w', n)] + [('x', s, mb) for mb in range(4)])
        r = WR + (n % RING) * 4
        for mb in range(4):
            acc = ACC + (b * 4 + mb) * 4
            if not P.get('nomfma'):
                a(f'v_mfma_f32_16x16x32_bf16 v[{acc}:{acc+3}], v[{r}:{r+3}], v[{XF[s&1]+mb*4}:{XF[s&1]+mb*4+3}], v[{acc}:{acc+3}]')
        if b < 5 and s + 3 < NSTEP:
            dma_one((s + 3) % NST, b)
    a('s_nop 15')
    RS = 432
    a('s_barrier')
    a('v_and_b32 v10, 15, v0')
    a('v_lshrrev_b32 v11, 4, v0')
    a('s_lshl_b32 s35, s30, 6')
    a('v_add_u32 v10, s35, v10')
    a(f'v_mul_u32_u24 v12, {RS}, v10')
    a('v_lshlrev_b32 v11, 3, v11')
    a('v_add_u32 v12, v12, v11')

    def hcalc(gb, ub, mb):
        g_ = ACC + (gb * 4 + mb) * 4
        u_ = ACC + (ub * 4 + mb) * 4
        for p in range(2):
            a(f'v_cvt_pk_bf16_f32 v14, v{g_+2*p}, v{g_+2*p+1}')
            a(f'v_cvt_pk_bf16_f32 v15, v{u_+2*p}, v{u_+2*p+1}')
            a('v_lshlrev_b32 v16, 16, v14')
            a('v_and_b32 v17, 0xffff0000, v14')
            a('v_lshlrev_b32 v18, 16, v15')
            a('v_and_b32 v19, 0xffff0000, v15')
            a('v_max_f32 v16, 0, v16')
            a('v_max_f32 v17, 0, v17')
            a('v_mul_f32 v16, v16, v18')
            a('v_mul_f32 v17, v17, v19')
            a(f'v_cvt_pk_bf16_f32 v{20+p}, v16, v17')

    a('s_cmp_eq_u32 s31, 0')
    a('s_cbranch_scc0 G1_epi1')
    for b in range(6):
        for mb in range(4):
            q = ACC + (b * 4 + mb) * 4
            a(f'v_cvt_pk_bf16_f32 v20, v{q}, v{q+1}')
            a(f'v_cvt_pk_bf16_f32 v21, v{q+2}, v{q+3}')
            a(f'ds_write_b64 v12, v[20:21] offset:{mb*16*RS + b*32}')
    for bb in range(2):
        for mb in range(4):
            hcalc(6 + bb, 8 + bb, mb)
            a(f'ds_write_b64 v12, v[20:21] offset:{mb*16*RS + 192 + bb*32}')
    a('s_branch G1_epi2')
    a.label('G1_epi1')
    for bb in range(5):
        for mb in range(4):
            hcalc(bb, 5 + bb, mb)
            a(f'ds_write_b64 v12, v[20:21] offset:{mb*16*RS + 192 + 64 + bb*32}')
    a.label('G1_epi2')
    a('s_waitcnt lgkmcnt(0)')
    a('s_barrier')
    srd_from(a, sO, 22, 64 << 20)
    a('s_lshl_b32 s34, s27, 8')
    a('s_lshl_b32 s35, s24, 5')
    a('s_add_u32 s34, s34, s35')
    a('s_mul_i32 s36, s28, 192')
    a(f's_add_u32 s36, s36, {QKV_OFF}')
    a('s_mul_i32 s37, s28, 224')
    a(f's_add_u32 s37, s37, {OH_OFF + 2048}')
    for k in range(13):
        a(f'v_add_u32 v21, {64*k}, v0')
        a('v_mul_u32_u24 v22, 0x9d8a, v21')
        a('v_lshrrev_b32 v22, 20, v22')
        a('v_mul_u32_u24 v23, 26, v22')
        a('v_sub_u32 v23, v21, v23')
        a('v_add_u32 v24, s35, v22')
        a(f'v_mul_u32_u24 v24, {RS}, v24')
        a('v_lshlrev_b32 v25, 4, v23')
        a('v_add_u32 v24, v24, v25')
        R = 96 + (k & 3) * 4
        a(f'ds_read_b128 v[{R}:{R+3}], v24')
        a('v_add_u32 v22, s34, v22')
        a(f'v_mul_u32_u24 v26, {LD_QKV}, v22')
        a('v_add_u32 v26, s36, v26')
        a(f'v_mul_u32_u24 v27, {LD_OH}, v22')
        a('v_add_u32 v27, s37, v27')
        a('v_subrev_u32 v27, 192, v27')
        a('v_cmp_gt_u32 vcc, 12, v23')
        a('s_nop 1')
        a('v_cndmask_b32 v26, v27, v26, vcc')
        a(f'v_add_u32 v{40+k}, v26, v25')
        if (k & 3) == 3 or k == 12:
            a('s_waitcnt lgkmcnt(0)')
            for kk in range(k - (k & 3), k + 1):
                R = 96 + (kk & 3) * 4
                a(f'buffer_store_dwordx4 v[{R}:{R+3}], v{40+kk}, s[{sO}:{sO+3}], 0 offen')
            a('s_nop 1')
    a.label('G1_done')
    a('s_endpgm')
    return kernel_desc(name, 256, 48)


def main():
    a = A()
    launches = []
    descs = []
    head = open(f'cdna_kernels/{NAME}.s.ref').read().split('\n')
    hdr = [l for l in head if l.startswith(';') and '@launch' not in l and 'Override launch' not in l and 'grid=ceil' not in l]
    which = sys.argv[1:] or ['ln', 'gemm1v3', 'attn', 'gemm2']
    body = A()
    if 'ln' in which:
        launches.append('; @launch kernel=ln_kernel grid=(512,1,1) block=(256,1,1) lds=0')
        descs.append(gen_ln(body))
    if 'gemm1v3' in which:
        launches.append('; @launch kernel=gemm1_kernel grid=(256,1,1) block=(512,1,1) lds=147456')
        descs.append(gen_gemm1v3(body))
    if 'gemm1v2' in which:
        launches.append('; @launch kernel=gemm1_kernel grid=(256,1,1) block=(512,1,1) lds=147456')
        descs.append(gen_gemm1v2(body))
    if 'gemm1' in which:
        launches.append(f'; @launch kernel=gemm1_kernel grid=(1280,1,1) block=(256,1,1) lds={32768*P["g1_nst"]}')
        descs.append(gen_gemm1(body))
    if 'attn' in which:
        launches.append('; @launch kernel=attn_kernel grid=(1024,1,1) block=(256,1,1) lds=40960')
        descs.append(gen_attn(body))
    if 'gemm2' in which:
        launches.append('; @launch kernel=gemm2_kernel grid=(256,1,1) block=(256,1,1) lds=98304')
        descs.append(gen_gemm2(body))
    out = '\n'.join(hdr) + '\n' + '\n'.join(launches) + '\n'
    out += '.amdgcn_target "amdgcn-amd-amdhsa--gfx950"\n.text\n'
    out += body.text()
    out += '.section .rodata,"a"\n.p2align 6\n' + '.p2align 6\n'.join(descs)
    open(os.environ.get('OUT', f'cdna_kernels/{NAME}.s'), 'w').write(out)


main()
```

```python
import sys

NAME = 'parallel_sum__sliding_block__glu_gated_reglu__prompt'
XN_OFF, QKV_OFF, OH_OFF = 0, 4 << 20, 16 << 20
LD_OH = 4608 * 2
LD_QKV = 3072 * 2


P = {'g1_nst': 2}
import os, json
if os.environ.get('GP'):
    P.update(json.loads(os.environ['GP']))

class A:
    def __init__(self):
        self.lines = []

    def __call__(self, s):
        for l in s.strip('\n').split('\n'):
            self.lines.append('    ' + l.strip())

    def label(self, s):
        self.lines.append(s + ':')

    def raw(self, s):
        self.lines.append(s)

    def text(self):
        return '\n'.join(self.lines) + '\n'


def kernel_header(a, name):
    a.raw(f'.globl {name}')
    a.raw('.p2align 8')
    a.raw(f'.type {name},@function')
    a.label(name)


def kernel_desc(name, vgpr, sgpr, accum=None, wgy=False):
    accum = accum or ((vgpr + 3) // 4 * 4)
    return f'''.amdhsa_kernel {name}
  .amdhsa_next_free_vgpr {vgpr}
  .amdhsa_next_free_sgpr {sgpr}
  .amdhsa_accum_offset {accum}
  .amdhsa_group_segment_fixed_size 0
  .amdhsa_kernarg_size 80
  .amdhsa_user_sgpr_count 2
  .amdhsa_user_sgpr_kernarg_segment_ptr 1
  .amdhsa_system_sgpr_workgroup_id_x 1
.end_amdhsa_kernel
'''


def srd_from(a, dst, ptr, nbytes, off=0):
    if off:
        a(f's_add_u32 s{dst}, s{ptr}, {off}')
        a(f's_addc_u32 s{dst+1}, s{ptr+1}, 0')
    else:
        a(f's_mov_b32 s{dst}, s{ptr}')
        a(f's_mov_b32 s{dst+1}, s{ptr+1}')
    a(f's_mov_b32 s{dst+2}, {nbytes}')
    a(f's_mov_b32 s{dst+3}, 0x00020000')


def wave_sum(a, v, tmp, sdst):
    for off in (0x041F, 0x081F, 0x101F, 0x201F, 0x401F):
        a(f'ds_swizzle_b32 v{tmp}, v{v} offset:{off}')
        a('s_waitcnt lgkmcnt(0)')
        a(f'v_add_f32 v{v}, v{v}, v{tmp}')
    a('s_nop 0')
    a(f'v_readlane_b32 s{sdst}, v{v}, 32')
    a('s_nop 1')
    a(f'v_add_f32 v{v}, s{sdst}, v{v}')
    a('s_nop 0')
    a(f'v_readlane_b32 s{sdst}, v{v}, 0')
    a('s_nop 3')


def gen_ln(a):
    name = 'ln_kernel'
    kernel_header(a, name)
    a('s_cmp_ge_u32 s2, 512')
    a('s_cbranch_scc1 LN_pf' if P.get('pf') else 's_cbranch_scc1 LN_done')
    a('s_load_dwordx2 s[4:5], s[0:1], 0')
    a('s_load_dwordx2 s[6:7], s[0:1], 72')
    a('v_lshrrev_b32 v1, 6, v0')
    a('v_and_b32 v2, 63, v0')
    a('s_lshl_b32 s3, s2, 2')
    a('v_add_u32 v1, s3, v1')
    a('v_lshlrev_b32 v1, 11, v1')
    a('v_lshlrev_b32 v2, 5, v2')
    a('v_add_u32 v1, v1, v2')
    a('s_waitcnt lgkmcnt(0)')
    srd_from(a, 8, 4, 2048 * 2048)
    srd_from(a, 12, 6, 2048 * 2048, XN_OFF)
    a('buffer_load_dwordx4 v[4:7], v1, s[8:11], 0 offen')
    a('buffer_load_dwordx4 v[8:11], v1, s[8:11], 0 offen offset:16')
    a('s_waitcnt vmcnt(0)')
    for i in range(8):
        a(f'v_lshlrev_b32 v{16+2*i}, 16, v{4+i}')
        a(f'v_and_b32 v{17+2*i}, 0xffff0000, v{4+i}')
    a('v_add_f32 v12, v16, v17')
    for i in range(18, 32):
        a(f'v_add_f32 v12, v12, v{i}')
    wave_sum(a, 12, 13, 20)
    a('v_mov_b32 v14, 0x3a800000')
    a('v_mul_f32 v14, s20, v14')
    a('v_mov_b32 v12, 0')
    for i in range(16, 32):
        a(f'v_sub_f32 v13, v{i}, v14')
        a(f'v_fmac_f32 v12, v13, v13')
    wave_sum(a, 12, 13, 21)
    a('v_mov_b32 v15, 0x3a800000')
    a('v_mul_f32 v15, s21, v15')
    a('v_cvt_pk_bf16_f32 v12, v14, v15')
    a('v_lshlrev_b32 v14, 16, v12')
    a('v_and_b32 v15, 0xffff0000, v12')
    a('v_mov_b32 v13, 0x3727c5ac')
    a('v_add_f32 v15, v15, v13')
    a('v_cvt_pk_bf16_f32 v15, v15, v15')
    a('v_lshlrev_b32 v15, 16, v15')
    a('v_sqrt_f32 v15, v15')
    a('s_nop 0')
    a('v_cvt_pk_bf16_f32 v15, v15, v15')
    a('v_lshlrev_b32 v15, 16, v15')
    a('v_rcp_f32 v15, v15')
    a('s_nop 0')
    for i in range(8):
        a(f'v_sub_f32 v{16+2*i}, v{16+2*i}, v14')
        a(f'v_sub_f32 v{17+2*i}, v{17+2*i}, v14')
        a(f'v_cvt_pk_bf16_f32 v12, v{16+2*i}, v{17+2*i}')
        a(f'v_lshlrev_b32 v{16+2*i}, 16, v12')
        a(f'v_and_b32 v{17+2*i}, 0xffff0000, v12')
        a(f'v_mul_f32 v{16+2*i}, v{16+2*i}, v15')
        a(f'v_mul_f32 v{17+2*i}, v{17+2*i}, v15')
        a(f'v_cvt_pk_bf16_f32 v{4+i}, v{16+2*i}, v{17+2*i}')
    a('buffer_store_dwordx4 v[4:7], v1, s[12:15], 0 offen')
    a('buffer_store_dwordx4 v[8:11], v1, s[12:15], 0 offen offset:16')
    a('s_branch LN_done')
    if P.get('pf'):
        a.label('LN_pf')
        a('s_sub_u32 s3, s2, 512')
        a('s_cmp_ge_u32 s3, 232')
        a('s_cbranch_scc1 LN_done')
        a('s_mov_b32 s4, 8')
        a('s_cmp_ge_u32 s3, 48')
        a('s_cselect_b32 s4, 16, s4')
        a('s_cselect_b32 s5, 48, 0')
        a('s_cmp_ge_u32 s3, 64')
        a('s_cselect_b32 s4, 32, s4')
        a('s_cselect_b32 s5, 64, s5')
        a('s_cmp_ge_u32 s3, 120')
        a('s_cselect_b32 s4, 40, s4')
        a('s_cselect_b32 s5, 120, s5')
        a('s_cmp_ge_u32 s3, 176')
        a('s_cselect_b32 s4, 48, s4')
        a('s_cselect_b32 s5, 176, s5')
        a('s_sub_u32 s3, s3, s5')
        a('s_load_dwordx2 s[6:7], s[0:1], s4')
        a('s_lshl_b32 s3, s3, 17')
        a('s_waitcnt lgkmcnt(0)')
        a('s_mov_b32 s8, s6')
        a('s_mov_b32 s9, s7')
        a('s_mov_b32 s10, 7340032')
        a('s_mov_b32 s11, 0x00020000')
        a('v_lshlrev_b32 v1, 4, v0')
        a('v_add_u32 v1, s3, v1')
        for k in range(32):
            a(f'buffer_load_dwordx4 v[{4+(k&3)*4}:{7+(k&3)*4}], v1, s[8:11], 0 offen')
            if k < 31:
                a('v_add_u32 v1, 4096, v1')
        a('s_waitcnt vmcnt(0)')
    a.label('LN_done')
    a('s_endpgm')
    return kernel_desc(name, 32, 32)


def gen_gemm1(a):
    name = 'gemm1_kernel'
    kernel_header(a, name)
    STAGE = 32768
    sA, sB, sO = 4, 8, 12
    a('s_cmp_ge_u32 s2, 1280')
    a('s_cbranch_scc1 G1_done')
    a('s_load_dwordx2 s[16:17], s[0:1], 8')
    a('s_load_dwordx2 s[18:19], s[0:1], 32')
    a('s_load_dwordx2 s[20:21], s[0:1], 40')
    a('s_load_dwordx2 s[22:23], s[0:1], 72')
    a('v_lshrrev_b32 v1, 6, v0')
    a('v_and_b32 v0, 63, v0')
    a('s_nop 0')
    a('v_readfirstlane_b32 s24, v1')
    a('s_and_b32 s25, s2, 7')
    a('s_lshr_b32 s26, s2, 3')
    a('s_and_b32 s27, s26, 15')
    a('s_lshr_b32 s28, s26, 4')
    a('s_mul_i32 s29, s25, 10')
    a('s_add_u32 s28, s28, s29')
    a('s_lshr_b32 s30, s24, 1')
    a('s_and_b32 s31, s24, 1')
    a('s_waitcnt lgkmcnt(0)')
    srd_from(a, sA, 22, 2048 * 2048, XN_OFF)
    a('s_cmp_lt_u32 s28, 24')
    a('s_cbranch_scc0 G1_ffn')
    srd_from(a, sB, 16, 1024 * 6144)
    a('s_mov_b32 s32, 6144')
    a('s_lshl_b32 s33, s28, 8')
    a('s_lshl_b32 s34, s30, 7')
    a('s_add_u32 s33, s33, s34')
    a('s_branch G1_bdone')
    a.label('G1_ffn')
    a('s_cmp_eq_u32 s30, 0')
    a('s_cselect_b32 s8, s18, s20')
    a('s_cselect_b32 s9, s19, s21')
    a('s_mov_b32 s10, 7340032')
    a('s_mov_b32 s11, 0x00020000')
    a('s_mov_b32 s32, 7168')
    a('s_sub_u32 s33, s28, 24')
    a('s_lshl_b32 s33, s33, 7')
    a.label('G1_bdone')
    a('v_lshrrev_b32 v10, 3, v0')
    a('v_and_b32 v11, 7, v0')
    a('v_lshrrev_b32 v12, 4, v0')
    a('s_lshl_b32 s34, s27, 7')
    a('s_lshl_b32 s35, s24, 5')
    a('s_add_u32 s34, s34, s35')
    a('v_add_u32 v13, s34, v10')
    a('v_lshlrev_b32 v13, 11, v13')
    a('v_xor_b32 v14, v11, v12')
    a('v_lshlrev_b32 v14, 4, v14')
    a('v_xor_b32 v15, 4, v11')
    a('v_xor_b32 v15, v15, v12')
    a('v_lshlrev_b32 v15, 4, v15')
    a('v_add_u32 v2, v13, v14')
    a('v_add_u32 v3, v13, v15')
    a('v_add_u32 v3, 0x4000, v3')
    a('v_add_u32 v4, 0x8000, v2')
    a('v_add_u32 v5, 0x8000, v3')
    if P.get('seg64'):
        a('v_lshrrev_b32 v13, 2, v0')
        a('v_add_u32 v13, s34, v13')
        a('v_lshlrev_b32 v13, 11, v13')
        a('v_and_b32 v14, 3, v0')
        a('v_lshlrev_b32 v14, 4, v14')
        a('v_add_u32 v2, v13, v14')
        a('v_add_u32 v3, 64, v2')
        a('v_add_u32 v4, 0x8000, v2')
        a('v_add_u32 v5, 0x8000, v3')
    if P.get('contigA'):
        a('v_lshlrev_b32 v2, 4, v0')
        a('s_lshl_b32 s35, s24, 12')
        a('v_add_u32 v2, s35, v2')
        a('s_lshl_b32 s35, s27, 18')
        a('v_add_u32 v2, s35, v2')
        a('v_add_u32 v3, 1024, v2')
        a('v_add_u32 v4, 2048, v2')
        a('v_add_u32 v5, 3072, v2')
    a('s_lshl_b32 s35, s31, 5')
    a('v_add_u32 v13, s35, v10')
    a('v_mul_lo_u32 v13, v13, s32')
    a('v_and_b32 v14, 1, v12')
    a('v_lshlrev_b32 v14, 2, v14')
    a('v_xor_b32 v14, v14, v11')
    a('v_lshlrev_b32 v14, 4, v14')
    a('v_add_u32 v13, v13, v14')
    a('v_add_u32 v6, s33, v13')
    a('s_lshl_b32 s36, s32, 3')
    a('v_add_u32 v7, s36, v6')
    a('v_add_u32 v8, s36, v7')
    a('v_add_u32 v9, s36, v8')
    a('s_lshl_b32 s37, s32, 6')
    a('s_lshl_b32 s38, s24, 12')
    a('v_and_b32 v10, 31, v0')
    a('s_lshl_b32 s35, s30, 6')
    a('v_add_u32 v10, s35, v10')
    a('v_lshrrev_b32 v11, 1, v10')
    a('v_and_b32 v11, 7, v11')
    a('v_lshrrev_b32 v12, 5, v0')
    a('v_lshlrev_b32 v10, 7, v10')
    for ks in range(4):
        a(f'v_add_u32 v13, {ks*2}, v12')
        a('v_xor_b32 v13, v13, v11')
        a('v_lshlrev_b32 v13, 4, v13')
        a(f'v_add_u32 v{16+ks}, v10, v13')
    a('v_lshrrev_b32 v10, 4, v0')
    a('v_and_b32 v11, 15, v0')
    a('v_lshrrev_b32 v12, 1, v10')
    a('v_lshlrev_b32 v12, 3, v12')
    a('v_lshrrev_b32 v13, 2, v11')
    a('v_add_u32 v12, v12, v13')
    a('v_lshlrev_b32 v12, 7, v12')
    a('v_and_b32 v13, 1, v10')
    a('v_lshlrev_b32 v13, 1, v13')
    a('v_bfe_u32 v14, v11, 1, 1')
    a('v_add_u32 v13, v13, v14')
    a('s_lshl_b32 s35, s31, 2')
    a('v_add_u32 v13, s35, v13')
    a('v_bfe_u32 v14, v11, 3, 1')
    a('v_lshlrev_b32 v14, 2, v14')
    a('v_xor_b32 v13, v13, v14')
    a('v_lshlrev_b32 v13, 4, v13')
    a('v_add_u32 v12, v12, v13')
    a('v_and_b32 v13, 1, v11')
    a('v_lshlrev_b32 v13, 3, v13')
    a('v_add_u32 v12, v12, v13')
    a('v_add_u32 v20, 16384, v12')
    for i in range(64, 128):
        a(f'v_mov_b32 v{i}, 0')
    a('s_mov_b32 s40, 0')
    a('s_mov_b32 s41, 0')

    NST = P['g1_nst']
    PD = NST - 1
    NSTEP = 16

    def dma_one(stage, idx):
        if idx < 4:
            a(f's_add_u32 m0, s38, {stage*STAGE + idx*1024}')
            a('s_nop 0')
            if P.get('vgprload'):
                a(f'buffer_load_dwordx4 v[{96+idx*4}:{99+idx*4}], v{2+idx}, s[{sA}:{sA+3}], s40 offen')
            else:
                a(f'buffer_load_dwordx4 v{2+idx}, s[{sA}:{sA+3}], s40 offen lds')
        else:
            i = idx - 4
            a(f's_add_u32 m0, s38, {stage*STAGE + 16384 + i*1024}')
            a('s_nop 0')
            if P.get('vgprload'):
                a(f'buffer_load_dwordx4 v[{96+idx*4}:{99+idx*4}], v{6+i}, s[{sB}:{sB+3}], s41 offen')
            else:
                a(f'buffer_load_dwordx4 v{6+i}, s[{sB}:{sB+3}], s41 offen lds')
        if idx == 7:
            a('s_add_u32 s40, s40, %d' % (16384 if P.get('contigA') else 128))
            a('s_add_u32 s41, s41, s37')

    addr_hi = {}
    def reads(stage, ks, st):
        if P.get('noreads'):
            return
        base = 32 + st * 16
        off = stage * STAGE
        xa, wa = 16 + ks, 20
        if off >= 65536 - 8192:
            xa, wa = 24 + ks, 28
            off -= 65536
            off += 65536
        for mb in range(2):
            o = stage*STAGE + mb*4096
            if stage >= 2:
                a(f'ds_read_b128 v[{base+mb*4}:{base+mb*4+3}], v{24+ks} offset:{o - 65536}')
            else:
                a(f'ds_read_b128 v[{base+mb*4}:{base+mb*4+3}], v{16+ks} offset:{o}')
        for t in range(2):
            for half in range(2):
                r = base + 8 + t * 4 + half * 2
                o = stage*STAGE + t*8192 + ks*2048 + half*512
                if stage >= 2:
                    a(f'ds_read_b64_tr_b16 v[{r}:{r+1}], v28 offset:{o - 65536}')
                else:
                    a(f'ds_read_b64_tr_b16 v[{r}:{r+1}], v20 offset:{o}')

    for ks in range(4):
        a(f'v_add_u32 v{24+ks}, 0x10000, v{16+ks}')
    a('v_add_u32 v28, 0x10000, v20')

    for s in range(PD):
        for idx in range(8):
            dma_one(s % NST, idx)
    for s in range(NSTEP):
        stage = s % NST
        newer = min(PD - 1, NSTEP - 1 - s)
        a(f's_waitcnt vmcnt({newer*8})')
        a('s_barrier')
        reads(stage, 0, 0)
        for ks in range(4):
            if ks < 3:
                reads(stage, ks + 1, (ks + 1) & 1)
            if s + PD < NSTEP:
                dma_one((s + PD) % NST, ks * 2)
                dma_one((s + PD) % NST, ks * 2 + 1)
            elif s + PD == NSTEP and ks == 0:
                pass
            a(f's_waitcnt lgkmcnt({6 if ks < 3 else 0})')
            base = 32 + (ks & 1) * 16
            for t in range(2):
                for mb in range(2):
                    acc = 64 + (t * 2 + mb) * 16
                    if not P.get('nomfma'):
                        a(f'v_mfma_f32_32x32x16_bf16 v[{acc}:{acc+15}], v[{base+8+t*4}:{base+8+t*4+3}], v[{base+mb*4}:{base+mb*4+3}], v[{acc}:{acc+15}]')
        a('s_nop 15')
    a('v_and_b32 v10, 31, v0')
    a('s_lshl_b32 s34, s27, 7')
    a('s_lshl_b32 s35, s30, 6')
    a('s_add_u32 s34, s34, s35')
    a('v_add_u32 v10, s34, v10')
    a('v_lshrrev_b32 v11, 5, v0')
    a('v_lshlrev_b32 v11, 3, v11')
    a('s_lshl_b32 s35, s31, 6')
    a('v_add_u32 v11, s35, v11')
    a('s_cmp_lt_u32 s28, 24')
    a('s_cbranch_scc0 G1_epi_ffn')
    srd_from(a, sO, 22, 2048 * LD_QKV, QKV_OFF)
    a('s_mov_b32 s36, %d' % LD_QKV)
    a('v_mul_lo_u32 v10, v10, s36')
    a('v_add_u32 v10, v10, v11')
    a('s_lshl_b32 s35, s28, 8')
    a('v_add_u32 v10, s35, v10')
    a(f'v_add_u32 v11, {32*LD_QKV}, v10')
    for t in range(2):
        for mb in range(2):
            acc = 64 + (t * 2 + mb) * 16
            for rq in range(4):
                a(f'v_cvt_pk_bf16_f32 v12, v{acc+rq*4}, v{acc+rq*4+1}')
                a(f'v_cvt_pk_bf16_f32 v13, v{acc+rq*4+2}, v{acc+rq*4+3}')
                a(f'buffer_store_dwordx2 v[12:13], v{10+mb}, s[{sO}:{sO+3}], 0 offen offset:{t*128 + rq*16}')
                a('s_nop 0')
    a('s_branch G1_done')
    a.label('G1_epi_ffn')
    srd_from(a, sO, 22, 2048 * LD_OH, OH_OFF)
    a('s_mov_b32 s36, %d' % LD_OH)
    a('v_mul_lo_u32 v10, v10, s36')
    a('v_add_u32 v10, v10, v11')
    a('s_sub_u32 s35, s28, 24')
    a('s_lshl_b32 s35, s35, 7')
    a('s_add_u32 s35, s35, 2048')
    a('v_add_u32 v10, s35, v10')
    a(f'v_add_u32 v11, {32*LD_OH}, v10')
    for mb in range(2):
        g = 64 + (0 * 2 + mb) * 16
        u = 64 + (1 * 2 + mb) * 16
        for rq in range(4):
            for p in range(2):
                r = rq * 4 + p * 2
                a(f'v_cvt_pk_bf16_f32 v14, v{g+r}, v{g+r+1}')
                a(f'v_cvt_pk_bf16_f32 v15, v{u+r}, v{u+r+1}')
                a('v_lshlrev_b32 v16, 16, v14')
                a('v_and_b32 v17, 0xffff0000, v14')
                a('v_lshlrev_b32 v18, 16, v15')
                a('v_and_b32 v19, 0xffff0000, v15')
                a('v_max_f32 v16, 0, v16')
                a('v_max_f32 v17, 0, v17')
                a('v_mul_f32 v16, v16, v18')
                a('v_mul_f32 v17, v17, v19')
                a(f'v_cvt_pk_bf16_f32 v{12+p}, v16, v17')
            a(f'buffer_store_dwordx2 v[12:13], v{10+mb}, s[{sO}:{sO+3}], 0 offen offset:{rq*16}')
            a('s_nop 0')
    a.label('G1_done')
    a('s_endpgm')
    return kernel_desc(name, 128, 48)


def gen_attn(a):
    name = 'attn_kernel'
    kernel_header(a, name)
    sQ, sO = 4, 8
    KOFF, VOFF = 0, 20480
    a('s_cmp_ge_u32 s2, 1024')
    a('s_cbranch_scc1 AT_done')
    a('s_load_dwordx2 s[16:17], s[0:1], 72')
    a('v_lshrrev_b32 v1, 6, v0')
    a('v_and_b32 v0, 63, v0')
    a('s_nop 0')
    a('v_readfirstlane_b32 s24, v1')
    a('s_and_b32 s25, s2, 31')
    a('s_lshr_b32 s26, s2, 5')
    a('s_lshl_b32 s27, s26, 6')
    a('s_waitcnt lgkmcnt(0)')
    srd_from(a, sQ, 16, 2048 * LD_QKV, QKV_OFF)
    srd_from(a, sO, 16, 2048 * LD_OH, OH_OFF)
    a('v_lshrrev_b32 v10, 2, v0')
    a('v_and_b32 v11, 3, v0')
    a('s_lshl_b32 s28, s24, 4')
    a('s_add_u32 s28, s28, s27')
    a('s_sub_u32 s28, s28, 256')
    a('v_add_u32 v10, s28, v10')
    a('s_mov_b32 s29, %d' % LD_QKV)
    a('v_mul_lo_u32 v10, v10, s29')
    a('v_lshlrev_b32 v11, 4, v11')
    a('v_add_u32 v10, v10, v11')
    a('s_lshl_b32 s30, s25, 6')
    a('v_add_u32 v10, s30, v10')
    a('v_add_u32 v12, 2048, v10')
    a('v_add_u32 v13, 4096, v10')
    a('s_lshl_b32 s31, s24, 10')
    a('s_mov_b32 s33, 0')
    for j in range(5):
        a(f's_add_u32 m0, s31, {KOFF + j*4096}')
        a('s_nop 0')
        a(f'buffer_load_dwordx4 v12, s[{sQ}:{sQ+3}], s33 offen lds')
        a(f's_add_u32 m0, s31, {VOFF + j*4096}')
        a('s_nop 0')
        a(f'buffer_load_dwordx4 v13, s[{sQ}:{sQ+3}], s33 offen lds')
        if j < 4:
            a(f'v_add_u32 v12, {64*LD_QKV}, v12')
            a(f'v_add_u32 v13, {64*LD_QKV}, v13')
    a('v_and_b32 v14, 15, v0')
    a('s_lshl_b32 s28, s24, 4')
    a('s_add_u32 s28, s28, s27')
    a('v_add_u32 v15, s28, v14')
    a('v_mul_lo_u32 v16, v15, s29')
    a('v_lshrrev_b32 v17, 4, v0')
    a('v_lshlrev_b32 v18, 4, v17')
    a('v_add_u32 v16, v16, v18')
    a('v_add_u32 v16, s30, v16')
    a(f'buffer_load_dwordx4 v[4:7], v16, s[{sQ}:{sQ+3}], 0 offen')
    a('v_lshlrev_b32 v20, 6, v14')
    a('v_add_u32 v20, v20, v18')
    a('v_add_u32 v20, s31, v20')
    a('v_lshlrev_b32 v21, 2, v17')
    a('v_lshrrev_b32 v22, 2, v14')
    a('v_add_u32 v21, v21, v22')
    a('v_lshlrev_b32 v21, 6, v21')
    a('v_and_b32 v22, 3, v14')
    a('v_lshlrev_b32 v22, 3, v22')
    a('v_add_u32 v21, v21, v22')
    a('v_add_u32 v21, s31, v21')
    a(f'v_add_u32 v21, {VOFF}, v21')
    a('s_waitcnt vmcnt(0)')
    a('s_barrier')
    NT = 17
    SB = 56
    for t in range(3):
        a(f'ds_read_b128 v[{24+t*4}:{24+t*4+3}], v20 offset:{KOFF + t*1024}')
    for t in range(NT):
        if t + 3 < NT:
            r = 24 + ((t + 3) & 3) * 4
            a(f'ds_read_b128 v[{r}:{r+3}], v20 offset:{KOFF + (t+3)*1024}')
        a(f's_waitcnt lgkmcnt({min(3, NT-1-t)})')
        rp = 24 + (t & 3) * 4
        a(f'v_mfma_f32_16x16x32_bf16 v[{SB+t*4}:{SB+t*4+3}], v[{rp}:{rp+3}], v[4:7], 0')
    a('v_add_u32 v22, 1, v14')
    a('s_sub_u32 s34, 256, s28')
    a('v_max_i32 v22, s34, v22')
    a('v_add_u32 v23, 256, v14')
    a('v_sub_u32 v23, v23, v22')
    a('v_lshlrev_b32 v40, 2, v17')
    a('v_sub_u32 v22, v40, v22')
    a('s_nop 7')
    a('v_mov_b32 v41, 0xf149f2ca')
    a('v_mov_b32 v42, 0xf149f2ca')
    a('s_mov_b32 s35, 0x3e3504f3')
    a('s_cmp_lt_u32 s28, 256')
    a('s_cbranch_scc1 AT_slow')
    for path in ('fast', 'slow'):
        if path == 'slow':
            a.label('AT_slow')
        for t in range(NT):
            for p in range(2):
                s = SB + t * 4 + p * 2
                a(f'v_cvt_pk_bf16_f32 v43, v{s}, v{s+1}')
                a(f'v_lshlrev_b32 v{s}, 16, v43')
                a(f'v_and_b32 v{s+1}, 0xffff0000, v43')
                a(f'v_mul_f32 v{s}, s35, v{s}')
                a(f'v_mul_f32 v{s+1}, s35, v{s+1}')
                a(f'v_cvt_pk_bf16_f32 v43, v{s}, v{s+1}')
                a(f'v_lshlrev_b32 v{s}, 16, v43')
                a(f'v_and_b32 v{s+1}, 0xffff0000, v43')
                if path == 'slow' or t == 0 or t == NT - 1:
                    for r in range(2):
                        a(f'v_add_u32 v44, {16*t + p*2 + r}, v22')
                        a('v_cmp_le_u32 vcc, v44, v23')
                        a('s_nop 1')
                        a(f'v_cndmask_b32 v{s+r}, v41, v{s+r}, vcc')
                a(f'v_max3_f32 v42, v42, v{s}, v{s+1}')
        if path == 'fast':
            a('s_branch AT_join')
    a.label('AT_join')
    a('ds_swizzle_b32 v43, v42 offset:0x401F')
    a('s_waitcnt lgkmcnt(0)')
    a('v_max_f32 v42, v42, v43')
    a('v_lshlrev_b32 v45, 2, v0')
    a('v_xor_b32 v45, 128, v45')
    a('ds_bpermute_b32 v43, v45, v42')
    a('s_waitcnt lgkmcnt(0)')
    a('v_max_f32 v42, v42, v43')
    a('s_mov_b32 s36, 0x3fb8aa3b')
    a('v_mul_f32 v42, s36, v42')
    a('v_mov_b32 v46, 0')
    a('v_mov_b32 v47, s36')
    for t in range(NT):
        for r in range(4):
            s = SB + t * 4 + r
            a(f'v_fma_f32 v{s}, v{s}, v47, -v42')
            a(f'v_exp_f32 v{s}, v{s}')
        for r in range(4):
            s = SB + t * 4 + r
            a(f'v_add_f32 v46, v46, v{s}')
    a('ds_swizzle_b32 v43, v46 offset:0x401F')
    a('s_waitcnt lgkmcnt(0)')
    a('v_add_f32 v46, v46, v43')
    a('ds_bpermute_b32 v43, v45, v46')
    a('s_waitcnt lgkmcnt(0)')
    a('v_add_f32 v46, v46, v43')
    a('v_rcp_f32 v46, v46')
    a('s_nop 0')
    for t in range(NT):
        s = SB + t * 4
        for r in range(4):
            a(f'v_mul_f32 v{s+r}, v{s+r}, v46')
        a(f'v_cvt_pk_bf16_f32 v{SB+t*2}, v{s}, v{s+1}')
        a(f'v_cvt_pk_bf16_f32 v{SB+1+t*2}, v{s+2}, v{s+3}')
    for i in range(48, 56):
        a(f'v_mov_b32 v{i}, 0')
    def vreads(tp):
        t0 = tp * 2
        rb = 24 + (tp & 1) * 8
        for dhh in range(2):
            a(f'ds_read_b64_tr_b16 v[{rb+dhh*4}:{rb+dhh*4+1}], v21 offset:{t0*1024 + dhh*32}')
            a(f'ds_read_b64_tr_b16 v[{rb+dhh*4+2}:{rb+dhh*4+3}], v21 offset:{(t0+1)*1024 + dhh*32}')
    vreads(0)
    for tp in range(8):
        t0 = tp * 2
        rb = 24 + (tp & 1) * 8
        if tp < 7:
            vreads(tp + 1)
            a('s_waitcnt lgkmcnt(4)')
        else:
            a('s_waitcnt lgkmcnt(0)')
        for dhh in range(2):
            a(f'v_mfma_f32_16x16x32_bf16 v[{48+dhh*4}:{48+dhh*4+3}], v[{rb+dhh*4}:{rb+dhh*4+3}], v[{SB+t0*2}:{SB+t0*2+3}], v[{48+dhh*4}:{48+dhh*4+3}]')
    for dhh in range(2):
        a(f'ds_read_b64_tr_b16 v[{24+dhh*2}:{24+dhh*2+1}], v21 offset:{16*1024 + dhh*32}')
    a('s_waitcnt lgkmcnt(0)')
    for dhh in range(2):
        a(f'v_mfma_f32_16x16x16_bf16 v[{48+dhh*4}:{48+dhh*4+3}], v[{24+dhh*2}:{24+dhh*2+1}], v[{SB+32}:{SB+33}], v[{48+dhh*4}:{48+dhh*4+3}]')
    a('s_nop 15')
    a('s_mov_b32 s29, %d' % LD_OH)
    a('v_mul_lo_u32 v16, v15, s29')
    a('v_lshlrev_b32 v18, 3, v17')
    a('v_add_u32 v16, v16, v18')
    a('v_add_u32 v16, s30, v16')
    for dhh in range(2):
        a(f'v_cvt_pk_bf16_f32 v12, v{48+dhh*4}, v{49+dhh*4}')
        a(f'v_cvt_pk_bf16_f32 v13, v{50+dhh*4}, v{51+dhh*4}')
        a(f'buffer_store_dwordx2 v[12:13], v16, s[{sO}:{sO+3}], 0 offen offset:{dhh*32}')
        a('s_nop 0')
    a.label('AT_done')
    a('s_endpgm')
    return kernel_desc(name, 128, 48)


def gen_gemm2(a):
    name = 'gemm2_kernel'
    kernel_header(a, name)
    STAGE = 24576
    NST = 4
    sA, sB, sO, sX = 4, 8, 12, 44
    a('s_cmp_ge_u32 s2, 256')
    a('s_cbranch_scc1 G2_done')
    a('s_load_dwordx2 s[16:17], s[0:1], 16')
    a('s_load_dwordx2 s[18:19], s[0:1], 48')
    a('s_load_dwordx2 s[20:21], s[0:1], 0')
    a('s_load_dwordx2 s[22:23], s[0:1], 72')
    a('s_load_dwordx2 s[48:49], s[0:1], 56')
    a('v_lshrrev_b32 v1, 6, v0')
    a('v_and_b32 v0, 63, v0')
    a('s_nop 0')
    a('v_readfirstlane_b32 s24, v1')
    a('s_and_b32 s25, s2, 7')
    a('s_lshr_b32 s26, s2, 3')
    a('s_and_b32 s27, s26, 1')
    a('s_lshl_b32 s29, s25, 1')
    a('s_add_u32 s27, s27, s29')
    a('s_lshr_b32 s28, s26, 1')
    a('s_lshr_b32 s30, s24, 1')
    a('s_and_b32 s31, s24, 1')
    a('s_waitcnt lgkmcnt(0)')
    srd_from(a, sA, 22, 2048 * LD_OH, OH_OFF)
    srd_from(a, sB, 16, 1024 * 2048)
    srd_from(a, sO, 48, 2048 * 2048)
    srd_from(a, sX, 20, 2048 * 2048)
    a('v_lshrrev_b32 v10, 3, v0')
    a('v_and_b32 v11, 7, v0')
    a('v_lshrrev_b32 v12, 4, v0')
    a('s_lshl_b32 s34, s27, 7')
    a('s_lshl_b32 s35, s24, 5')
    a('s_add_u32 s34, s34, s35')
    a('v_add_u32 v13, s34, v10')
    a('s_mov_b32 s36, %d' % LD_OH)
    a('v_mul_lo_u32 v13, v13, s36')
    a('v_xor_b32 v14, v11, v12')
    a('v_lshlrev_b32 v14, 4, v14')
    a('v_xor_b32 v15, 4, v11')
    a('v_xor_b32 v15, v15, v12')
    a('v_lshlrev_b32 v15, 4, v15')
    a('v_add_u32 v2, v13, v14')
    a('v_add_u32 v3, v13, v15')
    a(f'v_add_u32 v3, {8*LD_OH}, v3')
    a(f'v_add_u32 v4, {16*LD_OH}, v2')
    a(f'v_add_u32 v5, {16*LD_OH}, v3')
    a('s_lshl_b32 s35, s24, 4')
    a('v_add_u32 v13, s35, v10')
    a('v_lshlrev_b32 v13, 11, v13')
    a('v_and_b32 v14, 1, v12')
    a('v_lshlrev_b32 v14, 2, v14')
    a('v_xor_b32 v14, v14, v11')
    a('v_lshlrev_b32 v14, 4, v14')
    a('v_add_u32 v13, v13, v14')
    a('s_lshl_b32 s33, s28, 7')
    a('v_add_u32 v6, s33, v13')
    a('v_add_u32 v7, 0x4000, v6')
    a('s_lshl_b32 s38, s24, 12')
    a('s_lshl_b32 s39, s24, 11')
    a('v_and_b32 v10, 31, v0')
    a('s_lshl_b32 s35, s30, 6')
    a('v_add_u32 v10, s35, v10')
    a('v_lshrrev_b32 v11, 1, v10')
    a('v_and_b32 v11, 7, v11')
    a('v_lshrrev_b32 v12, 5, v0')
    a('v_lshlrev_b32 v10, 7, v10')
    a('s_lshl_b32 s35, s31, 2')
    for j in range(2):
        a(f'v_add_u32 v13, {j*2}, v12')
        a('v_add_u32 v13, s35, v13')
        a('v_xor_b32 v13, v13, v11')
        a('v_lshlrev_b32 v13, 4, v13')
        a(f'v_add_u32 v{16+j}, v10, v13')
    a('v_lshrrev_b32 v10, 4, v0')
    a('v_and_b32 v11, 15, v0')
    a('v_lshrrev_b32 v12, 1, v10')
    a('v_lshlrev_b32 v12, 3, v12')
    a('v_lshrrev_b32 v13, 2, v11')
    a('v_add_u32 v12, v12, v13')
    a('v_lshlrev_b32 v12, 7, v12')
    a('v_and_b32 v13, 1, v10')
    a('v_lshlrev_b32 v13, 1, v13')
    a('v_bfe_u32 v14, v11, 1, 1')
    a('v_add_u32 v13, v13, v14')
    a('v_bfe_u32 v14, v11, 3, 1')
    a('v_lshlrev_b32 v14, 2, v14')
    a('v_and_b32 v15, 1, v11')
    a('v_lshlrev_b32 v15, 3, v15')
    a('v_add_u32 v12, v12, v15')
    a('s_lshl_b32 s35, s31, 12')
    a('v_add_u32 v12, s35, v12')
    a('v_add_u32 v12, 16384, v12')
    for t in range(2):
        a(f'v_add_u32 v15, {t*4}, v13')
        a('v_xor_b32 v15, v15, v14')
        a('v_lshlrev_b32 v15, 4, v15')
        a(f'v_add_u32 v{20+t}, v12, v15')
    a('v_add_u32 v18, 49152, v16')
    a('v_add_u32 v19, 49152, v17')
    a('v_add_u32 v22, 49152, v20')
    a('v_add_u32 v23, 49152, v21')
    for i in range(64, 128):
        a(f'v_mov_b32 v{i}, 0')
    a('s_mov_b32 s40, 0')
    a('s_mov_b32 s41, 0')
    a('s_mov_b32 s43, 0')

    def dma(stage):
        a('s_cmp_eq_u32 s43, 16')
        a('s_cselect_b32 s8, s18, s8')
        a('s_cselect_b32 s9, s19, s9')
        a('s_cselect_b32 s10, %d, s10' % (3584 * 2048))
        a('s_cselect_b32 s41, 0, s41')
        for i in range(4):
            a(f's_add_u32 m0, s38, {stage*STAGE + i*1024}')
            a('s_nop 0')
            a(f'buffer_load_dwordx4 v{2+i}, s[{sA}:{sA+3}], s40 offen lds')
        for i in range(2):
            a(f's_add_u32 m0, s39, {stage*STAGE + 16384 + i*1024}')
            a('s_nop 0')
            a(f'buffer_load_dwordx4 v{6+i}, s[{sB}:{sB+3}], s41 offen lds')
        a('s_add_u32 s40, s40, 128')
        a('s_add_u32 s41, s41, 0x20000')
        a('s_add_u32 s43, s43, 1')

    def compute(stage):
        for j in range(2):
            base = 32 + j * 16
            for mb in range(2):
                a(f'ds_read_b128 v[{base+mb*4}:{base+mb*4+3}], v{16+j+2*(stage>>1)} offset:{(stage&1)*STAGE + mb*4096}')
            for t in range(2):
                for half in range(2):
                    r = base + 8 + t * 4 + half * 2
                    a(f'ds_read_b64_tr_b16 v[{r}:{r+1}], v{20+t+2*(stage>>1)} offset:{(stage&1)*STAGE + j*2048 + half*512}')
        for j in range(2):
            a(f's_waitcnt lgkmcnt({6 if j == 0 else 0})')
            base = 32 + j * 16
            for t in range(2):
                for mb in range(2):
                    acc = 64 + (t * 2 + mb) * 16
                    a(f'v_mfma_f32_32x32x16_bf16 v[{acc}:{acc+15}], v[{base+8+t*4}:{base+8+t*4+3}], v[{base+mb*4}:{base+mb*4+3}], v[{acc}:{acc+15}]')

    for s in range(3):
        dma(s)
    a('s_mov_b32 s42, 0')
    a.label('G2_loop')
    for u in range(NST):
        a('s_waitcnt vmcnt(12)')
        a('s_barrier')
        a('s_cmp_ge_u32 s43, 72')
        a(f's_cbranch_scc1 G2_nl{u}')
        dma((u + 3) % NST)
        a(f's_branch G2_c{u}')
        a.label(f'G2_nl{u}')
        a('s_waitcnt vmcnt(0)')
        a('s_barrier')
        a.label(f'G2_c{u}')
        compute(u)
    a('s_add_u32 s42, s42, 4')
    a('s_cmp_lt_u32 s42, 72')
    a('s_cbranch_scc1 G2_loop')
    a('s_nop 15')
    a('s_barrier')
    a('v_lshlrev_b32 v10, 2, v0')
    a('s_xor_b32 s35, s24, 1')
    a('s_lshl_b32 s35, s35, 13')
    a('v_add_u32 v10, s35, v10')
    a('v_lshlrev_b32 v11, 2, v0')
    a('s_lshl_b32 s35, s24, 13')
    a('v_add_u32 v11, s35, v11')
    a('s_cmp_eq_u32 s31, 0')
    a('s_cbranch_scc0 G2_x1')
    for t in range(2):
        acc = 64 + (t * 2 + 1) * 16
        for r in range(16):
            a(f'ds_write_b32 v10, v{acc+r} offset:{(t*16+r)*256}')
    a('s_branch G2_x2')
    a.label('G2_x1')
    for t in range(2):
        acc = 64 + (t * 2 + 0) * 16
        for r in range(16):
            a(f'ds_write_b32 v10, v{acc+r} offset:{(t*16+r)*256}')
    for t in range(2):
        for r in range(16):
            a(f'v_mov_b32 v{64+(t*2)*16+r}, v{64+(t*2+1)*16+r}')
    a.label('G2_x2')
    a('s_waitcnt lgkmcnt(0)')
    a('s_barrier')
    for t in range(2):
        for r in range(16):
            a(f'ds_read_b32 v{32+(r&7)}, v11 offset:{(t*16+r)*256}')
            if (r & 7) == 7:
                a('s_waitcnt lgkmcnt(0)')
                for rr in range(r - 7, r + 1):
                    a(f'v_add_f32 v{64+(t*2)*16+rr}, v{64+(t*2)*16+rr}, v{32+(rr&7)}')
    a('v_and_b32 v10, 31, v0')
    a('s_lshl_b32 s34, s27, 7')
    a('s_lshl_b32 s35, s30, 6')
    a('s_add_u32 s34, s34, s35')
    a('s_lshl_b32 s35, s31, 5')
    a('s_add_u32 s34, s34, s35')
    a('v_add_u32 v10, s34, v10')
    a('v_lshlrev_b32 v10, 11, v10')
    a('v_lshrrev_b32 v11, 5, v0')
    a('v_lshlrev_b32 v11, 3, v11')
    a('v_add_u32 v10, v10, v11')
    a('v_add_u32 v10, s33, v10')
    for t in range(2):
        for rq in range(4):
            a(f'buffer_load_dwordx2 v[{32+(t*4+rq)*2}:{33+(t*4+rq)*2}], v10, s[{sX}:{sX+3}], 0 offen offset:{t*64 + rq*16}')
    a('s_waitcnt vmcnt(0)')
    for t in range(2):
        acc = 64 + (t * 2) * 16
        for rq in range(4):
            xr = 32 + (t * 4 + rq) * 2
            a(f'v_lshlrev_b32 v12, 16, v{xr}')
            a(f'v_and_b32 v13, 0xffff0000, v{xr}')
            a(f'v_lshlrev_b32 v14, 16, v{xr+1}')
            a(f'v_and_b32 v15, 0xffff0000, v{xr+1}')
            for q in range(4):
                a(f'v_add_f32 v{12+q}, v{12+q}, v{acc+rq*4+q}')
            a('v_cvt_pk_bf16_f32 v12, v12, v13')
            a('v_cvt_pk_bf16_f32 v13, v14, v15')
            a(f'buffer_store_dwordx2 v[12:13], v10, s[{sO}:{sO+3}], 0 offen offset:{t*64 + rq*16}')
            a('s_nop 0')
    a.label('G2_done')
    a('s_endpgm')
    return kernel_desc(name, 128, 56)


def gen_gemm1v2(a):
    name = 'gemm1_kernel'
    kernel_header(a, name)
    STAGE = 73728
    BOFF = 32768
    sA, sO = 4, 12
    a('s_cmp_ge_u32 s2, 256')
    a('s_cbranch_scc1 G1_done')
    a('s_load_dwordx2 s[16:17], s[0:1], 8')
    a('s_load_dwordx2 s[18:19], s[0:1], 32')
    a('s_load_dwordx2 s[20:21], s[0:1], 40')
    a('s_load_dwordx2 s[22:23], s[0:1], 72')
    a('v_lshrrev_b32 v1, 6, v0')
    a('v_and_b32 v0, 63, v0')
    a('s_nop 0')
    a('v_readfirstlane_b32 s24, v1')
    a('s_and_b32 s25, s2, 7')
    a('s_lshr_b32 s26, s2, 3')
    a('s_and_b32 s27, s26, 7')
    a('s_lshr_b32 s28, s26, 3')
    a('s_lshl_b32 s29, s25, 2')
    a('s_add_u32 s28, s28, s29')
    a('s_lshr_b32 s30, s24, 1')
    a('s_and_b32 s31, s24, 1')
    a('s_waitcnt lgkmcnt(0)')
    srd_from(a, sA, 22, 2048 * 2048, XN_OFF)
    a('v_lshrrev_b32 v10, 3, v0')
    a('v_and_b32 v11, 7, v0')
    a('v_lshrrev_b32 v12, 4, v0')
    a('s_lshl_b32 s34, s27, 8')
    a('s_lshl_b32 s35, s24, 5')
    a('s_add_u32 s34, s34, s35')
    a('v_add_u32 v13, s34, v10')
    a('v_lshlrev_b32 v13, 11, v13')
    a('v_xor_b32 v14, v11, v12')
    a('v_lshlrev_b32 v14, 4, v14')
    a('v_xor_b32 v15, 4, v11')
    a('v_xor_b32 v15, v15, v12')
    a('v_lshlrev_b32 v15, 4, v15')
    a('v_add_u32 v2, v13, v14')
    a('v_add_u32 v3, v13, v15')
    a('v_add_u32 v3, 0x4000, v3')
    a('v_add_u32 v4, 0x8000, v2')
    a('v_add_u32 v5, 0x8000, v3')
    a('s_mul_i32 s34, s28, 192')
    a('s_mul_i32 s35, s28, 224')
    for i in range(5):
        A0, A1, ST = 6 + 2 * i, 7 + 2 * i, 16 + i
        a(f'v_add_u32 v21, {64*i}, v0')
        a('v_mul_u32_u24 v22, 0xcccd, v21')
        a('v_lshrrev_b32 v22, 21, v22')
        a('v_mul_u32_u24 v23, 40, v22')
        a('v_sub_u32 v23, v21, v23')
        a('s_lshl_b32 s36, s24, 3')
        a('v_add_u32 v22, s36, v22')
        a('v_bfe_u32 v21, v22, 1, 1')
        a('v_bfe_u32 v24, v22, 3, 1')
        a('v_lshlrev_b32 v24, 1, v24')
        a('v_add_u32 v21, v21, v24')
        a('v_lshlrev_b32 v21, 1, v21')
        a('v_xor_b32 v23, v23, v21')
        a('v_lshlrev_b32 v24, 4, v23')
        a('v_add_u32 v25, s35, v24')
        a(f'v_subrev_u32 v26, {16*30 - 64}, v25')
        a('v_mov_b32 v27, s20')
        a('v_mov_b32 v28, s21')
        a('v_mov_b32 v29, 7168')
        a('v_cmp_gt_u32 vcc, 30, v23')
        a('s_nop 1')
        a(f'v_subrev_u32 v21, {16*20 - 64}, v25')
        a('v_cndmask_b32 v26, v26, v21, vcc')
        a('v_mov_b32 v21, s18')
        a('v_cndmask_b32 v27, v27, v21, vcc')
        a('v_mov_b32 v21, s19')
        a('v_cndmask_b32 v28, v28, v21, vcc')
        a('v_cmp_gt_u32 vcc, 20, v23')
        a('s_nop 1')
        a(f'v_subrev_u32 v21, {16*16}, v25')
        a('v_cndmask_b32 v26, v26, v21, vcc')
        a('v_mov_b32 v21, s20')
        a('v_cndmask_b32 v27, v27, v21, vcc')
        a('v_mov_b32 v21, s21')
        a('v_cndmask_b32 v28, v28, v21, vcc')
        a('v_cmp_gt_u32 vcc, 16, v23')
        a('s_nop 1')
        a(f'v_subrev_u32 v21, {16*12}, v25')
        a('v_cndmask_b32 v26, v26, v21, vcc')
        a('v_mov_b32 v21, s18')
        a('v_cndmask_b32 v27, v27, v21, vcc')
        a('v_mov_b32 v21, s19')
        a('v_cndmask_b32 v28, v28, v21, vcc')
        a('v_cmp_gt_u32 vcc, 12, v23')
        a('s_nop 1')
        a('v_add_u32 v21, s34, v24')
        a('v_cndmask_b32 v26, v26, v21, vcc')
        a('v_mov_b32 v21, s16')
        a('v_cndmask_b32 v27, v27, v21, vcc')
        a('v_mov_b32 v21, s17')
        a('v_cndmask_b32 v28, v28, v21, vcc')
        a('v_mov_b32 v21, 6144')
        a('v_cndmask_b32 v29, v29, v21, vcc')
        a('v_mul_lo_u32 v21, v22, v29')
        a('v_add_u32 v21, v21, v26')
        a(f'v_add_co_u32 v{A0}, vcc, v27, v21')
        a('s_nop 1')
        a(f'v_addc_co_u32 v{A1}, vcc, 0, v28, vcc')
        a(f'v_lshlrev_b32 v{ST}, 6, v29')
    a('s_lshl_b32 s38, s24, 12')
    a('s_mul_i32 s39, s24, 5120')
    a('v_and_b32 v24, 15, v0')
    a('v_lshrrev_b32 v25, 4, v0')
    a('s_lshl_b32 s35, s30, 6')
    a('v_add_u32 v26, s35, v24')
    a('v_lshlrev_b32 v26, 7, v26')
    a('v_lshrrev_b32 v27, 1, v24')
    for ks in range(2):
        a(f'v_add_u32 v28, {ks*4}, v25')
        a('v_xor_b32 v28, v28, v27')
        a('v_lshlrev_b32 v28, 4, v28')
        a(f'v_add_u32 v{21+ks}, v26, v28')
    a('v_lshlrev_b32 v26, 3, v25')
    a('v_lshrrev_b32 v27, 2, v24')
    a('v_add_u32 v26, v26, v27')
    a('v_mul_u32_u24 v26, 640, v26')
    a('v_and_b32 v27, 1, v24')
    a('v_lshlrev_b32 v27, 3, v27')
    a('v_add_u32 v26, v26, v27')
    a(f'v_add_u32 v26, {BOFF}, v26')
    a('v_bfe_u32 v27, v24, 3, 1')
    a('v_lshlrev_b32 v27, 1, v27')
    a('v_and_b32 v32, 1, v25')
    a('v_lshlrev_b32 v32, 2, v32')
    a('v_add_u32 v27, v27, v32')
    a('v_bfe_u32 v32, v24, 1, 1')
    a('s_lshl_b32 s35, s31, 1')
    a('s_mul_i32 s36, s31, 10')
    for j in range(4):
        a(f's_add_u32 s37, s35, {j}')
        a('s_and_b32 s37, s37, 3')
        a('s_lshl_b32 s37, s37, 1')
        a('v_add_u32 v33, s37, v32')
        a('v_xor_b32 v33, v33, v27')
        a('v_lshlrev_b32 v33, 4, v33')
        a(f's_add_u32 s37, s36, {j}')
        a('s_lshr_b32 s37, s37, 2')
        a('s_lshl_b32 s37, s37, 7')
        a('v_add_u32 v33, s37, v33')
        a(f'v_add_u32 v{28+j}, v26, v33')
    a(f'v_add_u32 v23, {STAGE}, v21')
    a(f'v_add_u32 v24, {STAGE}, v22')
    for j in range(4):
        a(f'v_add_u32 v{32+j}, {STAGE}, v{28+j}')
    XF = 36
    WF = [52, 72]
    ACC = 96
    for i in range(ACC, 256):
        a(f'v_mov_b32 v{i}, 0')
    a('s_mov_b32 s40, 0')

    def dma_one(stage, idx):
        if idx < 4:
            a(f's_add_u32 m0, s38, {stage*STAGE + idx*1024}')
            a('s_nop 0')
            a(f'buffer_load_dwordx4 v{2+idx}, s[{sA}:{sA+3}], s40 offen lds')
        else:
            i = idx - 4
            a(f's_add_u32 m0, s39, {stage*STAGE + BOFF + i*1024}')
            a('s_nop 0')
            a(f'global_load_lds_dwordx4 v[{6+2*i}:{7+2*i}], off')
            a(f'v_add_co_u32 v{6+2*i}, vcc, v{6+2*i}, v{16+i}')
            a('s_nop 1')
            a(f'v_addc_co_u32 v{7+2*i}, vcc, 0, v{7+2*i}, vcc')
        if idx == 8:
            a('s_add_u32 s40, s40, 128')

    def xreads(stage, ks):
        for mb in range(4):
            a(f'ds_read_b128 v[{XF+mb*4}:{XF+mb*4+3}], v{21+ks+2*stage} offset:{mb*2048}')

    def wreads(stage, ks, hb, st):
        for bb in range(5):
            b = hb * 5 + bb
            for half in range(2):
                r = WF[st] + bb * 4 + half * 2
                a(f'ds_read_b64_tr_b16 v[{r}:{r+1}], v{28+4*stage+(b&3)} offset:{(b>>2)*128 + (ks*32 + half*4)*640}')

    def mfmas(hb, st, dmas):
        n = 0
        for bb in range(5):
            b = hb * 5 + bb
            for mb in range(4):
                acc = ACC + (b * 4 + mb) * 4
                a(f'v_mfma_f32_16x16x32_bf16 v[{acc}:{acc+3}], v[{WF[st]+bb*4}:{WF[st]+bb*4+3}], v[{XF+mb*4}:{XF+mb*4+3}], v[{acc}:{acc+3}]')
                n += 1
                if n % 4 == 0 and dmas:
                    dmas.pop(0)()

    NSTEP = 16
    for idx in range(9):
        dma_one(0, idx)
    for s in range(NSTEP):
        stage = s & 1
        a('s_waitcnt vmcnt(0)')
        a('s_barrier')
        dm = []
        if s + 1 < NSTEP:
            dm = [(lambda idx=idx: dma_one(stage ^ 1, idx)) for idx in range(9)]
        xreads(stage, 0)
        wreads(stage, 0, 0, 0)
        a('s_waitcnt lgkmcnt(0)')
        wreads(stage, 0, 1, 1)
        mfmas(0, 0, dm)
        a('s_waitcnt lgkmcnt(0)')
        wreads(stage, 1, 0, 0)
        mfmas(1, 1, dm)
        xreads(stage, 1)
        a('s_waitcnt lgkmcnt(0)')
        wreads(stage, 1, 1, 1)
        mfmas(0, 0, None)
        a('s_waitcnt lgkmcnt(0)')
        mfmas(1, 1, None)
        assert not dm
    a('s_nop 15')
    srd_from(a, sO, 22, 2048 * LD_OH, OH_OFF)
    a('v_and_b32 v10, 15, v0')
    a('s_lshl_b32 s34, s27, 8')
    a('s_lshl_b32 s35, s30, 6')
    a('s_add_u32 s34, s34, s35')
    a('v_add_u32 v10, s34, v10')
    a('v_lshrrev_b32 v11, 4, v0')
    a('v_lshlrev_b32 v11, 3, v11')
    a('s_mov_b32 s36, %d' % LD_OH)
    a('v_mul_lo_u32 v12, v10, s36')
    a('v_add_u32 v12, v12, v11')
    a('s_mul_i32 s35, s28, 224')
    a('s_add_u32 s35, s35, 2048')
    a('v_add_u32 v12, s35, v12')

    def hstore(gb, ub, foff_bytes):
        for mb in range(4):
            g = ACC + (gb * 4 + mb) * 4
            u = ACC + (ub * 4 + mb) * 4
            for p in range(2):
                a(f'v_cvt_pk_bf16_f32 v14, v{g+2*p}, v{g+2*p+1}')
                a(f'v_cvt_pk_bf16_f32 v15, v{u+2*p}, v{u+2*p+1}')
                a('v_lshlrev_b32 v16, 16, v14')
                a('v_and_b32 v17, 0xffff0000, v14')
                a('v_lshlrev_b32 v18, 16, v15')
                a('v_and_b32 v19, 0xffff0000, v15')
                a('v_max_f32 v16, 0, v16')
                a('v_max_f32 v17, 0, v17')
                a('v_mul_f32 v16, v16, v18')
                a('v_mul_f32 v17, v17, v19')
                a(f'v_cvt_pk_bf16_f32 v{20+p}, v16, v17')
            a(f'v_add_u32 v13, {mb*16*LD_OH}, v12')
            a(f'buffer_store_dwordx2 v[20:21], v13, s[{sO}:{sO+3}], 0 offen offset:{foff_bytes}')
            a('s_nop 0')

    a('s_cmp_eq_u32 s31, 0')
    a('s_cbranch_scc0 G1_epi1')
    hstore(6, 8, 0)
    hstore(7, 9, 32)
    srd_from(a, sO, 22, 2048 * LD_QKV, QKV_OFF)
    a('s_mov_b32 s36, %d' % LD_QKV)
    a('v_mul_lo_u32 v12, v10, s36')
    a('v_add_u32 v12, v12, v11')
    a('s_mul_i32 s35, s28, 192')
    a('v_add_u32 v12, s35, v12')
    for b in range(6):
        for mb in range(4):
            q = ACC + (b * 4 + mb) * 4
            a(f'v_cvt_pk_bf16_f32 v20, v{q}, v{q+1}')
            a(f'v_cvt_pk_bf16_f32 v21, v{q+2}, v{q+3}')
            a(f'v_add_u32 v13, {mb*16*LD_QKV}, v12')
            a(f'buffer_store_dwordx2 v[20:21], v13, s[{sO}:{sO+3}], 0 offen offset:{b*32}')
            a('s_nop 0')
    a('s_branch G1_done')
    a.label('G1_epi1')
    for bb in range(5):
        hstore(bb, 5 + bb, 64 + bb * 32)
    a.label('G1_done')
    a('s_endpgm')
    return kernel_desc(name, 256, 48)


class LdsSB:
    def __init__(self, a):
        self.a = a
        self.q = []
    def issue(self, tag):
        self.q.append(tag)
        assert len(self.q) <= 15
    def need(self, tags):
        last = -1
        for i, t in enumerate(self.q):
            if t in tags:
                last = i
        if last < 0:
            return
        n = len(self.q) - 1 - last
        self.a(f's_waitcnt lgkmcnt({n})')
        self.q = self.q[last + 1:]


def gen_gemm1v3(a):
    name = 'gemm1_kernel'
    kernel_header(a, name)
    STAGE = 36864
    BOFF = 16384
    NST = 4
    sA, sO = 4, 12
    a('s_cmp_ge_u32 s2, 256')
    a('s_cbranch_scc1 G1_done')
    a('s_load_dwordx2 s[16:17], s[0:1], 8')
    a('s_load_dwordx2 s[18:19], s[0:1], 32')
    a('s_load_dwordx2 s[20:21], s[0:1], 40')
    a('s_load_dwordx2 s[22:23], s[0:1], 72')
    a('v_lshrrev_b32 v1, 6, v0')
    a('v_and_b32 v0, 63, v0')
    a('s_nop 0')
    a('v_readfirstlane_b32 s24, v1')
    a('s_and_b32 s25, s2, 7')
    a('s_lshr_b32 s26, s2, 3')
    a('s_and_b32 s27, s26, 7')
    a('s_lshr_b32 s28, s26, 3')
    a('s_lshl_b32 s29, s25, 2')
    a('s_add_u32 s28, s28, s29')
    a('s_lshr_b32 s30, s24, 1')
    a('s_and_b32 s31, s24, 1')
    a('s_waitcnt lgkmcnt(0)')
    srd_from(a, sA, 22, 2048 * 2048, XN_OFF)
    a('v_lshrrev_b32 v10, 2, v0')
    a('v_and_b32 v11, 3, v0')
    a('v_lshrrev_b32 v12, 4, v0')
    a('v_sub_u32 v12, 0, v12')
    a('v_and_b32 v12, 3, v12')
    a('v_xor_b32 v11, v11, v12')
    a('v_lshlrev_b32 v11, 4, v11')
    a('s_lshl_b32 s34, s27, 8')
    a('s_lshl_b32 s35, s24, 5')
    a('s_add_u32 s34, s34, s35')
    a('v_add_u32 v13, s34, v10')
    a('v_lshlrev_b32 v13, 11, v13')
    a('v_add_u32 v2, v13, v11')
    a('v_add_u32 v3, 0x8000, v2')
    a('s_mul_i32 s34, s28, 192')
    a('s_mul_i32 s35, s28, 224')
    for i in range(3):
        A0, A1, ST = 6 + 2 * i, 7 + 2 * i, 16 + i
        a('s_lshl_b32 s36, s24, 6')
        a(f's_add_u32 s36, s36, {512*i}')
        a('v_add_u32 v21, s36, v0')
        a('v_mul_u32_u24 v22, 0xcccd, v21')
        a('v_lshrrev_b32 v22, 21, v22')
        a('v_mul_u32_u24 v23, 40, v22')
        a('v_sub_u32 v23, v21, v23')
        a('v_bfe_u32 v21, v22, 1, 1')
        a('v_bfe_u32 v24, v22, 3, 1')
        a('v_lshlrev_b32 v24, 1, v24')
        a('v_add_u32 v21, v21, v24')
        a('v_lshlrev_b32 v21, 1, v21')
        a('v_xor_b32 v23, v23, v21')
        a('v_lshlrev_b32 v24, 4, v23')
        a('v_add_u32 v25, s35, v24')
        a(f'v_subrev_u32 v26, {16*30 - 64}, v25')
        a('v_mov_b32 v27, s20')
        a('v_mov_b32 v28, s21')
        a('v_mov_b32 v29, 7168')
        for (lim, sub, lo, hi) in ((30, 16*20 - 64, 18, 19), (20, 16*16, 20, 21), (16, 16*12, 18, 19)):
            a(f'v_cmp_gt_u32 vcc, {lim}, v23')
            a(f'v_subrev_u32 v21, {sub}, v25')
            a('s_nop 0')
            a('v_cndmask_b32 v26, v26, v21, vcc')
            a(f'v_mov_b32 v21, s{lo}')
            a('v_cndmask_b32 v27, v27, v21, vcc')
            a(f'v_mov_b32 v21, s{hi}')
            a('v_cndmask_b32 v28, v28, v21, vcc')
        a('v_cmp_gt_u32 vcc, 12, v23')
        a('v_add_u32 v21, s34, v24')
        a('s_nop 0')
        a('v_cndmask_b32 v26, v26, v21, vcc')
        a('v_mov_b32 v21, s16')
        a('v_cndmask_b32 v27, v27, v21, vcc')
        a('v_mov_b32 v21, s17')
        a('v_cndmask_b32 v28, v28, v21, vcc')
        a('v_mov_b32 v21, 6144')
        a('v_cndmask_b32 v29, v29, v21, vcc')
        a('v_mul_lo_u32 v21, v22, v29')
        a('v_add_u32 v21, v21, v26')
        a(f'v_add_co_u32 v{A0}, vcc, v27, v21')
        a('s_nop 1')
        a(f'v_addc_co_u32 v{A1}, vcc, 0, v28, vcc')
        a(f'v_lshlrev_b32 v{ST}, 5, v29')
    a('s_lshl_b32 s38, s24, 11')
    a('s_lshl_b32 s39, s24, 10')
    a('v_and_b32 v24, 15, v0')
    a('v_lshrrev_b32 v25, 4, v0')
    a('s_lshl_b32 s35, s30, 6')
    a('v_add_u32 v26, s35, v24')
    a('v_lshlrev_b32 v26, 6, v26')
    a('v_lshrrev_b32 v27, 2, v24')
    a('v_sub_u32 v27, 0, v27')
    a('v_and_b32 v27, 3, v27')
    a('v_xor_b32 v27, v27, v25')
    a('v_lshlrev_b32 v27, 4, v27')
    a('v_add_u32 v21, v26, v27')
    a('v_lshlrev_b32 v26, 3, v25')
    a('v_lshrrev_b32 v27, 2, v24')
    a('v_add_u32 v26, v26, v27')
    a('v_mul_u32_u24 v26, 640, v26')
    a('v_and_b32 v27, 1, v24')
    a('v_lshlrev_b32 v27, 3, v27')
    a('v_add_u32 v26, v26, v27')
    a(f'v_add_u32 v26, {BOFF}, v26')
    a('v_bfe_u32 v27, v24, 3, 1')
    a('v_lshlrev_b32 v27, 1, v27')
    a('v_and_b32 v32, 1, v25')
    a('v_lshlrev_b32 v32, 2, v32')
    a('v_add_u32 v27, v27, v32')
    a('v_bfe_u32 v32, v24, 1, 1')
    a('s_lshl_b32 s35, s31, 1')
    a('s_mul_i32 s36, s31, 10')
    for j in range(4):
        a(f's_add_u32 s37, s35, {j}')
        a('s_and_b32 s37, s37, 3')
        a('s_lshl_b32 s37, s37, 1')
        a('v_add_u32 v33, s37, v32')
        a('v_xor_b32 v33, v33, v27')
        a('v_lshlrev_b32 v33, 4, v33')
        a(f's_add_u32 s37, s36, {j}')
        a('s_lshr_b32 s37, s37, 2')
        a('s_lshl_b32 s37, s37, 7')
        a('v_add_u32 v33, s37, v33')
        a(f'v_add_u32 v{28+j}, v26, v33')
    a(f'v_add_u32 v22, {2*STAGE}, v21')
    for j in range(4):
        a(f'v_add_u32 v{32+j}, {2*STAGE}, v{28+j}')
    XF = [36, 52]
    WR = 68
    RING = 6
    PF = 4
    ACC = 96
    for i in range(ACC, 256):
        a(f'v_mov_b32 v{i}, 0')
    a('s_mov_b32 s40, 0')

    def dma_one(stage, idx):
        if P.get('nodma'):
            return
        if P.get('noA') and idx < 2:
            return
        if P.get('noB') and idx >= 2:
            return
        if idx < 2:
            a(f's_add_u32 m0, s38, {stage*STAGE + idx*1024}')
            a('s_nop 0')
            a(f'buffer_load_dwordx4 v{2+idx}, s[{sA}:{sA+3}], s40 offen lds')
            if idx == 1:
                a('s_add_u32 s40, s40, 64')
        else:
            i = idx - 2
            if i == 2:
                a('s_cmp_ge_u32 s24, 4')
                a(f's_cbranch_scc1 G1_sk{dma_one.n}')
            a(f's_add_u32 m0, s39, {stage*STAGE + BOFF + i*8192}')
            a('s_nop 0')
            a(f'global_load_lds_dwordx4 v[{6+2*i}:{7+2*i}], off')
            a(f'v_add_co_u32 v{6+2*i}, vcc, v{6+2*i}, v{16+i}')
            a('s_nop 1')
            a(f'v_addc_co_u32 v{7+2*i}, vcc, 0, v{7+2*i}, vcc')
            if i == 2:
                a.label(f'G1_sk{dma_one.n}')
                dma_one.n += 1
    dma_one.n = 0

    sb = LdsSB(a)
    NSTEP = 32

    def xread(s, mb):
        if P.get('nords'):
            return
        stage = s % NST
        a(f'ds_read_b128 v[{XF[s&1]+mb*4}:{XF[s&1]+mb*4+3}], v{21+(stage>>1)} offset:{(stage&1)*STAGE + mb*1024}')
        sb.issue(('x', s, mb))

    def wread(n):
        if P.get('nords'):
            return
        s, b = divmod(n, 10)
        stage = s % NST
        r = WR + (n % RING) * 4
        for half in range(2):
            a(f'ds_read_b64_tr_b16 v[{r+half*2}:{r+half*2+1}], v{28+4*(stage>>1)+(b&3)} offset:{(stage&1)*STAGE + (b>>2)*128 + half*4*640}')
            sb.issue(('w', n))

    for s in range(3):
        for idx in range(5):
            dma_one(s, idx)
    a('s_waitcnt vmcnt(8)')
    a('s_barrier')
    for mb in range(4):
        xread(0, mb)
    for n in range(PF):
        wread(n)
    NSLOT = NSTEP * 10
    for n in range(NSLOT):
        s, b = divmod(n, 10)
        if b == 0:
            if s + 1 < NSTEP:
                newer = 4 if s + 2 < NSTEP else 0
                a(f's_waitcnt vmcnt({newer})')
                a('s_barrier')
        if n + PF < NSLOT:
            wread(n + PF)
        if 5 <= b <= 8 and s + 1 < NSTEP:
            xread(s + 1, b - 5)
        sb.need([('w', n)] + [('x', s, mb) for mb in range(4)])
        r = WR + (n % RING) * 4
        for mb in range(4):
            acc = ACC + (b * 4 + mb) * 4
            if not P.get('nomfma'):
                a(f'v_mfma_f32_16x16x32_bf16 v[{acc}:{acc+3}], v[{r}:{r+3}], v[{XF[s&1]+mb*4}:{XF[s&1]+mb*4+3}], v[{acc}:{acc+3}]')
        if b < 5 and s + 3 < NSTEP:
            dma_one((s + 3) % NST, b)
    a('s_nop 15')
    RS = 432
    a('s_barrier')
    a('v_and_b32 v10, 15, v0')
    a('v_lshrrev_b32 v11, 4, v0')
    a('s_lshl_b32 s35, s30, 6')
    a('v_add_u32 v10, s35, v10')
    a(f'v_mul_u32_u24 v12, {RS}, v10')
    a('v_lshlrev_b32 v11, 3, v11')
    a('v_add_u32 v12, v12, v11')

    def hcalc(gb, ub, mb):
        g_ = ACC + (gb * 4 + mb) * 4
        u_ = ACC + (ub * 4 + mb) * 4
        for p in range(2):
            a(f'v_cvt_pk_bf16_f32 v14, v{g_+2*p}, v{g_+2*p+1}')
            a(f'v_cvt_pk_bf16_f32 v15, v{u_+2*p}, v{u_+2*p+1}')
            a('v_lshlrev_b32 v16, 16, v14')
            a('v_and_b32 v17, 0xffff0000, v14')
            a('v_lshlrev_b32 v18, 16, v15')
            a('v_and_b32 v19, 0xffff0000, v15')
            a('v_max_f32 v16, 0, v16')
            a('v_max_f32 v17, 0, v17')
            a('v_mul_f32 v16, v16, v18')
            a('v_mul_f32 v17, v17, v19')
            a(f'v_cvt_pk_bf16_f32 v{20+p}, v16, v17')

    a('s_cmp_eq_u32 s31, 0')
    a('s_cbranch_scc0 G1_epi1')
    for b in range(6):
        for mb in range(4):
            q = ACC + (b * 4 + mb) * 4
            a(f'v_cvt_pk_bf16_f32 v20, v{q}, v{q+1}')
            a(f'v_cvt_pk_bf16_f32 v21, v{q+2}, v{q+3}')
            a(f'ds_write_b64 v12, v[20:21] offset:{mb*16*RS + b*32}')
    for bb in range(2):
        for mb in range(4):
            hcalc(6 + bb, 8 + bb, mb)
            a(f'ds_write_b64 v12, v[20:21] offset:{mb*16*RS + 192 + bb*32}')
    a('s_branch G1_epi2')
    a.label('G1_epi1')
    for bb in range(5):
        for mb in range(4):
            hcalc(bb, 5 + bb, mb)
            a(f'ds_write_b64 v12, v[20:21] offset:{mb*16*RS + 192 + 64 + bb*32}')
    a.label('G1_epi2')
    a('s_waitcnt lgkmcnt(0)')
    a('s_barrier')
    srd_from(a, sO, 22, 64 << 20)
    a('s_lshl_b32 s34, s27, 8')
    a('s_lshl_b32 s35, s24, 5')
    a('s_add_u32 s34, s34, s35')
    a('s_mul_i32 s36, s28, 192')
    a(f's_add_u32 s36, s36, {QKV_OFF}')
    a('s_mul_i32 s37, s28, 224')
    a(f's_add_u32 s37, s37, {OH_OFF + 2048}')
    for k in range(13):
        a(f'v_add_u32 v21, {64*k}, v0')
        a('v_mul_u32_u24 v22, 0x9d8a, v21')
        a('v_lshrrev_b32 v22, 20, v22')
        a('v_mul_u32_u24 v23, 26, v22')
        a('v_sub_u32 v23, v21, v23')
        a('v_add_u32 v24, s35, v22')
        a(f'v_mul_u32_u24 v24, {RS}, v24')
        a('v_lshlrev_b32 v25, 4, v23')
        a('v_add_u32 v24, v24, v25')
        R = 96 + (k & 3) * 4
        a(f'ds_read_b128 v[{R}:{R+3}], v24')
        a('v_add_u32 v22, s34, v22')
        a(f'v_mul_u32_u24 v26, {LD_QKV}, v22')
        a('v_add_u32 v26, s36, v26')
        a(f'v_mul_u32_u24 v27, {LD_OH}, v22')
        a('v_add_u32 v27, s37, v27')
        a('v_subrev_u32 v27, 192, v27')
        a('v_cmp_gt_u32 vcc, 12, v23')
        a('s_nop 1')
        a('v_cndmask_b32 v26, v27, v26, vcc')
        a(f'v_add_u32 v{40+k}, v26, v25')
        if (k & 3) == 3 or k == 12:
            a('s_waitcnt lgkmcnt(0)')
            for kk in range(k - (k & 3), k + 1):
                R = 96 + (kk & 3) * 4
                a(f'buffer_store_dwordx4 v[{R}:{R+3}], v{40+kk}, s[{sO}:{sO+3}], 0 offen')
            a('s_nop 1')
    a.label('G1_done')
    a('s_endpgm')
    return kernel_desc(name, 256, 48)


def main():
    a = A()
    launches = []
    descs = []
    head = open(f'cdna_kernels/{NAME}.s.ref').read().split('\n')
    hdr = [l for l in head if l.startswith(';') and '@launch' not in l and 'Override launch' not in l and 'grid=ceil' not in l]
    which = sys.argv[1:] or ['ln', 'gemm1v3', 'attn', 'gemm2']
    body = A()
    if 'ln' in which:
        launches.append('; @launch kernel=ln_kernel grid=(%d,1,1) block=(256,1,1) lds=0' % (512 + (232 if P.get('pf') else 0)))
        descs.append(gen_ln(body))
    if 'gemm1v3' in which:
        launches.append('; @launch kernel=gemm1_kernel grid=(256,1,1) block=(512,1,1) lds=147456')
        descs.append(gen_gemm1v3(body))
    if 'gemm1v2' in which:
        launches.append('; @launch kernel=gemm1_kernel grid=(256,1,1) block=(512,1,1) lds=147456')
        descs.append(gen_gemm1v2(body))
    if 'gemm1' in which:
        launches.append(f'; @launch kernel=gemm1_kernel grid=(1280,1,1) block=(256,1,1) lds={32768*P["g1_nst"]}')
        descs.append(gen_gemm1(body))
    if 'attn' in which:
        launches.append('; @launch kernel=attn_kernel grid=(1024,1,1) block=(256,1,1) lds=40960')
        descs.append(gen_attn(body))
    if 'gemm2' in which:
        launches.append('; @launch kernel=gemm2_kernel grid=(256,1,1) block=(256,1,1) lds=98304')
        descs.append(gen_gemm2(body))
    out = '\n'.join(hdr) + '\n' + '\n'.join(launches) + '\n'
    out += '.amdgcn_target "amdgcn-amd-amdhsa--gfx950"\n.text\n'
    out += body.text()
    out += '.section .rodata,"a"\n.p2align 6\n' + '.p2align 6\n'.join(descs)
    open(os.environ.get('OUT', f'cdna_kernels/{NAME}.s'), 'w').write(out)


main()
```

```python
import sys

NAME = 'parallel_sum__sliding_block__glu_gated_reglu__prompt'
XN_OFF, QKV_OFF, OH_OFF = 0, 4 << 20, 16 << 20
LD_OH = 4608 * 2
LD_QKV = 3072 * 2


P = {'g1_nst': 2, 'pf': 1}
import os, json
if os.environ.get('GP'):
    P.update(json.loads(os.environ['GP']))

class A:
    def __init__(self):
        self.lines = []

    def __call__(self, s):
        for l in s.strip('\n').split('\n'):
            self.lines.append('    ' + l.strip())

    def label(self, s):
        self.lines.append(s + ':')

    def raw(self, s):
        self.lines.append(s)

    def text(self):
        return '\n'.join(self.lines) + '\n'


def emit_prefetch(a, label, done, base, mats):
    a.label(label)
    a(f's_sub_u32 s3, s2, {base}')
    tot = sum(n for _, n in mats)
    a(f's_cmp_ge_u32 s3, {tot}')
    a(f's_cbranch_scc1 {done}')
    a(f's_mov_b32 s4, {mats[0][0]}')
    a('s_mov_b32 s5, 0')
    acc = 0
    for (off, n), (noff, _) in zip(mats, mats[1:]):
        acc += n
        a(f's_cmp_ge_u32 s3, {acc}')
        a(f's_cselect_b32 s4, {noff}, s4')
        a(f's_cselect_b32 s5, {acc}, s5')
    a('s_sub_u32 s3, s3, s5')
    a('s_load_dwordx2 s[6:7], s[0:1], s4')
    a('s_lshl_b32 s3, s3, 17')
    a('s_waitcnt lgkmcnt(0)')
    a('s_mov_b32 s8, s6')
    a('s_mov_b32 s9, s7')
    a('s_mov_b32 s10, 7340032')
    a('s_mov_b32 s11, 0x00020000')
    a('v_lshlrev_b32 v1, 4, v0')
    a('v_add_u32 v1, s3, v1')
    for k in range(32):
        a(f'buffer_load_dwordx4 v[{4+(k&3)*4}:{7+(k&3)*4}], v1, s[8:11], 0 offen')
        if k < 31:
            a('v_add_u32 v1, 4096, v1')


def kernel_header(a, name):
    a.raw(f'.globl {name}')
    a.raw('.p2align 8')
    a.raw(f'.type {name},@function')
    a.label(name)


def kernel_desc(name, vgpr, sgpr, accum=None, wgy=False):
    accum = accum or ((vgpr + 3) // 4 * 4)
    return f'''.amdhsa_kernel {name}
  .amdhsa_next_free_vgpr {vgpr}
  .amdhsa_next_free_sgpr {sgpr}
  .amdhsa_accum_offset {accum}
  .amdhsa_group_segment_fixed_size 0
  .amdhsa_kernarg_size 80
  .amdhsa_user_sgpr_count 2
  .amdhsa_user_sgpr_kernarg_segment_ptr 1
  .amdhsa_system_sgpr_workgroup_id_x 1
.end_amdhsa_kernel
'''


def srd_from(a, dst, ptr, nbytes, off=0):
    if off:
        a(f's_add_u32 s{dst}, s{ptr}, {off}')
        a(f's_addc_u32 s{dst+1}, s{ptr+1}, 0')
    else:
        a(f's_mov_b32 s{dst}, s{ptr}')
        a(f's_mov_b32 s{dst+1}, s{ptr+1}')
    a(f's_mov_b32 s{dst+2}, {nbytes}')
    a(f's_mov_b32 s{dst+3}, 0x00020000')


def wave_sum(a, v, tmp, sdst):
    for off in (0x041F, 0x081F, 0x101F, 0x201F, 0x401F):
        a(f'ds_swizzle_b32 v{tmp}, v{v} offset:{off}')
        a('s_waitcnt lgkmcnt(0)')
        a(f'v_add_f32 v{v}, v{v}, v{tmp}')
    a('s_nop 0')
    a(f'v_readlane_b32 s{sdst}, v{v}, 32')
    a('s_nop 1')
    a(f'v_add_f32 v{v}, s{sdst}, v{v}')
    a('s_nop 0')
    a(f'v_readlane_b32 s{sdst}, v{v}, 0')
    a('s_nop 3')


def gen_ln(a):
    name = 'ln_kernel'
    kernel_header(a, name)
    a('s_cmp_ge_u32 s2, 512')
    a('s_cbranch_scc1 LN_pf' if P.get('pf') else 's_cbranch_scc1 LN_done')
    a('s_load_dwordx2 s[4:5], s[0:1], 0')
    a('s_load_dwordx2 s[6:7], s[0:1], 72')
    a('v_lshrrev_b32 v1, 6, v0')
    a('v_and_b32 v2, 63, v0')
    a('s_lshl_b32 s3, s2, 2')
    a('v_add_u32 v1, s3, v1')
    a('v_lshlrev_b32 v1, 11, v1')
    a('v_lshlrev_b32 v2, 5, v2')
    a('v_add_u32 v1, v1, v2')
    a('s_waitcnt lgkmcnt(0)')
    srd_from(a, 8, 4, 2048 * 2048)
    srd_from(a, 12, 6, 2048 * 2048, XN_OFF)
    a('buffer_load_dwordx4 v[4:7], v1, s[8:11], 0 offen')
    a('buffer_load_dwordx4 v[8:11], v1, s[8:11], 0 offen offset:16')
    a('s_waitcnt vmcnt(0)')
    for i in range(8):
        a(f'v_lshlrev_b32 v{16+2*i}, 16, v{4+i}')
        a(f'v_and_b32 v{17+2*i}, 0xffff0000, v{4+i}')
    a('v_add_f32 v12, v16, v17')
    for i in range(18, 32):
        a(f'v_add_f32 v12, v12, v{i}')
    wave_sum(a, 12, 13, 20)
    a('v_mov_b32 v14, 0x3a800000')
    a('v_mul_f32 v14, s20, v14')
    a('v_mov_b32 v12, 0')
    for i in range(16, 32):
        a(f'v_sub_f32 v13, v{i}, v14')
        a(f'v_fmac_f32 v12, v13, v13')
    wave_sum(a, 12, 13, 21)
    a('v_mov_b32 v15, 0x3a800000')
    a('v_mul_f32 v15, s21, v15')
    a('v_cvt_pk_bf16_f32 v12, v14, v15')
    a('v_lshlrev_b32 v14, 16, v12')
    a('v_and_b32 v15, 0xffff0000, v12')
    a('v_mov_b32 v13, 0x3727c5ac')
    a('v_add_f32 v15, v15, v13')
    a('v_cvt_pk_bf16_f32 v15, v15, v15')
    a('v_lshlrev_b32 v15, 16, v15')
    a('v_sqrt_f32 v15, v15')
    a('s_nop 0')
    a('v_cvt_pk_bf16_f32 v15, v15, v15')
    a('v_lshlrev_b32 v15, 16, v15')
    a('v_rcp_f32 v15, v15')
    a('s_nop 0')
    for i in range(8):
        a(f'v_sub_f32 v{16+2*i}, v{16+2*i}, v14')
        a(f'v_sub_f32 v{17+2*i}, v{17+2*i}, v14')
        a(f'v_cvt_pk_bf16_f32 v12, v{16+2*i}, v{17+2*i}')
        a(f'v_lshlrev_b32 v{16+2*i}, 16, v12')
        a(f'v_and_b32 v{17+2*i}, 0xffff0000, v12')
        a(f'v_mul_f32 v{16+2*i}, v{16+2*i}, v15')
        a(f'v_mul_f32 v{17+2*i}, v{17+2*i}, v15')
        a(f'v_cvt_pk_bf16_f32 v{4+i}, v{16+2*i}, v{17+2*i}')
    a('buffer_store_dwordx4 v[4:7], v1, s[12:15], 0 offen')
    a('buffer_store_dwordx4 v[8:11], v1, s[12:15], 0 offen offset:16')
    a('s_branch LN_done')
    if P.get('pf'):
        emit_prefetch(a, 'LN_pf', 'LN_done', 512, [(8, 48), (32, 56), (40, 56)])
        a('s_waitcnt vmcnt(0)')
    a.label('LN_done')
    a('s_endpgm')
    return kernel_desc(name, 32, 32)


def gen_gemm1(a):
    name = 'gemm1_kernel'
    kernel_header(a, name)
    STAGE = 32768
    sA, sB, sO = 4, 8, 12
    a('s_cmp_ge_u32 s2, 1280')
    a('s_cbranch_scc1 G1_done')
    a('s_load_dwordx2 s[16:17], s[0:1], 8')
    a('s_load_dwordx2 s[18:19], s[0:1], 32')
    a('s_load_dwordx2 s[20:21], s[0:1], 40')
    a('s_load_dwordx2 s[22:23], s[0:1], 72')
    a('v_lshrrev_b32 v1, 6, v0')
    a('v_and_b32 v0, 63, v0')
    a('s_nop 0')
    a('v_readfirstlane_b32 s24, v1')
    a('s_and_b32 s25, s2, 7')
    a('s_lshr_b32 s26, s2, 3')
    a('s_and_b32 s27, s26, 15')
    a('s_lshr_b32 s28, s26, 4')
    a('s_mul_i32 s29, s25, 10')
    a('s_add_u32 s28, s28, s29')
    a('s_lshr_b32 s30, s24, 1')
    a('s_and_b32 s31, s24, 1')
    a('s_waitcnt lgkmcnt(0)')
    srd_from(a, sA, 22, 2048 * 2048, XN_OFF)
    a('s_cmp_lt_u32 s28, 24')
    a('s_cbranch_scc0 G1_ffn')
    srd_from(a, sB, 16, 1024 * 6144)
    a('s_mov_b32 s32, 6144')
    a('s_lshl_b32 s33, s28, 8')
    a('s_lshl_b32 s34, s30, 7')
    a('s_add_u32 s33, s33, s34')
    a('s_branch G1_bdone')
    a.label('G1_ffn')
    a('s_cmp_eq_u32 s30, 0')
    a('s_cselect_b32 s8, s18, s20')
    a('s_cselect_b32 s9, s19, s21')
    a('s_mov_b32 s10, 7340032')
    a('s_mov_b32 s11, 0x00020000')
    a('s_mov_b32 s32, 7168')
    a('s_sub_u32 s33, s28, 24')
    a('s_lshl_b32 s33, s33, 7')
    a.label('G1_bdone')
    a('v_lshrrev_b32 v10, 3, v0')
    a('v_and_b32 v11, 7, v0')
    a('v_lshrrev_b32 v12, 4, v0')
    a('s_lshl_b32 s34, s27, 7')
    a('s_lshl_b32 s35, s24, 5')
    a('s_add_u32 s34, s34, s35')
    a('v_add_u32 v13, s34, v10')
    a('v_lshlrev_b32 v13, 11, v13')
    a('v_xor_b32 v14, v11, v12')
    a('v_lshlrev_b32 v14, 4, v14')
    a('v_xor_b32 v15, 4, v11')
    a('v_xor_b32 v15, v15, v12')
    a('v_lshlrev_b32 v15, 4, v15')
    a('v_add_u32 v2, v13, v14')
    a('v_add_u32 v3, v13, v15')
    a('v_add_u32 v3, 0x4000, v3')
    a('v_add_u32 v4, 0x8000, v2')
    a('v_add_u32 v5, 0x8000, v3')
    if P.get('seg64'):
        a('v_lshrrev_b32 v13, 2, v0')
        a('v_add_u32 v13, s34, v13')
        a('v_lshlrev_b32 v13, 11, v13')
        a('v_and_b32 v14, 3, v0')
        a('v_lshlrev_b32 v14, 4, v14')
        a('v_add_u32 v2, v13, v14')
        a('v_add_u32 v3, 64, v2')
        a('v_add_u32 v4, 0x8000, v2')
        a('v_add_u32 v5, 0x8000, v3')
    if P.get('contigA'):
        a('v_lshlrev_b32 v2, 4, v0')
        a('s_lshl_b32 s35, s24, 12')
        a('v_add_u32 v2, s35, v2')
        a('s_lshl_b32 s35, s27, 18')
        a('v_add_u32 v2, s35, v2')
        a('v_add_u32 v3, 1024, v2')
        a('v_add_u32 v4, 2048, v2')
        a('v_add_u32 v5, 3072, v2')
    a('s_lshl_b32 s35, s31, 5')
    a('v_add_u32 v13, s35, v10')
    a('v_mul_lo_u32 v13, v13, s32')
    a('v_and_b32 v14, 1, v12')
    a('v_lshlrev_b32 v14, 2, v14')
    a('v_xor_b32 v14, v14, v11')
    a('v_lshlrev_b32 v14, 4, v14')
    a('v_add_u32 v13, v13, v14')
    a('v_add_u32 v6, s33, v13')
    a('s_lshl_b32 s36, s32, 3')
    a('v_add_u32 v7, s36, v6')
    a('v_add_u32 v8, s36, v7')
    a('v_add_u32 v9, s36, v8')
    a('s_lshl_b32 s37, s32, 6')
    a('s_lshl_b32 s38, s24, 12')
    a('v_and_b32 v10, 31, v0')
    a('s_lshl_b32 s35, s30, 6')
    a('v_add_u32 v10, s35, v10')
    a('v_lshrrev_b32 v11, 1, v10')
    a('v_and_b32 v11, 7, v11')
    a('v_lshrrev_b32 v12, 5, v0')
    a('v_lshlrev_b32 v10, 7, v10')
    for ks in range(4):
        a(f'v_add_u32 v13, {ks*2}, v12')
        a('v_xor_b32 v13, v13, v11')
        a('v_lshlrev_b32 v13, 4, v13')
        a(f'v_add_u32 v{16+ks}, v10, v13')
    a('v_lshrrev_b32 v10, 4, v0')
    a('v_and_b32 v11, 15, v0')
    a('v_lshrrev_b32 v12, 1, v10')
    a('v_lshlrev_b32 v12, 3, v12')
    a('v_lshrrev_b32 v13, 2, v11')
    a('v_add_u32 v12, v12, v13')
    a('v_lshlrev_b32 v12, 7, v12')
    a('v_and_b32 v13, 1, v10')
    a('v_lshlrev_b32 v13, 1, v13')
    a('v_bfe_u32 v14, v11, 1, 1')
    a('v_add_u32 v13, v13, v14')
    a('s_lshl_b32 s35, s31, 2')
    a('v_add_u32 v13, s35, v13')
    a('v_bfe_u32 v14, v11, 3, 1')
    a('v_lshlrev_b32 v14, 2, v14')
    a('v_xor_b32 v13, v13, v14')
    a('v_lshlrev_b32 v13, 4, v13')
    a('v_add_u32 v12, v12, v13')
    a('v_and_b32 v13, 1, v11')
    a('v_lshlrev_b32 v13, 3, v13')
    a('v_add_u32 v12, v12, v13')
    a('v_add_u32 v20, 16384, v12')
    for i in range(64, 128):
        a(f'v_mov_b32 v{i}, 0')
    a('s_mov_b32 s40, 0')
    a('s_mov_b32 s41, 0')

    NST = P['g1_nst']
    PD = NST - 1
    NSTEP = 16

    def dma_one(stage, idx):
        if idx < 4:
            a(f's_add_u32 m0, s38, {stage*STAGE + idx*1024}')
            a('s_nop 0')
            if P.get('vgprload'):
                a(f'buffer_load_dwordx4 v[{96+idx*4}:{99+idx*4}], v{2+idx}, s[{sA}:{sA+3}], s40 offen')
            else:
                a(f'buffer_load_dwordx4 v{2+idx}, s[{sA}:{sA+3}], s40 offen lds')
        else:
            i = idx - 4
            a(f's_add_u32 m0, s38, {stage*STAGE + 16384 + i*1024}')
            a('s_nop 0')
            if P.get('vgprload'):
                a(f'buffer_load_dwordx4 v[{96+idx*4}:{99+idx*4}], v{6+i}, s[{sB}:{sB+3}], s41 offen')
            else:
                a(f'buffer_load_dwordx4 v{6+i}, s[{sB}:{sB+3}], s41 offen lds')
        if idx == 7:
            a('s_add_u32 s40, s40, %d' % (16384 if P.get('contigA') else 128))
            a('s_add_u32 s41, s41, s37')

    addr_hi = {}
    def reads(stage, ks, st):
        if P.get('noreads'):
            return
        base = 32 + st * 16
        off = stage * STAGE
        xa, wa = 16 + ks, 20
        if off >= 65536 - 8192:
            xa, wa = 24 + ks, 28
            off -= 65536
            off += 65536
        for mb in range(2):
            o = stage*STAGE + mb*4096
            if stage >= 2:
                a(f'ds_read_b128 v[{base+mb*4}:{base+mb*4+3}], v{24+ks} offset:{o - 65536}')
            else:
                a(f'ds_read_b128 v[{base+mb*4}:{base+mb*4+3}], v{16+ks} offset:{o}')
        for t in range(2):
            for half in range(2):
                r = base + 8 + t * 4 + half * 2
                o = stage*STAGE + t*8192 + ks*2048 + half*512
                if stage >= 2:
                    a(f'ds_read_b64_tr_b16 v[{r}:{r+1}], v28 offset:{o - 65536}')
                else:
                    a(f'ds_read_b64_tr_b16 v[{r}:{r+1}], v20 offset:{o}')

    for ks in range(4):
        a(f'v_add_u32 v{24+ks}, 0x10000, v{16+ks}')
    a('v_add_u32 v28, 0x10000, v20')

    for s in range(PD):
        for idx in range(8):
            dma_one(s % NST, idx)
    for s in range(NSTEP):
        stage = s % NST
        newer = min(PD - 1, NSTEP - 1 - s)
        a(f's_waitcnt vmcnt({newer*8})')
        a('s_barrier')
        reads(stage, 0, 0)
        for ks in range(4):
            if ks < 3:
                reads(stage, ks + 1, (ks + 1) & 1)
            if s + PD < NSTEP:
                dma_one((s + PD) % NST, ks * 2)
                dma_one((s + PD) % NST, ks * 2 + 1)
            elif s + PD == NSTEP and ks == 0:
                pass
            a(f's_waitcnt lgkmcnt({6 if ks < 3 else 0})')
            base = 32 + (ks & 1) * 16
            for t in range(2):
                for mb in range(2):
                    acc = 64 + (t * 2 + mb) * 16
                    if not P.get('nomfma'):
                        a(f'v_mfma_f32_32x32x16_bf16 v[{acc}:{acc+15}], v[{base+8+t*4}:{base+8+t*4+3}], v[{base+mb*4}:{base+mb*4+3}], v[{acc}:{acc+15}]')
        a('s_nop 15')
    a('v_and_b32 v10, 31, v0')
    a('s_lshl_b32 s34, s27, 7')
    a('s_lshl_b32 s35, s30, 6')
    a('s_add_u32 s34, s34, s35')
    a('v_add_u32 v10, s34, v10')
    a('v_lshrrev_b32 v11, 5, v0')
    a('v_lshlrev_b32 v11, 3, v11')
    a('s_lshl_b32 s35, s31, 6')
    a('v_add_u32 v11, s35, v11')
    a('s_cmp_lt_u32 s28, 24')
    a('s_cbranch_scc0 G1_epi_ffn')
    srd_from(a, sO, 22, 2048 * LD_QKV, QKV_OFF)
    a('s_mov_b32 s36, %d' % LD_QKV)
    a('v_mul_lo_u32 v10, v10, s36')
    a('v_add_u32 v10, v10, v11')
    a('s_lshl_b32 s35, s28, 8')
    a('v_add_u32 v10, s35, v10')
    a(f'v_add_u32 v11, {32*LD_QKV}, v10')
    for t in range(2):
        for mb in range(2):
            acc = 64 + (t * 2 + mb) * 16
            for rq in range(4):
                a(f'v_cvt_pk_bf16_f32 v12, v{acc+rq*4}, v{acc+rq*4+1}')
                a(f'v_cvt_pk_bf16_f32 v13, v{acc+rq*4+2}, v{acc+rq*4+3}')
                a(f'buffer_store_dwordx2 v[12:13], v{10+mb}, s[{sO}:{sO+3}], 0 offen offset:{t*128 + rq*16}')
                a('s_nop 0')
    a('s_branch G1_done')
    a.label('G1_epi_ffn')
    srd_from(a, sO, 22, 2048 * LD_OH, OH_OFF)
    a('s_mov_b32 s36, %d' % LD_OH)
    a('v_mul_lo_u32 v10, v10, s36')
    a('v_add_u32 v10, v10, v11')
    a('s_sub_u32 s35, s28, 24')
    a('s_lshl_b32 s35, s35, 7')
    a('s_add_u32 s35, s35, 2048')
    a('v_add_u32 v10, s35, v10')
    a(f'v_add_u32 v11, {32*LD_OH}, v10')
    for mb in range(2):
        g = 64 + (0 * 2 + mb) * 16
        u = 64 + (1 * 2 + mb) * 16
        for rq in range(4):
            for p in range(2):
                r = rq * 4 + p * 2
                a(f'v_cvt_pk_bf16_f32 v14, v{g+r}, v{g+r+1}')
                a(f'v_cvt_pk_bf16_f32 v15, v{u+r}, v{u+r+1}')
                a('v_lshlrev_b32 v16, 16, v14')
                a('v_and_b32 v17, 0xffff0000, v14')
                a('v_lshlrev_b32 v18, 16, v15')
                a('v_and_b32 v19, 0xffff0000, v15')
                a('v_max_f32 v16, 0, v16')
                a('v_max_f32 v17, 0, v17')
                a('v_mul_f32 v16, v16, v18')
                a('v_mul_f32 v17, v17, v19')
                a(f'v_cvt_pk_bf16_f32 v{12+p}, v16, v17')
            a(f'buffer_store_dwordx2 v[12:13], v{10+mb}, s[{sO}:{sO+3}], 0 offen offset:{rq*16}')
            a('s_nop 0')
    a.label('G1_done')
    a('s_endpgm')
    return kernel_desc(name, 128, 48)


def gen_attn(a):
    name = 'attn_kernel'
    kernel_header(a, name)
    sQ, sO = 4, 8
    KOFF, VOFF = 0, 20480
    a('s_cmp_ge_u32 s2, 1024')
    a('s_cbranch_scc1 AT_pf' if P.get('pf') else 's_cbranch_scc1 AT_done')
    a('s_load_dwordx2 s[16:17], s[0:1], 72')
    a('v_lshrrev_b32 v1, 6, v0')
    a('v_and_b32 v0, 63, v0')
    a('s_nop 0')
    a('v_readfirstlane_b32 s24, v1')
    a('s_and_b32 s25, s2, 31')
    a('s_lshr_b32 s26, s2, 5')
    a('s_lshl_b32 s27, s26, 6')
    a('s_waitcnt lgkmcnt(0)')
    srd_from(a, sQ, 16, 2048 * LD_QKV, QKV_OFF)
    srd_from(a, sO, 16, 2048 * LD_OH, OH_OFF)
    a('v_lshrrev_b32 v10, 2, v0')
    a('v_and_b32 v11, 3, v0')
    a('s_lshl_b32 s28, s24, 4')
    a('s_add_u32 s28, s28, s27')
    a('s_sub_u32 s28, s28, 256')
    a('v_add_u32 v10, s28, v10')
    a('s_mov_b32 s29, %d' % LD_QKV)
    a('v_mul_lo_u32 v10, v10, s29')
    a('v_lshlrev_b32 v11, 4, v11')
    a('v_add_u32 v10, v10, v11')
    a('s_lshl_b32 s30, s25, 6')
    a('v_add_u32 v10, s30, v10')
    a('v_add_u32 v12, 2048, v10')
    a('v_add_u32 v13, 4096, v10')
    a('s_lshl_b32 s31, s24, 10')
    a('s_mov_b32 s33, 0')
    for j in range(5):
        a(f's_add_u32 m0, s31, {KOFF + j*4096}')
        a('s_nop 0')
        a(f'buffer_load_dwordx4 v12, s[{sQ}:{sQ+3}], s33 offen lds')
        a(f's_add_u32 m0, s31, {VOFF + j*4096}')
        a('s_nop 0')
        a(f'buffer_load_dwordx4 v13, s[{sQ}:{sQ+3}], s33 offen lds')
        if j < 4:
            a(f'v_add_u32 v12, {64*LD_QKV}, v12')
            a(f'v_add_u32 v13, {64*LD_QKV}, v13')
    a('v_and_b32 v14, 15, v0')
    a('s_lshl_b32 s28, s24, 4')
    a('s_add_u32 s28, s28, s27')
    a('v_add_u32 v15, s28, v14')
    a('v_mul_lo_u32 v16, v15, s29')
    a('v_lshrrev_b32 v17, 4, v0')
    a('v_lshlrev_b32 v18, 4, v17')
    a('v_add_u32 v16, v16, v18')
    a('v_add_u32 v16, s30, v16')
    a(f'buffer_load_dwordx4 v[4:7], v16, s[{sQ}:{sQ+3}], 0 offen')
    a('v_lshlrev_b32 v20, 6, v14')
    a('v_add_u32 v20, v20, v18')
    a('v_add_u32 v20, s31, v20')
    a('v_lshlrev_b32 v21, 2, v17')
    a('v_lshrrev_b32 v22, 2, v14')
    a('v_add_u32 v21, v21, v22')
    a('v_lshlrev_b32 v21, 6, v21')
    a('v_and_b32 v22, 3, v14')
    a('v_lshlrev_b32 v22, 3, v22')
    a('v_add_u32 v21, v21, v22')
    a('v_add_u32 v21, s31, v21')
    a(f'v_add_u32 v21, {VOFF}, v21')
    a('s_waitcnt vmcnt(0)')
    a('s_barrier')
    NT = 17
    SB = 56
    for t in range(3):
        a(f'ds_read_b128 v[{24+t*4}:{24+t*4+3}], v20 offset:{KOFF + t*1024}')
    for t in range(NT):
        if t + 3 < NT:
            r = 24 + ((t + 3) & 3) * 4
            a(f'ds_read_b128 v[{r}:{r+3}], v20 offset:{KOFF + (t+3)*1024}')
        a(f's_waitcnt lgkmcnt({min(3, NT-1-t)})')
        rp = 24 + (t & 3) * 4
        a(f'v_mfma_f32_16x16x32_bf16 v[{SB+t*4}:{SB+t*4+3}], v[{rp}:{rp+3}], v[4:7], 0')
    a('v_add_u32 v22, 1, v14')
    a('s_sub_u32 s34, 256, s28')
    a('v_max_i32 v22, s34, v22')
    a('v_add_u32 v23, 256, v14')
    a('v_sub_u32 v23, v23, v22')
    a('v_lshlrev_b32 v40, 2, v17')
    a('v_sub_u32 v22, v40, v22')
    a('s_nop 7')
    a('v_mov_b32 v41, 0xf149f2ca')
    a('v_mov_b32 v42, 0xf149f2ca')
    a('s_mov_b32 s35, 0x3e3504f3')
    a('s_cmp_lt_u32 s28, 256')
    a('s_cbranch_scc1 AT_slow')
    for path in ('fast', 'slow'):
        if path == 'slow':
            a.label('AT_slow')
        for t in range(NT):
            for p in range(2):
                s = SB + t * 4 + p * 2
                a(f'v_cvt_pk_bf16_f32 v43, v{s}, v{s+1}')
                a(f'v_lshlrev_b32 v{s}, 16, v43')
                a(f'v_and_b32 v{s+1}, 0xffff0000, v43')
                a(f'v_mul_f32 v{s}, s35, v{s}')
                a(f'v_mul_f32 v{s+1}, s35, v{s+1}')
                a(f'v_cvt_pk_bf16_f32 v43, v{s}, v{s+1}')
                a(f'v_lshlrev_b32 v{s}, 16, v43')
                a(f'v_and_b32 v{s+1}, 0xffff0000, v43')
                if path == 'slow' or t == 0 or t == NT - 1:
                    for r in range(2):
                        a(f'v_add_u32 v44, {16*t + p*2 + r}, v22')
                        a('v_cmp_le_u32 vcc, v44, v23')
                        a('s_nop 1')
                        a(f'v_cndmask_b32 v{s+r}, v41, v{s+r}, vcc')
                a(f'v_max3_f32 v42, v42, v{s}, v{s+1}')
        if path == 'fast':
            a('s_branch AT_join')
    a.label('AT_join')
    a('ds_swizzle_b32 v43, v42 offset:0x401F')
    a('s_waitcnt lgkmcnt(0)')
    a('v_max_f32 v42, v42, v43')
    a('v_lshlrev_b32 v45, 2, v0')
    a('v_xor_b32 v45, 128, v45')
    a('ds_bpermute_b32 v43, v45, v42')
    a('s_waitcnt lgkmcnt(0)')
    a('v_max_f32 v42, v42, v43')
    a('s_mov_b32 s36, 0x3fb8aa3b')
    a('v_mul_f32 v42, s36, v42')
    a('v_mov_b32 v46, 0')
    a('v_mov_b32 v47, s36')
    for t in range(NT):
        for r in range(4):
            s = SB + t * 4 + r
            a(f'v_fma_f32 v{s}, v{s}, v47, -v42')
            a(f'v_exp_f32 v{s}, v{s}')
        for r in range(4):
            s = SB + t * 4 + r
            a(f'v_add_f32 v46, v46, v{s}')
    a('ds_swizzle_b32 v43, v46 offset:0x401F')
    a('s_waitcnt lgkmcnt(0)')
    a('v_add_f32 v46, v46, v43')
    a('ds_bpermute_b32 v43, v45, v46')
    a('s_waitcnt lgkmcnt(0)')
    a('v_add_f32 v46, v46, v43')
    a('v_rcp_f32 v46, v46')
    a('s_nop 0')
    for t in range(NT):
        s = SB + t * 4
        for r in range(4):
            a(f'v_mul_f32 v{s+r}, v{s+r}, v46')
        a(f'v_cvt_pk_bf16_f32 v{SB+t*2}, v{s}, v{s+1}')
        a(f'v_cvt_pk_bf16_f32 v{SB+1+t*2}, v{s+2}, v{s+3}')
    for i in range(48, 56):
        a(f'v_mov_b32 v{i}, 0')
    def vreads(tp):
        t0 = tp * 2
        rb = 24 + (tp & 1) * 8
        for dhh in range(2):
            a(f'ds_read_b64_tr_b16 v[{rb+dhh*4}:{rb+dhh*4+1}], v21 offset:{t0*1024 + dhh*32}')
            a(f'ds_read_b64_tr_b16 v[{rb+dhh*4+2}:{rb+dhh*4+3}], v21 offset:{(t0+1)*1024 + dhh*32}')
    vreads(0)
    for tp in range(8):
        t0 = tp * 2
        rb = 24 + (tp & 1) * 8
        if tp < 7:
            vreads(tp + 1)
            a('s_waitcnt lgkmcnt(4)')
        else:
            a('s_waitcnt lgkmcnt(0)')
        for dhh in range(2):
            a(f'v_mfma_f32_16x16x32_bf16 v[{48+dhh*4}:{48+dhh*4+3}], v[{rb+dhh*4}:{rb+dhh*4+3}], v[{SB+t0*2}:{SB+t0*2+3}], v[{48+dhh*4}:{48+dhh*4+3}]')
    for dhh in range(2):
        a(f'ds_read_b64_tr_b16 v[{24+dhh*2}:{24+dhh*2+1}], v21 offset:{16*1024 + dhh*32}')
    a('s_waitcnt lgkmcnt(0)')
    for dhh in range(2):
        a(f'v_mfma_f32_16x16x16_bf16 v[{48+dhh*4}:{48+dhh*4+3}], v[{24+dhh*2}:{24+dhh*2+1}], v[{SB+32}:{SB+33}], v[{48+dhh*4}:{48+dhh*4+3}]')
    a('s_nop 15')
    a('s_mov_b32 s29, %d' % LD_OH)
    a('v_mul_lo_u32 v16, v15, s29')
    a('v_lshlrev_b32 v18, 3, v17')
    a('v_add_u32 v16, v16, v18')
    a('v_add_u32 v16, s30, v16')
    for dhh in range(2):
        a(f'v_cvt_pk_bf16_f32 v12, v{48+dhh*4}, v{49+dhh*4}')
        a(f'v_cvt_pk_bf16_f32 v13, v{50+dhh*4}, v{51+dhh*4}')
        a(f'buffer_store_dwordx2 v[12:13], v16, s[{sO}:{sO+3}], 0 offen offset:{dhh*32}')
        a('s_nop 0')
    if P.get('pf'):
        a('s_branch AT_done')
        emit_prefetch(a, 'AT_pf', 'AT_done', 1024, [(16, 16), (48, 56)])
        a('s_waitcnt vmcnt(0)')
    a.label('AT_done')
    a('s_endpgm')
    return kernel_desc(name, 128, 48)


def gen_gemm2(a):
    name = 'gemm2_kernel'
    kernel_header(a, name)
    STAGE = 24576
    NST = 4
    sA, sB, sO, sX = 4, 8, 12, 44
    a('s_cmp_ge_u32 s2, 256')
    a('s_cbranch_scc1 G2_done')
    a('s_load_dwordx2 s[16:17], s[0:1], 16')
    a('s_load_dwordx2 s[18:19], s[0:1], 48')
    a('s_load_dwordx2 s[20:21], s[0:1], 0')
    a('s_load_dwordx2 s[22:23], s[0:1], 72')
    a('s_load_dwordx2 s[48:49], s[0:1], 56')
    a('v_lshrrev_b32 v1, 6, v0')
    a('v_and_b32 v0, 63, v0')
    a('s_nop 0')
    a('v_readfirstlane_b32 s24, v1')
    a('s_and_b32 s25, s2, 7')
    a('s_lshr_b32 s26, s2, 3')
    a('s_and_b32 s27, s26, 1')
    a('s_lshl_b32 s29, s25, 1')
    a('s_add_u32 s27, s27, s29')
    a('s_lshr_b32 s28, s26, 1')
    a('s_lshr_b32 s30, s24, 1')
    a('s_and_b32 s31, s24, 1')
    a('s_waitcnt lgkmcnt(0)')
    srd_from(a, sA, 22, 2048 * LD_OH, OH_OFF)
    srd_from(a, sB, 16, 1024 * 2048)
    srd_from(a, sO, 48, 2048 * 2048)
    srd_from(a, sX, 20, 2048 * 2048)
    a('v_lshrrev_b32 v10, 3, v0')
    a('v_and_b32 v11, 7, v0')
    a('v_lshrrev_b32 v12, 4, v0')
    a('s_lshl_b32 s34, s27, 7')
    a('s_lshl_b32 s35, s24, 5')
    a('s_add_u32 s34, s34, s35')
    a('v_add_u32 v13, s34, v10')
    a('s_mov_b32 s36, %d' % LD_OH)
    a('v_mul_lo_u32 v13, v13, s36')
    a('v_xor_b32 v14, v11, v12')
    a('v_lshlrev_b32 v14, 4, v14')
    a('v_xor_b32 v15, 4, v11')
    a('v_xor_b32 v15, v15, v12')
    a('v_lshlrev_b32 v15, 4, v15')
    a('v_add_u32 v2, v13, v14')
    a('v_add_u32 v3, v13, v15')
    a(f'v_add_u32 v3, {8*LD_OH}, v3')
    a(f'v_add_u32 v4, {16*LD_OH}, v2')
    a(f'v_add_u32 v5, {16*LD_OH}, v3')
    a('s_lshl_b32 s35, s24, 4')
    a('v_add_u32 v13, s35, v10')
    a('v_lshlrev_b32 v13, 11, v13')
    a('v_and_b32 v14, 1, v12')
    a('v_lshlrev_b32 v14, 2, v14')
    a('v_xor_b32 v14, v14, v11')
    a('v_lshlrev_b32 v14, 4, v14')
    a('v_add_u32 v13, v13, v14')
    a('s_lshl_b32 s33, s28, 7')
    a('v_add_u32 v6, s33, v13')
    a('v_add_u32 v7, 0x4000, v6')
    a('s_lshl_b32 s38, s24, 12')
    a('s_lshl_b32 s39, s24, 11')
    a('v_and_b32 v10, 31, v0')
    a('s_lshl_b32 s35, s30, 6')
    a('v_add_u32 v10, s35, v10')
    a('v_lshrrev_b32 v11, 1, v10')
    a('v_and_b32 v11, 7, v11')
    a('v_lshrrev_b32 v12, 5, v0')
    a('v_lshlrev_b32 v10, 7, v10')
    a('s_lshl_b32 s35, s31, 2')
    for j in range(2):
        a(f'v_add_u32 v13, {j*2}, v12')
        a('v_add_u32 v13, s35, v13')
        a('v_xor_b32 v13, v13, v11')
        a('v_lshlrev_b32 v13, 4, v13')
        a(f'v_add_u32 v{16+j}, v10, v13')
    a('v_lshrrev_b32 v10, 4, v0')
    a('v_and_b32 v11, 15, v0')
    a('v_lshrrev_b32 v12, 1, v10')
    a('v_lshlrev_b32 v12, 3, v12')
    a('v_lshrrev_b32 v13, 2, v11')
    a('v_add_u32 v12, v12, v13')
    a('v_lshlrev_b32 v12, 7, v12')
    a('v_and_b32 v13, 1, v10')
    a('v_lshlrev_b32 v13, 1, v13')
    a('v_bfe_u32 v14, v11, 1, 1')
    a('v_add_u32 v13, v13, v14')
    a('v_bfe_u32 v14, v11, 3, 1')
    a('v_lshlrev_b32 v14, 2, v14')
    a('v_and_b32 v15, 1, v11')
    a('v_lshlrev_b32 v15, 3, v15')
    a('v_add_u32 v12, v12, v15')
    a('s_lshl_b32 s35, s31, 12')
    a('v_add_u32 v12, s35, v12')
    a('v_add_u32 v12, 16384, v12')
    for t in range(2):
        a(f'v_add_u32 v15, {t*4}, v13')
        a('v_xor_b32 v15, v15, v14')
        a('v_lshlrev_b32 v15, 4, v15')
        a(f'v_add_u32 v{20+t}, v12, v15')
    a('v_add_u32 v18, 49152, v16')
    a('v_add_u32 v19, 49152, v17')
    a('v_add_u32 v22, 49152, v20')
    a('v_add_u32 v23, 49152, v21')
    for i in range(64, 128):
        a(f'v_mov_b32 v{i}, 0')
    a('s_mov_b32 s40, 0')
    a('s_mov_b32 s41, 0')
    a('s_mov_b32 s43, 0')

    def dma(stage):
        a('s_cmp_eq_u32 s43, 16')
        a('s_cselect_b32 s8, s18, s8')
        a('s_cselect_b32 s9, s19, s9')
        a('s_cselect_b32 s10, %d, s10' % (3584 * 2048))
        a('s_cselect_b32 s41, 0, s41')
        for i in range(4):
            a(f's_add_u32 m0, s38, {stage*STAGE + i*1024}')
            a('s_nop 0')
            a(f'buffer_load_dwordx4 v{2+i}, s[{sA}:{sA+3}], s40 offen lds')
        for i in range(2):
            a(f's_add_u32 m0, s39, {stage*STAGE + 16384 + i*1024}')
            a('s_nop 0')
            a(f'buffer_load_dwordx4 v{6+i}, s[{sB}:{sB+3}], s41 offen lds')
        a('s_add_u32 s40, s40, 128')
        a('s_add_u32 s41, s41, 0x20000')
        a('s_add_u32 s43, s43, 1')

    def compute(stage):
        for j in range(2):
            base = 32 + j * 16
            for mb in range(2):
                a(f'ds_read_b128 v[{base+mb*4}:{base+mb*4+3}], v{16+j+2*(stage>>1)} offset:{(stage&1)*STAGE + mb*4096}')
            for t in range(2):
                for half in range(2):
                    r = base + 8 + t * 4 + half * 2
                    a(f'ds_read_b64_tr_b16 v[{r}:{r+1}], v{20+t+2*(stage>>1)} offset:{(stage&1)*STAGE + j*2048 + half*512}')
        for j in range(2):
            a(f's_waitcnt lgkmcnt({6 if j == 0 else 0})')
            base = 32 + j * 16
            for t in range(2):
                for mb in range(2):
                    acc = 64 + (t * 2 + mb) * 16
                    a(f'v_mfma_f32_32x32x16_bf16 v[{acc}:{acc+15}], v[{base+8+t*4}:{base+8+t*4+3}], v[{base+mb*4}:{base+mb*4+3}], v[{acc}:{acc+15}]')

    for s in range(3):
        dma(s)
    a('s_mov_b32 s42, 0')
    a.label('G2_loop')
    for u in range(NST):
        a('s_waitcnt vmcnt(12)')
        a('s_barrier')
        a('s_cmp_ge_u32 s43, 72')
        a(f's_cbranch_scc1 G2_nl{u}')
        dma((u + 3) % NST)
        a(f's_branch G2_c{u}')
        a.label(f'G2_nl{u}')
        a('s_waitcnt vmcnt(0)')
        a('s_barrier')
        a.label(f'G2_c{u}')
        compute(u)
    a('s_add_u32 s42, s42, 4')
    a('s_cmp_lt_u32 s42, 72')
    a('s_cbranch_scc1 G2_loop')
    a('s_nop 15')
    a('s_barrier')
    a('v_lshlrev_b32 v10, 2, v0')
    a('s_xor_b32 s35, s24, 1')
    a('s_lshl_b32 s35, s35, 13')
    a('v_add_u32 v10, s35, v10')
    a('v_lshlrev_b32 v11, 2, v0')
    a('s_lshl_b32 s35, s24, 13')
    a('v_add_u32 v11, s35, v11')
    a('s_cmp_eq_u32 s31, 0')
    a('s_cbranch_scc0 G2_x1')
    for t in range(2):
        acc = 64 + (t * 2 + 1) * 16
        for r in range(16):
            a(f'ds_write_b32 v10, v{acc+r} offset:{(t*16+r)*256}')
    a('s_branch G2_x2')
    a.label('G2_x1')
    for t in range(2):
        acc = 64 + (t * 2 + 0) * 16
        for r in range(16):
            a(f'ds_write_b32 v10, v{acc+r} offset:{(t*16+r)*256}')
    for t in range(2):
        for r in range(16):
            a(f'v_mov_b32 v{64+(t*2)*16+r}, v{64+(t*2+1)*16+r}')
    a.label('G2_x2')
    a('s_waitcnt lgkmcnt(0)')
    a('s_barrier')
    for t in range(2):
        for r in range(16):
            a(f'ds_read_b32 v{32+(r&7)}, v11 offset:{(t*16+r)*256}')
            if (r & 7) == 7:
                a('s_waitcnt lgkmcnt(0)')
                for rr in range(r - 7, r + 1):
                    a(f'v_add_f32 v{64+(t*2)*16+rr}, v{64+(t*2)*16+rr}, v{32+(rr&7)}')
    a('v_and_b32 v10, 31, v0')
    a('s_lshl_b32 s34, s27, 7')
    a('s_lshl_b32 s35, s30, 6')
    a('s_add_u32 s34, s34, s35')
    a('s_lshl_b32 s35, s31, 5')
    a('s_add_u32 s34, s34, s35')
    a('v_add_u32 v10, s34, v10')
    a('v_lshlrev_b32 v10, 11, v10')
    a('v_lshrrev_b32 v11, 5, v0')
    a('v_lshlrev_b32 v11, 3, v11')
    a('v_add_u32 v10, v10, v11')
    a('v_add_u32 v10, s33, v10')
    for t in range(2):
        for rq in range(4):
            a(f'buffer_load_dwordx2 v[{32+(t*4+rq)*2}:{33+(t*4+rq)*2}], v10, s[{sX}:{sX+3}], 0 offen offset:{t*64 + rq*16}')
    a('s_waitcnt vmcnt(0)')
    for t in range(2):
        acc = 64 + (t * 2) * 16
        for rq in range(4):
            xr = 32 + (t * 4 + rq) * 2
            a(f'v_lshlrev_b32 v12, 16, v{xr}')
            a(f'v_and_b32 v13, 0xffff0000, v{xr}')
            a(f'v_lshlrev_b32 v14, 16, v{xr+1}')
            a(f'v_and_b32 v15, 0xffff0000, v{xr+1}')
            for q in range(4):
                a(f'v_add_f32 v{12+q}, v{12+q}, v{acc+rq*4+q}')
            a('v_cvt_pk_bf16_f32 v12, v12, v13')
            a('v_cvt_pk_bf16_f32 v13, v14, v15')
            a(f'buffer_store_dwordx2 v[12:13], v10, s[{sO}:{sO+3}], 0 offen offset:{t*64 + rq*16}')
            a('s_nop 0')
    a.label('G2_done')
    a('s_endpgm')
    return kernel_desc(name, 128, 56)


def gen_gemm1v2(a):
    name = 'gemm1_kernel'
    kernel_header(a, name)
    STAGE = 73728
    BOFF = 32768
    sA, sO = 4, 12
    a('s_cmp_ge_u32 s2, 256')
    a('s_cbranch_scc1 G1_done')
    a('s_load_dwordx2 s[16:17], s[0:1], 8')
    a('s_load_dwordx2 s[18:19], s[0:1], 32')
    a('s_load_dwordx2 s[20:21], s[0:1], 40')
    a('s_load_dwordx2 s[22:23], s[0:1], 72')
    a('v_lshrrev_b32 v1, 6, v0')
    a('v_and_b32 v0, 63, v0')
    a('s_nop 0')
    a('v_readfirstlane_b32 s24, v1')
    a('s_and_b32 s25, s2, 7')
    a('s_lshr_b32 s26, s2, 3')
    a('s_and_b32 s27, s26, 7')
    a('s_lshr_b32 s28, s26, 3')
    a('s_lshl_b32 s29, s25, 2')
    a('s_add_u32 s28, s28, s29')
    a('s_lshr_b32 s30, s24, 1')
    a('s_and_b32 s31, s24, 1')
    a('s_waitcnt lgkmcnt(0)')
    srd_from(a, sA, 22, 2048 * 2048, XN_OFF)
    a('v_lshrrev_b32 v10, 3, v0')
    a('v_and_b32 v11, 7, v0')
    a('v_lshrrev_b32 v12, 4, v0')
    a('s_lshl_b32 s34, s27, 8')
    a('s_lshl_b32 s35, s24, 5')
    a('s_add_u32 s34, s34, s35')
    a('v_add_u32 v13, s34, v10')
    a('v_lshlrev_b32 v13, 11, v13')
    a('v_xor_b32 v14, v11, v12')
    a('v_lshlrev_b32 v14, 4, v14')
    a('v_xor_b32 v15, 4, v11')
    a('v_xor_b32 v15, v15, v12')
    a('v_lshlrev_b32 v15, 4, v15')
    a('v_add_u32 v2, v13, v14')
    a('v_add_u32 v3, v13, v15')
    a('v_add_u32 v3, 0x4000, v3')
    a('v_add_u32 v4, 0x8000, v2')
    a('v_add_u32 v5, 0x8000, v3')
    a('s_mul_i32 s34, s28, 192')
    a('s_mul_i32 s35, s28, 224')
    for i in range(5):
        A0, A1, ST = 6 + 2 * i, 7 + 2 * i, 16 + i
        a(f'v_add_u32 v21, {64*i}, v0')
        a('v_mul_u32_u24 v22, 0xcccd, v21')
        a('v_lshrrev_b32 v22, 21, v22')
        a('v_mul_u32_u24 v23, 40, v22')
        a('v_sub_u32 v23, v21, v23')
        a('s_lshl_b32 s36, s24, 3')
        a('v_add_u32 v22, s36, v22')
        a('v_bfe_u32 v21, v22, 1, 1')
        a('v_bfe_u32 v24, v22, 3, 1')
        a('v_lshlrev_b32 v24, 1, v24')
        a('v_add_u32 v21, v21, v24')
        a('v_lshlrev_b32 v21, 1, v21')
        a('v_xor_b32 v23, v23, v21')
        a('v_lshlrev_b32 v24, 4, v23')
        a('v_add_u32 v25, s35, v24')
        a(f'v_subrev_u32 v26, {16*30 - 64}, v25')
        a('v_mov_b32 v27, s20')
        a('v_mov_b32 v28, s21')
        a('v_mov_b32 v29, 7168')
        a('v_cmp_gt_u32 vcc, 30, v23')
        a('s_nop 1')
        a(f'v_subrev_u32 v21, {16*20 - 64}, v25')
        a('v_cndmask_b32 v26, v26, v21, vcc')
        a('v_mov_b32 v21, s18')
        a('v_cndmask_b32 v27, v27, v21, vcc')
        a('v_mov_b32 v21, s19')
        a('v_cndmask_b32 v28, v28, v21, vcc')
        a('v_cmp_gt_u32 vcc, 20, v23')
        a('s_nop 1')
        a(f'v_subrev_u32 v21, {16*16}, v25')
        a('v_cndmask_b32 v26, v26, v21, vcc')
        a('v_mov_b32 v21, s20')
        a('v_cndmask_b32 v27, v27, v21, vcc')
        a('v_mov_b32 v21, s21')
        a('v_cndmask_b32 v28, v28, v21, vcc')
        a('v_cmp_gt_u32 vcc, 16, v23')
        a('s_nop 1')
        a(f'v_subrev_u32 v21, {16*12}, v25')
        a('v_cndmask_b32 v26, v26, v21, vcc')
        a('v_mov_b32 v21, s18')
        a('v_cndmask_b32 v27, v27, v21, vcc')
        a('v_mov_b32 v21, s19')
        a('v_cndmask_b32 v28, v28, v21, vcc')
        a('v_cmp_gt_u32 vcc, 12, v23')
        a('s_nop 1')
        a('v_add_u32 v21, s34, v24')
        a('v_cndmask_b32 v26, v26, v21, vcc')
        a('v_mov_b32 v21, s16')
        a('v_cndmask_b32 v27, v27, v21, vcc')
        a('v_mov_b32 v21, s17')
        a('v_cndmask_b32 v28, v28, v21, vcc')
        a('v_mov_b32 v21, 6144')
        a('v_cndmask_b32 v29, v29, v21, vcc')
        a('v_mul_lo_u32 v21, v22, v29')
        a('v_add_u32 v21, v21, v26')
        a(f'v_add_co_u32 v{A0}, vcc, v27, v21')
        a('s_nop 1')
        a(f'v_addc_co_u32 v{A1}, vcc, 0, v28, vcc')
        a(f'v_lshlrev_b32 v{ST}, 6, v29')
    a('s_lshl_b32 s38, s24, 12')
    a('s_mul_i32 s39, s24, 5120')
    a('v_and_b32 v24, 15, v0')
    a('v_lshrrev_b32 v25, 4, v0')
    a('s_lshl_b32 s35, s30, 6')
    a('v_add_u32 v26, s35, v24')
    a('v_lshlrev_b32 v26, 7, v26')
    a('v_lshrrev_b32 v27, 1, v24')
    for ks in range(2):
        a(f'v_add_u32 v28, {ks*4}, v25')
        a('v_xor_b32 v28, v28, v27')
        a('v_lshlrev_b32 v28, 4, v28')
        a(f'v_add_u32 v{21+ks}, v26, v28')
    a('v_lshlrev_b32 v26, 3, v25')
    a('v_lshrrev_b32 v27, 2, v24')
    a('v_add_u32 v26, v26, v27')
    a('v_mul_u32_u24 v26, 640, v26')
    a('v_and_b32 v27, 1, v24')
    a('v_lshlrev_b32 v27, 3, v27')
    a('v_add_u32 v26, v26, v27')
    a(f'v_add_u32 v26, {BOFF}, v26')
    a('v_bfe_u32 v27, v24, 3, 1')
    a('v_lshlrev_b32 v27, 1, v27')
    a('v_and_b32 v32, 1, v25')
    a('v_lshlrev_b32 v32, 2, v32')
    a('v_add_u32 v27, v27, v32')
    a('v_bfe_u32 v32, v24, 1, 1')
    a('s_lshl_b32 s35, s31, 1')
    a('s_mul_i32 s36, s31, 10')
    for j in range(4):
        a(f's_add_u32 s37, s35, {j}')
        a('s_and_b32 s37, s37, 3')
        a('s_lshl_b32 s37, s37, 1')
        a('v_add_u32 v33, s37, v32')
        a('v_xor_b32 v33, v33, v27')
        a('v_lshlrev_b32 v33, 4, v33')
        a(f's_add_u32 s37, s36, {j}')
        a('s_lshr_b32 s37, s37, 2')
        a('s_lshl_b32 s37, s37, 7')
        a('v_add_u32 v33, s37, v33')
        a(f'v_add_u32 v{28+j}, v26, v33')
    a(f'v_add_u32 v23, {STAGE}, v21')
    a(f'v_add_u32 v24, {STAGE}, v22')
    for j in range(4):
        a(f'v_add_u32 v{32+j}, {STAGE}, v{28+j}')
    XF = 36
    WF = [52, 72]
    ACC = 96
    for i in range(ACC, 256):
        a(f'v_mov_b32 v{i}, 0')
    a('s_mov_b32 s40, 0')

    def dma_one(stage, idx):
        if idx < 4:
            a(f's_add_u32 m0, s38, {stage*STAGE + idx*1024}')
            a('s_nop 0')
            a(f'buffer_load_dwordx4 v{2+idx}, s[{sA}:{sA+3}], s40 offen lds')
        else:
            i = idx - 4
            a(f's_add_u32 m0, s39, {stage*STAGE + BOFF + i*1024}')
            a('s_nop 0')
            a(f'global_load_lds_dwordx4 v[{6+2*i}:{7+2*i}], off')
            a(f'v_add_co_u32 v{6+2*i}, vcc, v{6+2*i}, v{16+i}')
            a('s_nop 1')
            a(f'v_addc_co_u32 v{7+2*i}, vcc, 0, v{7+2*i}, vcc')
        if idx == 8:
            a('s_add_u32 s40, s40, 128')

    def xreads(stage, ks):
        for mb in range(4):
            a(f'ds_read_b128 v[{XF+mb*4}:{XF+mb*4+3}], v{21+ks+2*stage} offset:{mb*2048}')

    def wreads(stage, ks, hb, st):
        for bb in range(5):
            b = hb * 5 + bb
            for half in range(2):
                r = WF[st] + bb * 4 + half * 2
                a(f'ds_read_b64_tr_b16 v[{r}:{r+1}], v{28+4*stage+(b&3)} offset:{(b>>2)*128 + (ks*32 + half*4)*640}')

    def mfmas(hb, st, dmas):
        n = 0
        for bb in range(5):
            b = hb * 5 + bb
            for mb in range(4):
                acc = ACC + (b * 4 + mb) * 4
                a(f'v_mfma_f32_16x16x32_bf16 v[{acc}:{acc+3}], v[{WF[st]+bb*4}:{WF[st]+bb*4+3}], v[{XF+mb*4}:{XF+mb*4+3}], v[{acc}:{acc+3}]')
                n += 1
                if n % 4 == 0 and dmas:
                    dmas.pop(0)()

    NSTEP = 16
    for idx in range(9):
        dma_one(0, idx)
    for s in range(NSTEP):
        stage = s & 1
        a('s_waitcnt vmcnt(0)')
        a('s_barrier')
        dm = []
        if s + 1 < NSTEP:
            dm = [(lambda idx=idx: dma_one(stage ^ 1, idx)) for idx in range(9)]
        xreads(stage, 0)
        wreads(stage, 0, 0, 0)
        a('s_waitcnt lgkmcnt(0)')
        wreads(stage, 0, 1, 1)
        mfmas(0, 0, dm)
        a('s_waitcnt lgkmcnt(0)')
        wreads(stage, 1, 0, 0)
        mfmas(1, 1, dm)
        xreads(stage, 1)
        a('s_waitcnt lgkmcnt(0)')
        wreads(stage, 1, 1, 1)
        mfmas(0, 0, None)
        a('s_waitcnt lgkmcnt(0)')
        mfmas(1, 1, None)
        assert not dm
    a('s_nop 15')
    srd_from(a, sO, 22, 2048 * LD_OH, OH_OFF)
    a('v_and_b32 v10, 15, v0')
    a('s_lshl_b32 s34, s27, 8')
    a('s_lshl_b32 s35, s30, 6')
    a('s_add_u32 s34, s34, s35')
    a('v_add_u32 v10, s34, v10')
    a('v_lshrrev_b32 v11, 4, v0')
    a('v_lshlrev_b32 v11, 3, v11')
    a('s_mov_b32 s36, %d' % LD_OH)
    a('v_mul_lo_u32 v12, v10, s36')
    a('v_add_u32 v12, v12, v11')
    a('s_mul_i32 s35, s28, 224')
    a('s_add_u32 s35, s35, 2048')
    a('v_add_u32 v12, s35, v12')

    def hstore(gb, ub, foff_bytes):
        for mb in range(4):
            g = ACC + (gb * 4 + mb) * 4
            u = ACC + (ub * 4 + mb) * 4
            for p in range(2):
                a(f'v_cvt_pk_bf16_f32 v14, v{g+2*p}, v{g+2*p+1}')
                a(f'v_cvt_pk_bf16_f32 v15, v{u+2*p}, v{u+2*p+1}')
                a('v_lshlrev_b32 v16, 16, v14')
                a('v_and_b32 v17, 0xffff0000, v14')
                a('v_lshlrev_b32 v18, 16, v15')
                a('v_and_b32 v19, 0xffff0000, v15')
                a('v_max_f32 v16, 0, v16')
                a('v_max_f32 v17, 0, v17')
                a('v_mul_f32 v16, v16, v18')
                a('v_mul_f32 v17, v17, v19')
                a(f'v_cvt_pk_bf16_f32 v{20+p}, v16, v17')
            a(f'v_add_u32 v13, {mb*16*LD_OH}, v12')
            a(f'buffer_store_dwordx2 v[20:21], v13, s[{sO}:{sO+3}], 0 offen offset:{foff_bytes}')
            a('s_nop 0')

    a('s_cmp_eq_u32 s31, 0')
    a('s_cbranch_scc0 G1_epi1')
    hstore(6, 8, 0)
    hstore(7, 9, 32)
    srd_from(a, sO, 22, 2048 * LD_QKV, QKV_OFF)
    a('s_mov_b32 s36, %d' % LD_QKV)
    a('v_mul_lo_u32 v12, v10, s36')
    a('v_add_u32 v12, v12, v11')
    a('s_mul_i32 s35, s28, 192')
    a('v_add_u32 v12, s35, v12')
    for b in range(6):
        for mb in range(4):
            q = ACC + (b * 4 + mb) * 4
            a(f'v_cvt_pk_bf16_f32 v20, v{q}, v{q+1}')
            a(f'v_cvt_pk_bf16_f32 v21, v{q+2}, v{q+3}')
            a(f'v_add_u32 v13, {mb*16*LD_QKV}, v12')
            a(f'buffer_store_dwordx2 v[20:21], v13, s[{sO}:{sO+3}], 0 offen offset:{b*32}')
            a('s_nop 0')
    a('s_branch G1_done')
    a.label('G1_epi1')
    for bb in range(5):
        hstore(bb, 5 + bb, 64 + bb * 32)
    a.label('G1_done')
    a('s_endpgm')
    return kernel_desc(name, 256, 48)


class LdsSB:
    def __init__(self, a):
        self.a = a
        self.q = []
    def issue(self, tag):
        self.q.append(tag)
        assert len(self.q) <= 15
    def need(self, tags):
        last = -1
        for i, t in enumerate(self.q):
            if t in tags:
                last = i
        if last < 0:
            return
        n = len(self.q) - 1 - last
        self.a(f's_waitcnt lgkmcnt({n})')
        self.q = self.q[last + 1:]


def gen_gemm1v3(a):
    name = 'gemm1_kernel'
    kernel_header(a, name)
    STAGE = 36864
    BOFF = 16384
    NST = 4
    sA, sO = 4, 12
    a('s_cmp_ge_u32 s2, 256')
    a('s_cbranch_scc1 G1_done')
    a('s_load_dwordx2 s[16:17], s[0:1], 8')
    a('s_load_dwordx2 s[18:19], s[0:1], 32')
    a('s_load_dwordx2 s[20:21], s[0:1], 40')
    a('s_load_dwordx2 s[22:23], s[0:1], 72')
    a('v_lshrrev_b32 v1, 6, v0')
    a('v_and_b32 v0, 63, v0')
    a('s_nop 0')
    a('v_readfirstlane_b32 s24, v1')
    a('s_and_b32 s25, s2, 7')
    a('s_lshr_b32 s26, s2, 3')
    a('s_and_b32 s27, s26, 7')
    a('s_lshr_b32 s28, s26, 3')
    a('s_lshl_b32 s29, s25, 2')
    a('s_add_u32 s28, s28, s29')
    a('s_lshr_b32 s30, s24, 1')
    a('s_and_b32 s31, s24, 1')
    a('s_waitcnt lgkmcnt(0)')
    srd_from(a, sA, 22, 2048 * 2048, XN_OFF)
    a('v_lshrrev_b32 v10, 2, v0')
    a('v_and_b32 v11, 3, v0')
    a('v_lshrrev_b32 v12, 4, v0')
    a('v_sub_u32 v12, 0, v12')
    a('v_and_b32 v12, 3, v12')
    a('v_xor_b32 v11, v11, v12')
    a('v_lshlrev_b32 v11, 4, v11')
    a('s_lshl_b32 s34, s27, 8')
    a('s_lshl_b32 s35, s24, 5')
    a('s_add_u32 s34, s34, s35')
    a('v_add_u32 v13, s34, v10')
    a('v_lshlrev_b32 v13, 11, v13')
    a('v_add_u32 v2, v13, v11')
    a('v_add_u32 v3, 0x8000, v2')
    a('s_mul_i32 s34, s28, 192')
    a('s_mul_i32 s35, s28, 224')
    for i in range(3):
        A0, A1, ST = 6 + 2 * i, 7 + 2 * i, 16 + i
        a('s_lshl_b32 s36, s24, 6')
        a(f's_add_u32 s36, s36, {512*i}')
        a('v_add_u32 v21, s36, v0')
        a('v_mul_u32_u24 v22, 0xcccd, v21')
        a('v_lshrrev_b32 v22, 21, v22')
        a('v_mul_u32_u24 v23, 40, v22')
        a('v_sub_u32 v23, v21, v23')
        a('v_bfe_u32 v21, v22, 1, 1')
        a('v_bfe_u32 v24, v22, 3, 1')
        a('v_lshlrev_b32 v24, 1, v24')
        a('v_add_u32 v21, v21, v24')
        a('v_lshlrev_b32 v21, 1, v21')
        a('v_xor_b32 v23, v23, v21')
        a('v_lshlrev_b32 v24, 4, v23')
        a('v_add_u32 v25, s35, v24')
        a(f'v_subrev_u32 v26, {16*30 - 64}, v25')
        a('v_mov_b32 v27, s20')
        a('v_mov_b32 v28, s21')
        a('v_mov_b32 v29, 7168')
        for (lim, sub, lo, hi) in ((30, 16*20 - 64, 18, 19), (20, 16*16, 20, 21), (16, 16*12, 18, 19)):
            a(f'v_cmp_gt_u32 vcc, {lim}, v23')
            a(f'v_subrev_u32 v21, {sub}, v25')
            a('s_nop 0')
            a('v_cndmask_b32 v26, v26, v21, vcc')
            a(f'v_mov_b32 v21, s{lo}')
            a('v_cndmask_b32 v27, v27, v21, vcc')
            a(f'v_mov_b32 v21, s{hi}')
            a('v_cndmask_b32 v28, v28, v21, vcc')
        a('v_cmp_gt_u32 vcc, 12, v23')
        a('v_add_u32 v21, s34, v24')
        a('s_nop 0')
        a('v_cndmask_b32 v26, v26, v21, vcc')
        a('v_mov_b32 v21, s16')
        a('v_cndmask_b32 v27, v27, v21, vcc')
        a('v_mov_b32 v21, s17')
        a('v_cndmask_b32 v28, v28, v21, vcc')
        a('v_mov_b32 v21, 6144')
        a('v_cndmask_b32 v29, v29, v21, vcc')
        a('v_mul_lo_u32 v21, v22, v29')
        a('v_add_u32 v21, v21, v26')
        a(f'v_add_co_u32 v{A0}, vcc, v27, v21')
        a('s_nop 1')
        a(f'v_addc_co_u32 v{A1}, vcc, 0, v28, vcc')
        a(f'v_lshlrev_b32 v{ST}, 5, v29')
    a('s_lshl_b32 s38, s24, 11')
    a('s_lshl_b32 s39, s24, 10')
    a('v_and_b32 v24, 15, v0')
    a('v_lshrrev_b32 v25, 4, v0')
    a('s_lshl_b32 s35, s30, 6')
    a('v_add_u32 v26, s35, v24')
    a('v_lshlrev_b32 v26, 6, v26')
    a('v_lshrrev_b32 v27, 2, v24')
    a('v_sub_u32 v27, 0, v27')
    a('v_and_b32 v27, 3, v27')
    a('v_xor_b32 v27, v27, v25')
    a('v_lshlrev_b32 v27, 4, v27')
    a('v_add_u32 v21, v26, v27')
    a('v_lshlrev_b32 v26, 3, v25')
    a('v_lshrrev_b32 v27, 2, v24')
    a('v_add_u32 v26, v26, v27')
    a('v_mul_u32_u24 v26, 640, v26')
    a('v_and_b32 v27, 1, v24')
    a('v_lshlrev_b32 v27, 3, v27')
    a('v_add_u32 v26, v26, v27')
    a(f'v_add_u32 v26, {BOFF}, v26')
    a('v_bfe_u32 v27, v24, 3, 1')
    a('v_lshlrev_b32 v27, 1, v27')
    a('v_and_b32 v32, 1, v25')
    a('v_lshlrev_b32 v32, 2, v32')
    a('v_add_u32 v27, v27, v32')
    a('v_bfe_u32 v32, v24, 1, 1')
    a('s_lshl_b32 s35, s31, 1')
    a('s_mul_i32 s36, s31, 10')
    for j in range(4):
        a(f's_add_u32 s37, s35, {j}')
        a('s_and_b32 s37, s37, 3')
        a('s_lshl_b32 s37, s37, 1')
        a('v_add_u32 v33, s37, v32')
        a('v_xor_b32 v33, v33, v27')
        a('v_lshlrev_b32 v33, 4, v33')
        a(f's_add_u32 s37, s36, {j}')
        a('s_lshr_b32 s37, s37, 2')
        a('s_lshl_b32 s37, s37, 7')
        a('v_add_u32 v33, s37, v33')
        a(f'v_add_u32 v{28+j}, v26, v33')
    a(f'v_add_u32 v22, {2*STAGE}, v21')
    for j in range(4):
        a(f'v_add_u32 v{32+j}, {2*STAGE}, v{28+j}')
    XF = [36, 52]
    WR = 68
    RING = 6
    PF = 4
    ACC = 96
    for i in range(ACC, 256):
        a(f'v_mov_b32 v{i}, 0')
    a('s_mov_b32 s40, 0')

    def dma_one(stage, idx):
        if P.get('nodma'):
            return
        if P.get('noA') and idx < 2:
            return
        if P.get('noB') and idx >= 2:
            return
        if idx < 2:
            a(f's_add_u32 m0, s38, {stage*STAGE + idx*1024}')
            a('s_nop 0')
            a(f'buffer_load_dwordx4 v{2+idx}, s[{sA}:{sA+3}], s40 offen lds')
            if idx == 1:
                a('s_add_u32 s40, s40, 64')
        else:
            i = idx - 2
            if i == 2:
                a('s_cmp_ge_u32 s24, 4')
                a(f's_cbranch_scc1 G1_sk{dma_one.n}')
            a(f's_add_u32 m0, s39, {stage*STAGE + BOFF + i*8192}')
            a('s_nop 0')
            a(f'global_load_lds_dwordx4 v[{6+2*i}:{7+2*i}], off')
            a(f'v_add_co_u32 v{6+2*i}, vcc, v{6+2*i}, v{16+i}')
            a('s_nop 1')
            a(f'v_addc_co_u32 v{7+2*i}, vcc, 0, v{7+2*i}, vcc')
            if i == 2:
                a.label(f'G1_sk{dma_one.n}')
                dma_one.n += 1
    dma_one.n = 0

    sb = LdsSB(a)
    NSTEP = 32

    def xread(s, mb):
        if P.get('nords'):
            return
        stage = s % NST
        a(f'ds_read_b128 v[{XF[s&1]+mb*4}:{XF[s&1]+mb*4+3}], v{21+(stage>>1)} offset:{(stage&1)*STAGE + mb*1024}')
        sb.issue(('x', s, mb))

    def wread(n):
        if P.get('nords'):
            return
        s, b = divmod(n, 10)
        stage = s % NST
        r = WR + (n % RING) * 4
        for half in range(2):
            a(f'ds_read_b64_tr_b16 v[{r+half*2}:{r+half*2+1}], v{28+4*(stage>>1)+(b&3)} offset:{(stage&1)*STAGE + (b>>2)*128 + half*4*640}')
            sb.issue(('w', n))

    for s in range(3):
        for idx in range(5):
            dma_one(s, idx)
    a('s_waitcnt vmcnt(8)')
    a('s_barrier')
    for mb in range(4):
        xread(0, mb)
    for n in range(PF):
        wread(n)
    NSLOT = NSTEP * 10
    for n in range(NSLOT):
        s, b = divmod(n, 10)
        if b == 0:
            if s + 1 < NSTEP:
                newer = 4 if s + 2 < NSTEP else 0
                a(f's_waitcnt vmcnt({newer})')
                a('s_barrier')
        if n + PF < NSLOT:
            wread(n + PF)
        if 5 <= b <= 8 and s + 1 < NSTEP:
            xread(s + 1, b - 5)
        sb.need([('w', n)] + [('x', s, mb) for mb in range(4)])
        r = WR + (n % RING) * 4
        for mb in range(4):
            acc = ACC + (b * 4 + mb) * 4
            if not P.get('nomfma'):
                a(f'v_mfma_f32_16x16x32_bf16 v[{acc}:{acc+3}], v[{r}:{r+3}], v[{XF[s&1]+mb*4}:{XF[s&1]+mb*4+3}], v[{acc}:{acc+3}]')
        if b < 5 and s + 3 < NSTEP:
            dma_one((s + 3) % NST, b)
    a('s_nop 15')
    RS = 432
    a('s_barrier')
    a('v_and_b32 v10, 15, v0')
    a('v_lshrrev_b32 v11, 4, v0')
    a('s_lshl_b32 s35, s30, 6')
    a('v_add_u32 v10, s35, v10')
    a(f'v_mul_u32_u24 v12, {RS}, v10')
    a('v_lshlrev_b32 v11, 3, v11')
    a('v_add_u32 v12, v12, v11')

    def hcalc(gb, ub, mb):
        g_ = ACC + (gb * 4 + mb) * 4
        u_ = ACC + (ub * 4 + mb) * 4
        for p in range(2):
            a(f'v_cvt_pk_bf16_f32 v14, v{g_+2*p}, v{g_+2*p+1}')
            a(f'v_cvt_pk_bf16_f32 v15, v{u_+2*p}, v{u_+2*p+1}')
            a('v_lshlrev_b32 v16, 16, v14')
            a('v_and_b32 v17, 0xffff0000, v14')
            a('v_lshlrev_b32 v18, 16, v15')
            a('v_and_b32 v19, 0xffff0000, v15')
            a('v_max_f32 v16, 0, v16')
            a('v_max_f32 v17, 0, v17')
            a('v_mul_f32 v16, v16, v18')
            a('v_mul_f32 v17, v17, v19')
            a(f'v_cvt_pk_bf16_f32 v{20+p}, v16, v17')

    a('s_cmp_eq_u32 s31, 0')
    a('s_cbranch_scc0 G1_epi1')
    for b in range(6):
        for mb in range(4):
            q = ACC + (b * 4 + mb) * 4
            a(f'v_cvt_pk_bf16_f32 v20, v{q}, v{q+1}')
            a(f'v_cvt_pk_bf16_f32 v21, v{q+2}, v{q+3}')
            a(f'ds_write_b64 v12, v[20:21] offset:{mb*16*RS + b*32}')
    for bb in range(2):
        for mb in range(4):
            hcalc(6 + bb, 8 + bb, mb)
            a(f'ds_write_b64 v12, v[20:21] offset:{mb*16*RS + 192 + bb*32}')
    a('s_branch G1_epi2')
    a.label('G1_epi1')
    for bb in range(5):
        for mb in range(4):
            hcalc(bb, 5 + bb, mb)
            a(f'ds_write_b64 v12, v[20:21] offset:{mb*16*RS + 192 + 64 + bb*32}')
    a.label('G1_epi2')
    a('s_waitcnt lgkmcnt(0)')
    a('s_barrier')
    srd_from(a, sO, 22, 64 << 20)
    a('s_lshl_b32 s34, s27, 8')
    a('s_lshl_b32 s35, s24, 5')
    a('s_add_u32 s34, s34, s35')
    a('s_mul_i32 s36, s28, 192')
    a(f's_add_u32 s36, s36, {QKV_OFF}')
    a('s_mul_i32 s37, s28, 224')
    a(f's_add_u32 s37, s37, {OH_OFF + 2048}')
    for k in range(13):
        a(f'v_add_u32 v21, {64*k}, v0')
        a('v_mul_u32_u24 v22, 0x9d8a, v21')
        a('v_lshrrev_b32 v22, 20, v22')
        a('v_mul_u32_u24 v23, 26, v22')
        a('v_sub_u32 v23, v21, v23')
        a('v_add_u32 v24, s35, v22')
        a(f'v_mul_u32_u24 v24, {RS}, v24')
        a('v_lshlrev_b32 v25, 4, v23')
        a('v_add_u32 v24, v24, v25')
        R = 96 + (k & 3) * 4
        a(f'ds_read_b128 v[{R}:{R+3}], v24')
        a('v_add_u32 v22, s34, v22')
        a(f'v_mul_u32_u24 v26, {LD_QKV}, v22')
        a('v_add_u32 v26, s36, v26')
        a(f'v_mul_u32_u24 v27, {LD_OH}, v22')
        a('v_add_u32 v27, s37, v27')
        a('v_subrev_u32 v27, 192, v27')
        a('v_cmp_gt_u32 vcc, 12, v23')
        a('s_nop 1')
        a('v_cndmask_b32 v26, v27, v26, vcc')
        a(f'v_add_u32 v{40+k}, v26, v25')
        if (k & 3) == 3 or k == 12:
            a('s_waitcnt lgkmcnt(0)')
            for kk in range(k - (k & 3), k + 1):
                R = 96 + (kk & 3) * 4
                a(f'buffer_store_dwordx4 v[{R}:{R+3}], v{40+kk}, s[{sO}:{sO+3}], 0 offen')
            a('s_nop 1')
    a.label('G1_done')
    a('s_endpgm')
    return kernel_desc(name, 256, 48)


def main():
    a = A()
    launches = []
    descs = []
    head = open(f'cdna_kernels/{NAME}.s.ref').read().split('\n')
    hdr = [l for l in head if l.startswith(';') and '@launch' not in l and 'Override launch' not in l and 'grid=ceil' not in l]
    which = sys.argv[1:] or ['ln', 'gemm1v3', 'attn', 'gemm2']
    body = A()
    if 'ln' in which:
        launches.append('; @launch kernel=ln_kernel grid=(%d,1,1) block=(256,1,1) lds=0' % (512 + (160 if P.get('pf') else 0)))
        descs.append(gen_ln(body))
    if 'gemm1v3' in which:
        launches.append('; @launch kernel=gemm1_kernel grid=(256,1,1) block=(512,1,1) lds=147456')
        descs.append(gen_gemm1v3(body))
    if 'gemm1v2' in which:
        launches.append('; @launch kernel=gemm1_kernel grid=(256,1,1) block=(512,1,1) lds=147456')
        descs.append(gen_gemm1v2(body))
    if 'gemm1' in which:
        launches.append(f'; @launch kernel=gemm1_kernel grid=(1280,1,1) block=(256,1,1) lds={32768*P["g1_nst"]}')
        descs.append(gen_gemm1(body))
    if 'attn' in which:
        launches.append('; @launch kernel=attn_kernel grid=(%d,1,1) block=(256,1,1) lds=40960' % (1024 + (72 if P.get('pf') else 0)))
        descs.append(gen_attn(body))
    if 'gemm2' in which:
        launches.append('; @launch kernel=gemm2_kernel grid=(256,1,1) block=(256,1,1) lds=98304')
        descs.append(gen_gemm2(body))
    out = '\n'.join(hdr) + '\n' + '\n'.join(launches) + '\n'
    out += '.amdgcn_target "amdgcn-amd-amdhsa--gfx950"\n.text\n'
    out += body.text()
    out += '.section .rodata,"a"\n.p2align 6\n' + '.p2align 6\n'.join(descs)
    open(os.environ.get('OUT', f'cdna_kernels/{NAME}.s'), 'w').write(out)


main()
```

```python
import sys

NAME = 'parallel_sum__sliding_block__glu_gated_reglu__prompt'
XN_OFF, QKV_OFF, OH_OFF = 0, 4 << 20, 16 << 20
LD_OH = 4608 * 2
LD_QKV = 3072 * 2


P = {'g1_nst': 2, 'pf': 1}
import os, json
if os.environ.get('GP'):
    P.update(json.loads(os.environ['GP']))

class A:
    def __init__(self):
        self.lines = []

    def __call__(self, s):
        for l in s.strip('\n').split('\n'):
            self.lines.append('    ' + l.strip())

    def label(self, s):
        self.lines.append(s + ':')

    def raw(self, s):
        self.lines.append(s)

    def text(self):
        return '\n'.join(self.lines) + '\n'


def emit_prefetch(a, label, done, base, mats):
    a.label(label)
    a(f's_sub_u32 s3, s2, {base}')
    tot = sum(n for _, n in mats)
    a(f's_cmp_ge_u32 s3, {tot}')
    a(f's_cbranch_scc1 {done}')
    a(f's_mov_b32 s4, {mats[0][0]}')
    a('s_mov_b32 s5, 0')
    acc = 0
    for (off, n), (noff, _) in zip(mats, mats[1:]):
        acc += n
        a(f's_cmp_ge_u32 s3, {acc}')
        a(f's_cselect_b32 s4, {noff}, s4')
        a(f's_cselect_b32 s5, {acc}, s5')
    a('s_sub_u32 s3, s3, s5')
    a('s_load_dwordx2 s[6:7], s[0:1], s4')
    a('s_lshl_b32 s3, s3, 17')
    a('s_waitcnt lgkmcnt(0)')
    a('s_mov_b32 s8, s6')
    a('s_mov_b32 s9, s7')
    a('s_mov_b32 s10, 7340032')
    a('s_mov_b32 s11, 0x00020000')
    a('v_lshlrev_b32 v1, 4, v0')
    a('v_add_u32 v1, s3, v1')
    for k in range(32):
        a(f'buffer_load_dwordx4 v[{4+(k&3)*4}:{7+(k&3)*4}], v1, s[8:11], 0 offen')
        if k < 31:
            a('v_add_u32 v1, 4096, v1')


def kernel_header(a, name):
    a.raw(f'.globl {name}')
    a.raw('.p2align 8')
    a.raw(f'.type {name},@function')
    a.label(name)


def kernel_desc(name, vgpr, sgpr, accum=None, wgy=False):
    accum = accum or ((vgpr + 3) // 4 * 4)
    return f'''.amdhsa_kernel {name}
  .amdhsa_next_free_vgpr {vgpr}
  .amdhsa_next_free_sgpr {sgpr}
  .amdhsa_accum_offset {accum}
  .amdhsa_group_segment_fixed_size 0
  .amdhsa_kernarg_size 80
  .amdhsa_user_sgpr_count 2
  .amdhsa_user_sgpr_kernarg_segment_ptr 1
  .amdhsa_system_sgpr_workgroup_id_x 1
.end_amdhsa_kernel
'''


def srd_from(a, dst, ptr, nbytes, off=0):
    if off:
        a(f's_add_u32 s{dst}, s{ptr}, {off}')
        a(f's_addc_u32 s{dst+1}, s{ptr+1}, 0')
    else:
        a(f's_mov_b32 s{dst}, s{ptr}')
        a(f's_mov_b32 s{dst+1}, s{ptr+1}')
    a(f's_mov_b32 s{dst+2}, {nbytes}')
    a(f's_mov_b32 s{dst+3}, 0x00020000')


def wave_sum(a, v, tmp, sdst):
    for off in (0x041F, 0x081F, 0x101F, 0x201F, 0x401F):
        a(f'ds_swizzle_b32 v{tmp}, v{v} offset:{off}')
        a('s_waitcnt lgkmcnt(0)')
        a(f'v_add_f32 v{v}, v{v}, v{tmp}')
    a('s_nop 0')
    a(f'v_readlane_b32 s{sdst}, v{v}, 32')
    a('s_nop 1')
    a(f'v_add_f32 v{v}, s{sdst}, v{v}')
    a('s_nop 0')
    a(f'v_readlane_b32 s{sdst}, v{v}, 0')
    a('s_nop 3')


def gen_ln(a):
    name = 'ln_kernel'
    kernel_header(a, name)
    a('s_cmp_ge_u32 s2, 512')
    a('s_cbranch_scc1 LN_pf' if P.get('pf') else 's_cbranch_scc1 LN_done')
    a('s_load_dwordx2 s[4:5], s[0:1], 0')
    a('s_load_dwordx2 s[6:7], s[0:1], 72')
    a('v_lshrrev_b32 v1, 6, v0')
    a('v_and_b32 v2, 63, v0')
    a('s_lshl_b32 s3, s2, 2')
    a('v_add_u32 v1, s3, v1')
    a('v_lshlrev_b32 v1, 11, v1')
    a('v_lshlrev_b32 v2, 5, v2')
    a('v_add_u32 v1, v1, v2')
    a('s_waitcnt lgkmcnt(0)')
    srd_from(a, 8, 4, 2048 * 2048)
    srd_from(a, 12, 6, 2048 * 2048, XN_OFF)
    a('buffer_load_dwordx4 v[4:7], v1, s[8:11], 0 offen')
    a('buffer_load_dwordx4 v[8:11], v1, s[8:11], 0 offen offset:16')
    a('s_waitcnt vmcnt(0)')
    for i in range(8):
        a(f'v_lshlrev_b32 v{16+2*i}, 16, v{4+i}')
        a(f'v_and_b32 v{17+2*i}, 0xffff0000, v{4+i}')
    a('v_add_f32 v12, v16, v17')
    for i in range(18, 32):
        a(f'v_add_f32 v12, v12, v{i}')
    wave_sum(a, 12, 13, 20)
    a('v_mov_b32 v14, 0x3a800000')
    a('v_mul_f32 v14, s20, v14')
    a('v_mov_b32 v12, 0')
    for i in range(16, 32):
        a(f'v_sub_f32 v13, v{i}, v14')
        a(f'v_fmac_f32 v12, v13, v13')
    wave_sum(a, 12, 13, 21)
    a('v_mov_b32 v15, 0x3a800000')
    a('v_mul_f32 v15, s21, v15')
    a('v_cvt_pk_bf16_f32 v12, v14, v15')
    a('v_lshlrev_b32 v14, 16, v12')
    a('v_and_b32 v15, 0xffff0000, v12')
    a('v_mov_b32 v13, 0x3727c5ac')
    a('v_add_f32 v15, v15, v13')
    a('v_cvt_pk_bf16_f32 v15, v15, v15')
    a('v_lshlrev_b32 v15, 16, v15')
    a('v_sqrt_f32 v15, v15')
    a('s_nop 0')
    a('v_cvt_pk_bf16_f32 v15, v15, v15')
    a('v_lshlrev_b32 v15, 16, v15')
    a('v_rcp_f32 v15, v15')
    a('s_nop 0')
    for i in range(8):
        a(f'v_sub_f32 v{16+2*i}, v{16+2*i}, v14')
        a(f'v_sub_f32 v{17+2*i}, v{17+2*i}, v14')
        a(f'v_cvt_pk_bf16_f32 v12, v{16+2*i}, v{17+2*i}')
        a(f'v_lshlrev_b32 v{16+2*i}, 16, v12')
        a(f'v_and_b32 v{17+2*i}, 0xffff0000, v12')
        a(f'v_mul_f32 v{16+2*i}, v{16+2*i}, v15')
        a(f'v_mul_f32 v{17+2*i}, v{17+2*i}, v15')
        a(f'v_cvt_pk_bf16_f32 v{4+i}, v{16+2*i}, v{17+2*i}')
    a('buffer_store_dwordx4 v[4:7], v1, s[12:15], 0 offen')
    a('buffer_store_dwordx4 v[8:11], v1, s[12:15], 0 offen offset:16')
    a('s_branch LN_done')
    if P.get('pf'):
        emit_prefetch(a, 'LN_pf', 'LN_done', 512, [(8, 48), (32, 56), (40, 56)])
        a('s_waitcnt vmcnt(0)')
    a.label('LN_done')
    a('s_endpgm')
    return kernel_desc(name, 32, 32)


def gen_gemm1(a):
    name = 'gemm1_kernel'
    kernel_header(a, name)
    STAGE = 32768
    sA, sB, sO = 4, 8, 12
    a('s_cmp_ge_u32 s2, 1280')
    a('s_cbranch_scc1 G1_done')
    a('s_load_dwordx2 s[16:17], s[0:1], 8')
    a('s_load_dwordx2 s[18:19], s[0:1], 32')
    a('s_load_dwordx2 s[20:21], s[0:1], 40')
    a('s_load_dwordx2 s[22:23], s[0:1], 72')
    a('v_lshrrev_b32 v1, 6, v0')
    a('v_and_b32 v0, 63, v0')
    a('s_nop 0')
    a('v_readfirstlane_b32 s24, v1')
    a('s_and_b32 s25, s2, 7')
    a('s_lshr_b32 s26, s2, 3')
    a('s_and_b32 s27, s26, 15')
    a('s_lshr_b32 s28, s26, 4')
    a('s_mul_i32 s29, s25, 10')
    a('s_add_u32 s28, s28, s29')
    a('s_lshr_b32 s30, s24, 1')
    a('s_and_b32 s31, s24, 1')
    a('s_waitcnt lgkmcnt(0)')
    srd_from(a, sA, 22, 2048 * 2048, XN_OFF)
    a('s_cmp_lt_u32 s28, 24')
    a('s_cbranch_scc0 G1_ffn')
    srd_from(a, sB, 16, 1024 * 6144)
    a('s_mov_b32 s32, 6144')
    a('s_lshl_b32 s33, s28, 8')
    a('s_lshl_b32 s34, s30, 7')
    a('s_add_u32 s33, s33, s34')
    a('s_branch G1_bdone')
    a.label('G1_ffn')
    a('s_cmp_eq_u32 s30, 0')
    a('s_cselect_b32 s8, s18, s20')
    a('s_cselect_b32 s9, s19, s21')
    a('s_mov_b32 s10, 7340032')
    a('s_mov_b32 s11, 0x00020000')
    a('s_mov_b32 s32, 7168')
    a('s_sub_u32 s33, s28, 24')
    a('s_lshl_b32 s33, s33, 7')
    a.label('G1_bdone')
    a('v_lshrrev_b32 v10, 3, v0')
    a('v_and_b32 v11, 7, v0')
    a('v_lshrrev_b32 v12, 4, v0')
    a('s_lshl_b32 s34, s27, 7')
    a('s_lshl_b32 s35, s24, 5')
    a('s_add_u32 s34, s34, s35')
    a('v_add_u32 v13, s34, v10')
    a('v_lshlrev_b32 v13, 11, v13')
    a('v_xor_b32 v14, v11, v12')
    a('v_lshlrev_b32 v14, 4, v14')
    a('v_xor_b32 v15, 4, v11')
    a('v_xor_b32 v15, v15, v12')
    a('v_lshlrev_b32 v15, 4, v15')
    a('v_add_u32 v2, v13, v14')
    a('v_add_u32 v3, v13, v15')
    a('v_add_u32 v3, 0x4000, v3')
    a('v_add_u32 v4, 0x8000, v2')
    a('v_add_u32 v5, 0x8000, v3')
    if P.get('seg64'):
        a('v_lshrrev_b32 v13, 2, v0')
        a('v_add_u32 v13, s34, v13')
        a('v_lshlrev_b32 v13, 11, v13')
        a('v_and_b32 v14, 3, v0')
        a('v_lshlrev_b32 v14, 4, v14')
        a('v_add_u32 v2, v13, v14')
        a('v_add_u32 v3, 64, v2')
        a('v_add_u32 v4, 0x8000, v2')
        a('v_add_u32 v5, 0x8000, v3')
    if P.get('contigA'):
        a('v_lshlrev_b32 v2, 4, v0')
        a('s_lshl_b32 s35, s24, 12')
        a('v_add_u32 v2, s35, v2')
        a('s_lshl_b32 s35, s27, 18')
        a('v_add_u32 v2, s35, v2')
        a('v_add_u32 v3, 1024, v2')
        a('v_add_u32 v4, 2048, v2')
        a('v_add_u32 v5, 3072, v2')
    a('s_lshl_b32 s35, s31, 5')
    a('v_add_u32 v13, s35, v10')
    a('v_mul_lo_u32 v13, v13, s32')
    a('v_and_b32 v14, 1, v12')
    a('v_lshlrev_b32 v14, 2, v14')
    a('v_xor_b32 v14, v14, v11')
    a('v_lshlrev_b32 v14, 4, v14')
    a('v_add_u32 v13, v13, v14')
    a('v_add_u32 v6, s33, v13')
    a('s_lshl_b32 s36, s32, 3')
    a('v_add_u32 v7, s36, v6')
    a('v_add_u32 v8, s36, v7')
    a('v_add_u32 v9, s36, v8')
    a('s_lshl_b32 s37, s32, 6')
    a('s_lshl_b32 s38, s24, 12')
    a('v_and_b32 v10, 31, v0')
    a('s_lshl_b32 s35, s30, 6')
    a('v_add_u32 v10, s35, v10')
    a('v_lshrrev_b32 v11, 1, v10')
    a('v_and_b32 v11, 7, v11')
    a('v_lshrrev_b32 v12, 5, v0')
    a('v_lshlrev_b32 v10, 7, v10')
    for ks in range(4):
        a(f'v_add_u32 v13, {ks*2}, v12')
        a('v_xor_b32 v13, v13, v11')
        a('v_lshlrev_b32 v13, 4, v13')
        a(f'v_add_u32 v{16+ks}, v10, v13')
    a('v_lshrrev_b32 v10, 4, v0')
    a('v_and_b32 v11, 15, v0')
    a('v_lshrrev_b32 v12, 1, v10')
    a('v_lshlrev_b32 v12, 3, v12')
    a('v_lshrrev_b32 v13, 2, v11')
    a('v_add_u32 v12, v12, v13')
    a('v_lshlrev_b32 v12, 7, v12')
    a('v_and_b32 v13, 1, v10')
    a('v_lshlrev_b32 v13, 1, v13')
    a('v_bfe_u32 v14, v11, 1, 1')
    a('v_add_u32 v13, v13, v14')
    a('s_lshl_b32 s35, s31, 2')
    a('v_add_u32 v13, s35, v13')
    a('v_bfe_u32 v14, v11, 3, 1')
    a('v_lshlrev_b32 v14, 2, v14')
    a('v_xor_b32 v13, v13, v14')
    a('v_lshlrev_b32 v13, 4, v13')
    a('v_add_u32 v12, v12, v13')
    a('v_and_b32 v13, 1, v11')
    a('v_lshlrev_b32 v13, 3, v13')
    a('v_add_u32 v12, v12, v13')
    a('v_add_u32 v20, 16384, v12')
    for i in range(64, 128):
        a(f'v_mov_b32 v{i}, 0')
    a('s_mov_b32 s40, 0')
    a('s_mov_b32 s41, 0')

    NST = P['g1_nst']
    PD = NST - 1
    NSTEP = 16

    def dma_one(stage, idx):
        if idx < 4:
            a(f's_add_u32 m0, s38, {stage*STAGE + idx*1024}')
            a('s_nop 0')
            if P.get('vgprload'):
                a(f'buffer_load_dwordx4 v[{96+idx*4}:{99+idx*4}], v{2+idx}, s[{sA}:{sA+3}], s40 offen')
            else:
                a(f'buffer_load_dwordx4 v{2+idx}, s[{sA}:{sA+3}], s40 offen lds')
        else:
            i = idx - 4
            a(f's_add_u32 m0, s38, {stage*STAGE + 16384 + i*1024}')
            a('s_nop 0')
            if P.get('vgprload'):
                a(f'buffer_load_dwordx4 v[{96+idx*4}:{99+idx*4}], v{6+i}, s[{sB}:{sB+3}], s41 offen')
            else:
                a(f'buffer_load_dwordx4 v{6+i}, s[{sB}:{sB+3}], s41 offen lds')
        if idx == 7:
            a('s_add_u32 s40, s40, %d' % (16384 if P.get('contigA') else 128))
            a('s_add_u32 s41, s41, s37')

    addr_hi = {}
    def reads(stage, ks, st):
        if P.get('noreads'):
            return
        base = 32 + st * 16
        off = stage * STAGE
        xa, wa = 16 + ks, 20
        if off >= 65536 - 8192:
            xa, wa = 24 + ks, 28
            off -= 65536
            off += 65536
        for mb in range(2):
            o = stage*STAGE + mb*4096
            if stage >= 2:
                a(f'ds_read_b128 v[{base+mb*4}:{base+mb*4+3}], v{24+ks} offset:{o - 65536}')
            else:
                a(f'ds_read_b128 v[{base+mb*4}:{base+mb*4+3}], v{16+ks} offset:{o}')
        for t in range(2):
            for half in range(2):
                r = base + 8 + t * 4 + half * 2
                o = stage*STAGE + t*8192 + ks*2048 + half*512
                if stage >= 2:
                    a(f'ds_read_b64_tr_b16 v[{r}:{r+1}], v28 offset:{o - 65536}')
                else:
                    a(f'ds_read_b64_tr_b16 v[{r}:{r+1}], v20 offset:{o}')

    for ks in range(4):
        a(f'v_add_u32 v{24+ks}, 0x10000, v{16+ks}')
    a('v_add_u32 v28, 0x10000, v20')

    for s in range(PD):
        for idx in range(8):
            dma_one(s % NST, idx)
    for s in range(NSTEP):
        stage = s % NST
        newer = min(PD - 1, NSTEP - 1 - s)
        a(f's_waitcnt vmcnt({newer*8})')
        a('s_barrier')
        reads(stage, 0, 0)
        for ks in range(4):
            if ks < 3:
                reads(stage, ks + 1, (ks + 1) & 1)
            if s + PD < NSTEP:
                dma_one((s + PD) % NST, ks * 2)
                dma_one((s + PD) % NST, ks * 2 + 1)
            elif s + PD == NSTEP and ks == 0:
                pass
            a(f's_waitcnt lgkmcnt({6 if ks < 3 else 0})')
            base = 32 + (ks & 1) * 16
            for t in range(2):
                for mb in range(2):
                    acc = 64 + (t * 2 + mb) * 16
                    if not P.get('nomfma'):
                        a(f'v_mfma_f32_32x32x16_bf16 v[{acc}:{acc+15}], v[{base+8+t*4}:{base+8+t*4+3}], v[{base+mb*4}:{base+mb*4+3}], v[{acc}:{acc+15}]')
        a('s_nop 15')
    a('v_and_b32 v10, 31, v0')
    a('s_lshl_b32 s34, s27, 7')
    a('s_lshl_b32 s35, s30, 6')
    a('s_add_u32 s34, s34, s35')
    a('v_add_u32 v10, s34, v10')
    a('v_lshrrev_b32 v11, 5, v0')
    a('v_lshlrev_b32 v11, 3, v11')
    a('s_lshl_b32 s35, s31, 6')
    a('v_add_u32 v11, s35, v11')
    a('s_cmp_lt_u32 s28, 24')
    a('s_cbranch_scc0 G1_epi_ffn')
    srd_from(a, sO, 22, 2048 * LD_QKV, QKV_OFF)
    a('s_mov_b32 s36, %d' % LD_QKV)
    a('v_mul_lo_u32 v10, v10, s36')
    a('v_add_u32 v10, v10, v11')
    a('s_lshl_b32 s35, s28, 8')
    a('v_add_u32 v10, s35, v10')
    a(f'v_add_u32 v11, {32*LD_QKV}, v10')
    for t in range(2):
        for mb in range(2):
            acc = 64 + (t * 2 + mb) * 16
            for rq in range(4):
                a(f'v_cvt_pk_bf16_f32 v12, v{acc+rq*4}, v{acc+rq*4+1}')
                a(f'v_cvt_pk_bf16_f32 v13, v{acc+rq*4+2}, v{acc+rq*4+3}')
                a(f'buffer_store_dwordx2 v[12:13], v{10+mb}, s[{sO}:{sO+3}], 0 offen offset:{t*128 + rq*16}')
                a('s_nop 0')
    a('s_branch G1_done')
    a.label('G1_epi_ffn')
    srd_from(a, sO, 22, 2048 * LD_OH, OH_OFF)
    a('s_mov_b32 s36, %d' % LD_OH)
    a('v_mul_lo_u32 v10, v10, s36')
    a('v_add_u32 v10, v10, v11')
    a('s_sub_u32 s35, s28, 24')
    a('s_lshl_b32 s35, s35, 7')
    a('s_add_u32 s35, s35, 2048')
    a('v_add_u32 v10, s35, v10')
    a(f'v_add_u32 v11, {32*LD_OH}, v10')
    for mb in range(2):
        g = 64 + (0 * 2 + mb) * 16
        u = 64 + (1 * 2 + mb) * 16
        for rq in range(4):
            for p in range(2):
                r = rq * 4 + p * 2
                a(f'v_cvt_pk_bf16_f32 v14, v{g+r}, v{g+r+1}')
                a(f'v_cvt_pk_bf16_f32 v15, v{u+r}, v{u+r+1}')
                a('v_lshlrev_b32 v16, 16, v14')
                a('v_and_b32 v17, 0xffff0000, v14')
                a('v_lshlrev_b32 v18, 16, v15')
                a('v_and_b32 v19, 0xffff0000, v15')
                a('v_max_f32 v16, 0, v16')
                a('v_max_f32 v17, 0, v17')
                a('v_mul_f32 v16, v16, v18')
                a('v_mul_f32 v17, v17, v19')
                a(f'v_cvt_pk_bf16_f32 v{12+p}, v16, v17')
            a(f'buffer_store_dwordx2 v[12:13], v{10+mb}, s[{sO}:{sO+3}], 0 offen offset:{rq*16}')
            a('s_nop 0')
    a.label('G1_done')
    a('s_endpgm')
    return kernel_desc(name, 128, 48)


def gen_attn(a):
    name = 'attn_kernel'
    kernel_header(a, name)
    sQ, sO = 4, 8
    KOFF, VOFF = 0, 20480
    a('s_cmp_ge_u32 s2, 1024')
    a('s_cbranch_scc1 AT_pf' if P.get('pf') else 's_cbranch_scc1 AT_done')
    a('s_load_dwordx2 s[16:17], s[0:1], 72')
    a('v_lshrrev_b32 v1, 6, v0')
    a('v_and_b32 v0, 63, v0')
    a('s_nop 0')
    a('v_readfirstlane_b32 s24, v1')
    a('s_and_b32 s25, s2, 31')
    a('s_lshr_b32 s26, s2, 5')
    a('s_lshl_b32 s27, s26, 6')
    a('s_waitcnt lgkmcnt(0)')
    srd_from(a, sQ, 16, 2048 * LD_QKV, QKV_OFF)
    srd_from(a, sO, 16, 2048 * LD_OH, OH_OFF)
    a('v_lshrrev_b32 v10, 2, v0')
    a('v_and_b32 v11, 3, v0')
    a('s_lshl_b32 s28, s24, 4')
    a('s_add_u32 s28, s28, s27')
    a('s_sub_u32 s28, s28, 256')
    a('v_add_u32 v10, s28, v10')
    a('s_mov_b32 s29, %d' % LD_QKV)
    a('v_mul_lo_u32 v10, v10, s29')
    a('v_lshlrev_b32 v11, 4, v11')
    a('v_add_u32 v10, v10, v11')
    a('s_lshl_b32 s30, s25, 6')
    a('v_add_u32 v10, s30, v10')
    a('v_add_u32 v12, 2048, v10')
    a('v_add_u32 v13, 4096, v10')
    a('s_lshl_b32 s31, s24, 10')
    a('s_mov_b32 s33, 0')
    for j in range(5):
        a(f's_add_u32 m0, s31, {KOFF + j*4096}')
        a('s_nop 0')
        a(f'buffer_load_dwordx4 v12, s[{sQ}:{sQ+3}], s33 offen lds')
        a(f's_add_u32 m0, s31, {VOFF + j*4096}')
        a('s_nop 0')
        a(f'buffer_load_dwordx4 v13, s[{sQ}:{sQ+3}], s33 offen lds')
        if j < 4:
            a(f'v_add_u32 v12, {64*LD_QKV}, v12')
            a(f'v_add_u32 v13, {64*LD_QKV}, v13')
    a('v_and_b32 v14, 15, v0')
    a('s_lshl_b32 s28, s24, 4')
    a('s_add_u32 s28, s28, s27')
    a('v_add_u32 v15, s28, v14')
    a('v_mul_lo_u32 v16, v15, s29')
    a('v_lshrrev_b32 v17, 4, v0')
    a('v_lshlrev_b32 v18, 4, v17')
    a('v_add_u32 v16, v16, v18')
    a('v_add_u32 v16, s30, v16')
    a(f'buffer_load_dwordx4 v[4:7], v16, s[{sQ}:{sQ+3}], 0 offen')
    a('v_lshlrev_b32 v20, 6, v14')
    a('v_add_u32 v20, v20, v18')
    a('v_add_u32 v20, s31, v20')
    a('v_lshlrev_b32 v21, 2, v17')
    a('v_lshrrev_b32 v22, 2, v14')
    a('v_add_u32 v21, v21, v22')
    a('v_lshlrev_b32 v21, 6, v21')
    a('v_and_b32 v22, 3, v14')
    a('v_lshlrev_b32 v22, 3, v22')
    a('v_add_u32 v21, v21, v22')
    a('v_add_u32 v21, s31, v21')
    a(f'v_add_u32 v21, {VOFF}, v21')
    a('s_waitcnt vmcnt(0)')
    a('s_barrier')
    NT = 17
    SB = 56
    for t in range(3):
        a(f'ds_read_b128 v[{24+t*4}:{24+t*4+3}], v20 offset:{KOFF + t*1024}')
    for t in range(NT):
        if t + 3 < NT:
            r = 24 + ((t + 3) & 3) * 4
            a(f'ds_read_b128 v[{r}:{r+3}], v20 offset:{KOFF + (t+3)*1024}')
        a(f's_waitcnt lgkmcnt({min(3, NT-1-t)})')
        rp = 24 + (t & 3) * 4
        a(f'v_mfma_f32_16x16x32_bf16 v[{SB+t*4}:{SB+t*4+3}], v[{rp}:{rp+3}], v[4:7], 0')
    a('v_add_u32 v22, 1, v14')
    a('s_sub_u32 s34, 256, s28')
    a('v_max_i32 v22, s34, v22')
    a('v_add_u32 v23, 256, v14')
    a('v_sub_u32 v23, v23, v22')
    a('v_lshlrev_b32 v40, 2, v17')
    a('v_sub_u32 v22, v40, v22')
    a('s_nop 7')
    a('v_mov_b32 v41, 0xf149f2ca')
    a('v_mov_b32 v42, 0xf149f2ca')
    a('s_mov_b32 s35, 0x3e3504f3')
    a('s_cmp_lt_u32 s28, 256')
    a('s_cbranch_scc1 AT_slow')
    for path in ('fast', 'slow'):
        if path == 'slow':
            a.label('AT_slow')
        for t in range(NT):
            for p in range(2):
                s = SB + t * 4 + p * 2
                a(f'v_cvt_pk_bf16_f32 v43, v{s}, v{s+1}')
                a(f'v_lshlrev_b32 v{s}, 16, v43')
                a(f'v_and_b32 v{s+1}, 0xffff0000, v43')
                a(f'v_mul_f32 v{s}, s35, v{s}')
                a(f'v_mul_f32 v{s+1}, s35, v{s+1}')
                a(f'v_cvt_pk_bf16_f32 v43, v{s}, v{s+1}')
                a(f'v_lshlrev_b32 v{s}, 16, v43')
                a(f'v_and_b32 v{s+1}, 0xffff0000, v43')
                if path == 'slow' or t == 0 or t == NT - 1:
                    for r in range(2):
                        a(f'v_add_u32 v44, {16*t + p*2 + r}, v22')
                        a('v_cmp_le_u32 vcc, v44, v23')
                        a('s_nop 1')
                        a(f'v_cndmask_b32 v{s+r}, v41, v{s+r}, vcc')
                a(f'v_max3_f32 v42, v42, v{s}, v{s+1}')
        if path == 'fast':
            a('s_branch AT_join')
    a.label('AT_join')
    a('ds_swizzle_b32 v43, v42 offset:0x401F')
    a('s_waitcnt lgkmcnt(0)')
    a('v_max_f32 v42, v42, v43')
    a('v_lshlrev_b32 v45, 2, v0')
    a('v_xor_b32 v45, 128, v45')
    a('ds_bpermute_b32 v43, v45, v42')
    a('s_waitcnt lgkmcnt(0)')
    a('v_max_f32 v42, v42, v43')
    a('s_mov_b32 s36, 0x3fb8aa3b')
    a('v_mul_f32 v42, s36, v42')
    a('v_mov_b32 v46, 0')
    a('v_mov_b32 v47, s36')
    for t in range(NT):
        for r in range(4):
            s = SB + t * 4 + r
            a(f'v_fma_f32 v{s}, v{s}, v47, -v42')
            a(f'v_exp_f32 v{s}, v{s}')
        for r in range(4):
            s = SB + t * 4 + r
            a(f'v_add_f32 v46, v46, v{s}')
    a('ds_swizzle_b32 v43, v46 offset:0x401F')
    a('s_waitcnt lgkmcnt(0)')
    a('v_add_f32 v46, v46, v43')
    a('ds_bpermute_b32 v43, v45, v46')
    a('s_waitcnt lgkmcnt(0)')
    a('v_add_f32 v46, v46, v43')
    a('v_rcp_f32 v46, v46')
    a('s_nop 0')
    for t in range(NT):
        s = SB + t * 4
        for r in range(4):
            a(f'v_mul_f32 v{s+r}, v{s+r}, v46')
        a(f'v_cvt_pk_bf16_f32 v{SB+t*2}, v{s}, v{s+1}')
        a(f'v_cvt_pk_bf16_f32 v{SB+1+t*2}, v{s+2}, v{s+3}')
    for i in range(48, 56):
        a(f'v_mov_b32 v{i}, 0')
    def vreads(tp):
        t0 = tp * 2
        rb = 24 + (tp & 1) * 8
        for dhh in range(2):
            a(f'ds_read_b64_tr_b16 v[{rb+dhh*4}:{rb+dhh*4+1}], v21 offset:{t0*1024 + dhh*32}')
            a(f'ds_read_b64_tr_b16 v[{rb+dhh*4+2}:{rb+dhh*4+3}], v21 offset:{(t0+1)*1024 + dhh*32}')
    vreads(0)
    for tp in range(8):
        t0 = tp * 2
        rb = 24 + (tp & 1) * 8
        if tp < 7:
            vreads(tp + 1)
            a('s_waitcnt lgkmcnt(4)')
        else:
            a('s_waitcnt lgkmcnt(0)')
        for dhh in range(2):
            a(f'v_mfma_f32_16x16x32_bf16 v[{48+dhh*4}:{48+dhh*4+3}], v[{rb+dhh*4}:{rb+dhh*4+3}], v[{SB+t0*2}:{SB+t0*2+3}], v[{48+dhh*4}:{48+dhh*4+3}]')
    for dhh in range(2):
        a(f'ds_read_b64_tr_b16 v[{24+dhh*2}:{24+dhh*2+1}], v21 offset:{16*1024 + dhh*32}')
    a('s_waitcnt lgkmcnt(0)')
    for dhh in range(2):
        a(f'v_mfma_f32_16x16x16_bf16 v[{48+dhh*4}:{48+dhh*4+3}], v[{24+dhh*2}:{24+dhh*2+1}], v[{SB+32}:{SB+33}], v[{48+dhh*4}:{48+dhh*4+3}]')
    a('s_nop 15')
    a('s_mov_b32 s29, %d' % LD_OH)
    a('v_mul_lo_u32 v16, v15, s29')
    a('v_lshlrev_b32 v18, 3, v17')
    a('v_add_u32 v16, v16, v18')
    a('v_add_u32 v16, s30, v16')
    for dhh in range(2):
        a(f'v_cvt_pk_bf16_f32 v12, v{48+dhh*4}, v{49+dhh*4}')
        a(f'v_cvt_pk_bf16_f32 v13, v{50+dhh*4}, v{51+dhh*4}')
        a(f'buffer_store_dwordx2 v[12:13], v16, s[{sO}:{sO+3}], 0 offen offset:{dhh*32}')
        a('s_nop 0')
    if P.get('pf'):
        a('s_branch AT_done')
        emit_prefetch(a, 'AT_pf', 'AT_done', 1024, [(16, 16), (48, 56)])
        a('s_waitcnt vmcnt(0)')
    a.label('AT_done')
    a('s_endpgm')
    return kernel_desc(name, 128, 48)


def gen_gemm2(a):
    name = 'gemm2_kernel'
    kernel_header(a, name)
    STAGE = 24576
    NST = 4
    sA, sB, sO, sX = 4, 8, 12, 44
    a('s_cmp_ge_u32 s2, 256')
    a('s_cbranch_scc1 G2_done')
    a('s_load_dwordx2 s[16:17], s[0:1], 16')
    a('s_load_dwordx2 s[18:19], s[0:1], 48')
    a('s_load_dwordx2 s[20:21], s[0:1], 0')
    a('s_load_dwordx2 s[22:23], s[0:1], 72')
    a('s_load_dwordx2 s[48:49], s[0:1], 56')
    a('v_lshrrev_b32 v1, 6, v0')
    a('v_and_b32 v0, 63, v0')
    a('s_nop 0')
    a('v_readfirstlane_b32 s24, v1')
    a('s_and_b32 s25, s2, 7')
    a('s_lshr_b32 s26, s2, 3')
    a('s_and_b32 s27, s26, 1')
    a('s_lshl_b32 s29, s25, 1')
    a('s_add_u32 s27, s27, s29')
    a('s_lshr_b32 s28, s26, 1')
    a('s_lshr_b32 s30, s24, 1')
    a('s_and_b32 s31, s24, 1')
    a('s_waitcnt lgkmcnt(0)')
    srd_from(a, sA, 22, 2048 * LD_OH, OH_OFF)
    srd_from(a, sB, 16, 1024 * 2048)
    srd_from(a, sO, 48, 2048 * 2048)
    srd_from(a, sX, 20, 2048 * 2048)
    a('v_lshrrev_b32 v10, 3, v0')
    a('v_and_b32 v11, 7, v0')
    a('v_lshrrev_b32 v12, 4, v0')
    a('s_lshl_b32 s34, s27, 7')
    a('s_lshl_b32 s35, s24, 5')
    a('s_add_u32 s34, s34, s35')
    a('v_add_u32 v13, s34, v10')
    a('s_mov_b32 s36, %d' % LD_OH)
    a('v_mul_lo_u32 v13, v13, s36')
    a('v_xor_b32 v14, v11, v12')
    a('v_lshlrev_b32 v14, 4, v14')
    a('v_xor_b32 v15, 4, v11')
    a('v_xor_b32 v15, v15, v12')
    a('v_lshlrev_b32 v15, 4, v15')
    a('v_add_u32 v2, v13, v14')
    a('v_add_u32 v3, v13, v15')
    a(f'v_add_u32 v3, {8*LD_OH}, v3')
    a(f'v_add_u32 v4, {16*LD_OH}, v2')
    a(f'v_add_u32 v5, {16*LD_OH}, v3')
    a('s_lshl_b32 s35, s24, 4')
    a('v_add_u32 v13, s35, v10')
    a('v_lshlrev_b32 v13, 11, v13')
    a('v_and_b32 v14, 1, v12')
    a('v_lshlrev_b32 v14, 2, v14')
    a('v_xor_b32 v14, v14, v11')
    a('v_lshlrev_b32 v14, 4, v14')
    a('v_add_u32 v13, v13, v14')
    a('s_lshl_b32 s33, s28, 7')
    a('v_add_u32 v6, s33, v13')
    a('v_add_u32 v7, 0x4000, v6')
    a('s_lshl_b32 s38, s24, 12')
    a('s_lshl_b32 s39, s24, 11')
    a('v_and_b32 v10, 31, v0')
    a('s_lshl_b32 s35, s30, 6')
    a('v_add_u32 v10, s35, v10')
    a('v_lshrrev_b32 v11, 1, v10')
    a('v_and_b32 v11, 7, v11')
    a('v_lshrrev_b32 v12, 5, v0')
    a('v_lshlrev_b32 v10, 7, v10')
    a('s_lshl_b32 s35, s31, 2')
    for j in range(2):
        a(f'v_add_u32 v13, {j*2}, v12')
        a('v_add_u32 v13, s35, v13')
        a('v_xor_b32 v13, v13, v11')
        a('v_lshlrev_b32 v13, 4, v13')
        a(f'v_add_u32 v{16+j}, v10, v13')
    a('v_lshrrev_b32 v10, 4, v0')
    a('v_and_b32 v11, 15, v0')
    a('v_lshrrev_b32 v12, 1, v10')
    a('v_lshlrev_b32 v12, 3, v12')
    a('v_lshrrev_b32 v13, 2, v11')
    a('v_add_u32 v12, v12, v13')
    a('v_lshlrev_b32 v12, 7, v12')
    a('v_and_b32 v13, 1, v10')
    a('v_lshlrev_b32 v13, 1, v13')
    a('v_bfe_u32 v14, v11, 1, 1')
    a('v_add_u32 v13, v13, v14')
    a('v_bfe_u32 v14, v11, 3, 1')
    a('v_lshlrev_b32 v14, 2, v14')
    a('v_and_b32 v15, 1, v11')
    a('v_lshlrev_b32 v15, 3, v15')
    a('v_add_u32 v12, v12, v15')
    a('s_lshl_b32 s35, s31, 12')
    a('v_add_u32 v12, s35, v12')
    a('v_add_u32 v12, 16384, v12')
    for t in range(2):
        a(f'v_add_u32 v15, {t*4}, v13')
        a('v_xor_b32 v15, v15, v14')
        a('v_lshlrev_b32 v15, 4, v15')
        a(f'v_add_u32 v{20+t}, v12, v15')
    a('v_add_u32 v18, 49152, v16')
    a('v_add_u32 v19, 49152, v17')
    a('v_add_u32 v22, 49152, v20')
    a('v_add_u32 v23, 49152, v21')
    for i in range(64, 128):
        a(f'v_mov_b32 v{i}, 0')
    a('s_mov_b32 s40, 0')
    a('s_mov_b32 s41, 0')
    a('s_mov_b32 s43, 0')

    def dma(stage):
        a('s_cmp_eq_u32 s43, 16')
        a('s_cselect_b32 s8, s18, s8')
        a('s_cselect_b32 s9, s19, s9')
        a('s_cselect_b32 s10, %d, s10' % (3584 * 2048))
        a('s_cselect_b32 s41, 0, s41')
        for i in range(4):
            a(f's_add_u32 m0, s38, {stage*STAGE + i*1024}')
            a('s_nop 0')
            a(f'buffer_load_dwordx4 v{2+i}, s[{sA}:{sA+3}], s40 offen lds')
        for i in range(2):
            a(f's_add_u32 m0, s39, {stage*STAGE + 16384 + i*1024}')
            a('s_nop 0')
            a(f'buffer_load_dwordx4 v{6+i}, s[{sB}:{sB+3}], s41 offen lds')
        a('s_add_u32 s40, s40, 128')
        a('s_add_u32 s41, s41, 0x20000')
        a('s_add_u32 s43, s43, 1')

    def compute(stage):
        for j in range(2):
            base = 32 + j * 16
            for mb in range(2):
                a(f'ds_read_b128 v[{base+mb*4}:{base+mb*4+3}], v{16+j+2*(stage>>1)} offset:{(stage&1)*STAGE + mb*4096}')
            for t in range(2):
                for half in range(2):
                    r = base + 8 + t * 4 + half * 2
                    a(f'ds_read_b64_tr_b16 v[{r}:{r+1}], v{20+t+2*(stage>>1)} offset:{(stage&1)*STAGE + j*2048 + half*512}')
        for j in range(2):
            a(f's_waitcnt lgkmcnt({6 if j == 0 else 0})')
            base = 32 + j * 16
            for t in range(2):
                for mb in range(2):
                    acc = 64 + (t * 2 + mb) * 16
                    a(f'v_mfma_f32_32x32x16_bf16 v[{acc}:{acc+15}], v[{base+8+t*4}:{base+8+t*4+3}], v[{base+mb*4}:{base+mb*4+3}], v[{acc}:{acc+15}]')

    for s in range(3):
        dma(s)
    a('s_mov_b32 s42, 0')
    a.label('G2_loop')
    for u in range(NST):
        a('s_waitcnt vmcnt(12)')
        a('s_barrier')
        a('s_cmp_ge_u32 s43, 72')
        a(f's_cbranch_scc1 G2_nl{u}')
        dma((u + 3) % NST)
        a(f's_branch G2_c{u}')
        a.label(f'G2_nl{u}')
        a('s_waitcnt vmcnt(0)')
        a('s_barrier')
        a.label(f'G2_c{u}')
        compute(u)
    a('s_add_u32 s42, s42, 4')
    a('s_cmp_lt_u32 s42, 72')
    a('s_cbranch_scc1 G2_loop')
    a('s_nop 15')
    a('s_barrier')
    a('v_lshlrev_b32 v10, 2, v0')
    a('s_xor_b32 s35, s24, 1')
    a('s_lshl_b32 s35, s35, 13')
    a('v_add_u32 v10, s35, v10')
    a('v_lshlrev_b32 v11, 2, v0')
    a('s_lshl_b32 s35, s24, 13')
    a('v_add_u32 v11, s35, v11')
    a('s_cmp_eq_u32 s31, 0')
    a('s_cbranch_scc0 G2_x1')
    for t in range(2):
        acc = 64 + (t * 2 + 1) * 16
        for r in range(16):
            a(f'ds_write_b32 v10, v{acc+r} offset:{(t*16+r)*256}')
    a('s_branch G2_x2')
    a.label('G2_x1')
    for t in range(2):
        acc = 64 + (t * 2 + 0) * 16
        for r in range(16):
            a(f'ds_write_b32 v10, v{acc+r} offset:{(t*16+r)*256}')
    for t in range(2):
        for r in range(16):
            a(f'v_mov_b32 v{64+(t*2)*16+r}, v{64+(t*2+1)*16+r}')
    a.label('G2_x2')
    a('s_waitcnt lgkmcnt(0)')
    a('s_barrier')
    for t in range(2):
        for r in range(16):
            a(f'ds_read_b32 v{32+(r&7)}, v11 offset:{(t*16+r)*256}')
            if (r & 7) == 7:
                a('s_waitcnt lgkmcnt(0)')
                for rr in range(r - 7, r + 1):
                    a(f'v_add_f32 v{64+(t*2)*16+rr}, v{64+(t*2)*16+rr}, v{32+(rr&7)}')
    a('v_and_b32 v10, 31, v0')
    a('s_lshl_b32 s34, s27, 7')
    a('s_lshl_b32 s35, s30, 6')
    a('s_add_u32 s34, s34, s35')
    a('s_lshl_b32 s35, s31, 5')
    a('s_add_u32 s34, s34, s35')
    a('v_add_u32 v10, s34, v10')
    a('v_lshlrev_b32 v10, 11, v10')
    a('v_lshrrev_b32 v11, 5, v0')
    a('v_lshlrev_b32 v11, 3, v11')
    a('v_add_u32 v10, v10, v11')
    a('v_add_u32 v10, s33, v10')
    for t in range(2):
        for rq in range(4):
            a(f'buffer_load_dwordx2 v[{32+(t*4+rq)*2}:{33+(t*4+rq)*2}], v10, s[{sX}:{sX+3}], 0 offen offset:{t*64 + rq*16}')
    a('s_waitcnt vmcnt(0)')
    for t in range(2):
        acc = 64 + (t * 2) * 16
        for rq in range(4):
            xr = 32 + (t * 4 + rq) * 2
            a(f'v_lshlrev_b32 v12, 16, v{xr}')
            a(f'v_and_b32 v13, 0xffff0000, v{xr}')
            a(f'v_lshlrev_b32 v14, 16, v{xr+1}')
            a(f'v_and_b32 v15, 0xffff0000, v{xr+1}')
            for q in range(4):
                a(f'v_add_f32 v{12+q}, v{12+q}, v{acc+rq*4+q}')
            a('v_cvt_pk_bf16_f32 v12, v12, v13')
            a('v_cvt_pk_bf16_f32 v13, v14, v15')
            a(f'buffer_store_dwordx2 v[12:13], v10, s[{sO}:{sO+3}], 0 offen offset:{t*64 + rq*16}')
            a('s_nop 0')
    a.label('G2_done')
    a('s_endpgm')
    return kernel_desc(name, 128, 56)


def gen_gemm1v2(a):
    name = 'gemm1_kernel'
    kernel_header(a, name)
    STAGE = 73728
    BOFF = 32768
    sA, sO = 4, 12
    a('s_cmp_ge_u32 s2, 256')
    a('s_cbranch_scc1 G1_done')
    a('s_load_dwordx2 s[16:17], s[0:1], 8')
    a('s_load_dwordx2 s[18:19], s[0:1], 32')
    a('s_load_dwordx2 s[20:21], s[0:1], 40')
    a('s_load_dwordx2 s[22:23], s[0:1], 72')
    a('v_lshrrev_b32 v1, 6, v0')
    a('v_and_b32 v0, 63, v0')
    a('s_nop 0')
    a('v_readfirstlane_b32 s24, v1')
    a('s_and_b32 s25, s2, 7')
    a('s_lshr_b32 s26, s2, 3')
    a('s_and_b32 s27, s26, 7')
    a('s_lshr_b32 s28, s26, 3')
    a('s_lshl_b32 s29, s25, 2')
    a('s_add_u32 s28, s28, s29')
    a('s_lshr_b32 s30, s24, 1')
    a('s_and_b32 s31, s24, 1')
    a('s_waitcnt lgkmcnt(0)')
    srd_from(a, sA, 22, 2048 * 2048, XN_OFF)
    a('v_lshrrev_b32 v10, 3, v0')
    a('v_and_b32 v11, 7, v0')
    a('v_lshrrev_b32 v12, 4, v0')
    a('s_lshl_b32 s34, s27, 8')
    a('s_lshl_b32 s35, s24, 5')
    a('s_add_u32 s34, s34, s35')
    a('v_add_u32 v13, s34, v10')
    a('v_lshlrev_b32 v13, 11, v13')
    a('v_xor_b32 v14, v11, v12')
    a('v_lshlrev_b32 v14, 4, v14')
    a('v_xor_b32 v15, 4, v11')
    a('v_xor_b32 v15, v15, v12')
    a('v_lshlrev_b32 v15, 4, v15')
    a('v_add_u32 v2, v13, v14')
    a('v_add_u32 v3, v13, v15')
    a('v_add_u32 v3, 0x4000, v3')
    a('v_add_u32 v4, 0x8000, v2')
    a('v_add_u32 v5, 0x8000, v3')
    a('s_mul_i32 s34, s28, 192')
    a('s_mul_i32 s35, s28, 224')
    for i in range(5):
        A0, A1, ST = 6 + 2 * i, 7 + 2 * i, 16 + i
        a(f'v_add_u32 v21, {64*i}, v0')
        a('v_mul_u32_u24 v22, 0xcccd, v21')
        a('v_lshrrev_b32 v22, 21, v22')
        a('v_mul_u32_u24 v23, 40, v22')
        a('v_sub_u32 v23, v21, v23')
        a('s_lshl_b32 s36, s24, 3')
        a('v_add_u32 v22, s36, v22')
        a('v_bfe_u32 v21, v22, 1, 1')
        a('v_bfe_u32 v24, v22, 3, 1')
        a('v_lshlrev_b32 v24, 1, v24')
        a('v_add_u32 v21, v21, v24')
        a('v_lshlrev_b32 v21, 1, v21')
        a('v_xor_b32 v23, v23, v21')
        a('v_lshlrev_b32 v24, 4, v23')
        a('v_add_u32 v25, s35, v24')
        a(f'v_subrev_u32 v26, {16*30 - 64}, v25')
        a('v_mov_b32 v27, s20')
        a('v_mov_b32 v28, s21')
        a('v_mov_b32 v29, 7168')
        a('v_cmp_gt_u32 vcc, 30, v23')
        a('s_nop 1')
        a(f'v_subrev_u32 v21, {16*20 - 64}, v25')
        a('v_cndmask_b32 v26, v26, v21, vcc')
        a('v_mov_b32 v21, s18')
        a('v_cndmask_b32 v27, v27, v21, vcc')
        a('v_mov_b32 v21, s19')
        a('v_cndmask_b32 v28, v28, v21, vcc')
        a('v_cmp_gt_u32 vcc, 20, v23')
        a('s_nop 1')
        a(f'v_subrev_u32 v21, {16*16}, v25')
        a('v_cndmask_b32 v26, v26, v21, vcc')
        a('v_mov_b32 v21, s20')
        a('v_cndmask_b32 v27, v27, v21, vcc')
        a('v_mov_b32 v21, s21')
        a('v_cndmask_b32 v28, v28, v21, vcc')
        a('v_cmp_gt_u32 vcc, 16, v23')
        a('s_nop 1')
        a(f'v_subrev_u32 v21, {16*12}, v25')
        a('v_cndmask_b32 v26, v26, v21, vcc')
        a('v_mov_b32 v21, s18')
        a('v_cndmask_b32 v27, v27, v21, vcc')
        a('v_mov_b32 v21, s19')
        a('v_cndmask_b32 v28, v28, v21, vcc')
        a('v_cmp_gt_u32 vcc, 12, v23')
        a('s_nop 1')
        a('v_add_u32 v21, s34, v24')
        a('v_cndmask_b32 v26, v26, v21, vcc')
        a('v_mov_b32 v21, s16')
        a('v_cndmask_b32 v27, v27, v21, vcc')
        a('v_mov_b32 v21, s17')
        a('v_cndmask_b32 v28, v28, v21, vcc')
        a('v_mov_b32 v21, 6144')
        a('v_cndmask_b32 v29, v29, v21, vcc')
        a('v_mul_lo_u32 v21, v22, v29')
        a('v_add_u32 v21, v21, v26')
        a(f'v_add_co_u32 v{A0}, vcc, v27, v21')
        a('s_nop 1')
        a(f'v_addc_co_u32 v{A1}, vcc, 0, v28, vcc')
        a(f'v_lshlrev_b32 v{ST}, 6, v29')
    a('s_lshl_b32 s38, s24, 12')
    a('s_mul_i32 s39, s24, 5120')
    a('v_and_b32 v24, 15, v0')
    a('v_lshrrev_b32 v25, 4, v0')
    a('s_lshl_b32 s35, s30, 6')
    a('v_add_u32 v26, s35, v24')
    a('v_lshlrev_b32 v26, 7, v26')
    a('v_lshrrev_b32 v27, 1, v24')
    for ks in range(2):
        a(f'v_add_u32 v28, {ks*4}, v25')
        a('v_xor_b32 v28, v28, v27')
        a('v_lshlrev_b32 v28, 4, v28')
        a(f'v_add_u32 v{21+ks}, v26, v28')
    a('v_lshlrev_b32 v26, 3, v25')
    a('v_lshrrev_b32 v27, 2, v24')
    a('v_add_u32 v26, v26, v27')
    a('v_mul_u32_u24 v26, 640, v26')
    a('v_and_b32 v27, 1, v24')
    a('v_lshlrev_b32 v27, 3, v27')
    a('v_add_u32 v26, v26, v27')
    a(f'v_add_u32 v26, {BOFF}, v26')
    a('v_bfe_u32 v27, v24, 3, 1')
    a('v_lshlrev_b32 v27, 1, v27')
    a('v_and_b32 v32, 1, v25')
    a('v_lshlrev_b32 v32, 2, v32')
    a('v_add_u32 v27, v27, v32')
    a('v_bfe_u32 v32, v24, 1, 1')
    a('s_lshl_b32 s35, s31, 1')
    a('s_mul_i32 s36, s31, 10')
    for j in range(4):
        a(f's_add_u32 s37, s35, {j}')
        a('s_and_b32 s37, s37, 3')
        a('s_lshl_b32 s37, s37, 1')
        a('v_add_u32 v33, s37, v32')
        a('v_xor_b32 v33, v33, v27')
        a('v_lshlrev_b32 v33, 4, v33')
        a(f's_add_u32 s37, s36, {j}')
        a('s_lshr_b32 s37, s37, 2')
        a('s_lshl_b32 s37, s37, 7')
        a('v_add_u32 v33, s37, v33')
        a(f'v_add_u32 v{28+j}, v26, v33')
    a(f'v_add_u32 v23, {STAGE}, v21')
    a(f'v_add_u32 v24, {STAGE}, v22')
    for j in range(4):
        a(f'v_add_u32 v{32+j}, {STAGE}, v{28+j}')
    XF = 36
    WF = [52, 72]
    ACC = 96
    for i in range(ACC, 256):
        a(f'v_mov_b32 v{i}, 0')
    a('s_mov_b32 s40, 0')

    def dma_one(stage, idx):
        if idx < 4:
            a(f's_add_u32 m0, s38, {stage*STAGE + idx*1024}')
            a('s_nop 0')
            a(f'buffer_load_dwordx4 v{2+idx}, s[{sA}:{sA+3}], s40 offen lds')
        else:
            i = idx - 4
            a(f's_add_u32 m0, s39, {stage*STAGE + BOFF + i*1024}')
            a('s_nop 0')
            a(f'global_load_lds_dwordx4 v[{6+2*i}:{7+2*i}], off')
            a(f'v_add_co_u32 v{6+2*i}, vcc, v{6+2*i}, v{16+i}')
            a('s_nop 1')
            a(f'v_addc_co_u32 v{7+2*i}, vcc, 0, v{7+2*i}, vcc')
        if idx == 8:
            a('s_add_u32 s40, s40, 128')

    def xreads(stage, ks):
        for mb in range(4):
            a(f'ds_read_b128 v[{XF+mb*4}:{XF+mb*4+3}], v{21+ks+2*stage} offset:{mb*2048}')

    def wreads(stage, ks, hb, st):
        for bb in range(5):
            b = hb * 5 + bb
            for half in range(2):
                r = WF[st] + bb * 4 + half * 2
                a(f'ds_read_b64_tr_b16 v[{r}:{r+1}], v{28+4*stage+(b&3)} offset:{(b>>2)*128 + (ks*32 + half*4)*640}')

    def mfmas(hb, st, dmas):
        n = 0
        for bb in range(5):
            b = hb * 5 + bb
            for mb in range(4):
                acc = ACC + (b * 4 + mb) * 4
                a(f'v_mfma_f32_16x16x32_bf16 v[{acc}:{acc+3}], v[{WF[st]+bb*4}:{WF[st]+bb*4+3}], v[{XF+mb*4}:{XF+mb*4+3}], v[{acc}:{acc+3}]')
                n += 1
                if n % 4 == 0 and dmas:
                    dmas.pop(0)()

    NSTEP = 16
    for idx in range(9):
        dma_one(0, idx)
    for s in range(NSTEP):
        stage = s & 1
        a('s_waitcnt vmcnt(0)')
        a('s_barrier')
        dm = []
        if s + 1 < NSTEP:
            dm = [(lambda idx=idx: dma_one(stage ^ 1, idx)) for idx in range(9)]
        xreads(stage, 0)
        wreads(stage, 0, 0, 0)
        a('s_waitcnt lgkmcnt(0)')
        wreads(stage, 0, 1, 1)
        mfmas(0, 0, dm)
        a('s_waitcnt lgkmcnt(0)')
        wreads(stage, 1, 0, 0)
        mfmas(1, 1, dm)
        xreads(stage, 1)
        a('s_waitcnt lgkmcnt(0)')
        wreads(stage, 1, 1, 1)
        mfmas(0, 0, None)
        a('s_waitcnt lgkmcnt(0)')
        mfmas(1, 1, None)
        assert not dm
    a('s_nop 15')
    srd_from(a, sO, 22, 2048 * LD_OH, OH_OFF)
    a('v_and_b32 v10, 15, v0')
    a('s_lshl_b32 s34, s27, 8')
    a('s_lshl_b32 s35, s30, 6')
    a('s_add_u32 s34, s34, s35')
    a('v_add_u32 v10, s34, v10')
    a('v_lshrrev_b32 v11, 4, v0')
    a('v_lshlrev_b32 v11, 3, v11')
    a('s_mov_b32 s36, %d' % LD_OH)
    a('v_mul_lo_u32 v12, v10, s36')
    a('v_add_u32 v12, v12, v11')
    a('s_mul_i32 s35, s28, 224')
    a('s_add_u32 s35, s35, 2048')
    a('v_add_u32 v12, s35, v12')

    def hstore(gb, ub, foff_bytes):
        for mb in range(4):
            g = ACC + (gb * 4 + mb) * 4
            u = ACC + (ub * 4 + mb) * 4
            for p in range(2):
                a(f'v_cvt_pk_bf16_f32 v14, v{g+2*p}, v{g+2*p+1}')
                a(f'v_cvt_pk_bf16_f32 v15, v{u+2*p}, v{u+2*p+1}')
                a('v_lshlrev_b32 v16, 16, v14')
                a('v_and_b32 v17, 0xffff0000, v14')
                a('v_lshlrev_b32 v18, 16, v15')
                a('v_and_b32 v19, 0xffff0000, v15')
                a('v_max_f32 v16, 0, v16')
                a('v_max_f32 v17, 0, v17')
                a('v_mul_f32 v16, v16, v18')
                a('v_mul_f32 v17, v17, v19')
                a(f'v_cvt_pk_bf16_f32 v{20+p}, v16, v17')
            a(f'v_add_u32 v13, {mb*16*LD_OH}, v12')
            a(f'buffer_store_dwordx2 v[20:21], v13, s[{sO}:{sO+3}], 0 offen offset:{foff_bytes}')
            a('s_nop 0')

    a('s_cmp_eq_u32 s31, 0')
    a('s_cbranch_scc0 G1_epi1')
    hstore(6, 8, 0)
    hstore(7, 9, 32)
    srd_from(a, sO, 22, 2048 * LD_QKV, QKV_OFF)
    a('s_mov_b32 s36, %d' % LD_QKV)
    a('v_mul_lo_u32 v12, v10, s36')
    a('v_add_u32 v12, v12, v11')
    a('s_mul_i32 s35, s28, 192')
    a('v_add_u32 v12, s35, v12')
    for b in range(6):
        for mb in range(4):
            q = ACC + (b * 4 + mb) * 4
            a(f'v_cvt_pk_bf16_f32 v20, v{q}, v{q+1}')
            a(f'v_cvt_pk_bf16_f32 v21, v{q+2}, v{q+3}')
            a(f'v_add_u32 v13, {mb*16*LD_QKV}, v12')
            a(f'buffer_store_dwordx2 v[20:21], v13, s[{sO}:{sO+3}], 0 offen offset:{b*32}')
            a('s_nop 0')
    a('s_branch G1_done')
    a.label('G1_epi1')
    for bb in range(5):
        hstore(bb, 5 + bb, 64 + bb * 32)
    a.label('G1_done')
    a('s_endpgm')
    return kernel_desc(name, 256, 48)


class LdsSB:
    def __init__(self, a):
        self.a = a
        self.q = []
    def issue(self, tag):
        self.q.append(tag)
        assert len(self.q) <= 15
    def need(self, tags):
        last = -1
        for i, t in enumerate(self.q):
            if t in tags:
                last = i
        if last < 0:
            return
        n = len(self.q) - 1 - last
        self.a(f's_waitcnt lgkmcnt({n})')
        self.q = self.q[last + 1:]


def gen_gemm1v3(a):
    name = 'gemm1_kernel'
    kernel_header(a, name)
    STAGE = 36864
    BOFF = 16384
    NST = 4
    sA, sO = 4, 12
    a('s_cmp_ge_u32 s2, 256')
    a('s_cbranch_scc1 G1_done')
    a('s_load_dwordx2 s[16:17], s[0:1], 8')
    a('s_load_dwordx2 s[18:19], s[0:1], 32')
    a('s_load_dwordx2 s[20:21], s[0:1], 40')
    a('s_load_dwordx2 s[22:23], s[0:1], 72')
    a('v_lshrrev_b32 v1, 6, v0')
    a('v_and_b32 v0, 63, v0')
    a('s_nop 0')
    a('v_readfirstlane_b32 s24, v1')
    a('s_and_b32 s25, s2, 7')
    a('s_lshr_b32 s26, s2, 3')
    a('s_and_b32 s27, s26, 7')
    a('s_lshr_b32 s28, s26, 3')
    a('s_lshl_b32 s29, s25, 2')
    a('s_add_u32 s28, s28, s29')
    a('s_lshr_b32 s30, s24, 1')
    a('s_and_b32 s31, s24, 1')
    a('s_waitcnt lgkmcnt(0)')
    srd_from(a, sA, 22, 2048 * 2048, XN_OFF)
    a('v_lshrrev_b32 v10, 2, v0')
    a('v_and_b32 v11, 3, v0')
    a('v_lshrrev_b32 v12, 4, v0')
    a('v_sub_u32 v12, 0, v12')
    a('v_and_b32 v12, 3, v12')
    a('v_xor_b32 v11, v11, v12')
    a('v_lshlrev_b32 v11, 4, v11')
    a('s_lshl_b32 s34, s27, 8')
    a('s_lshl_b32 s35, s24, 5')
    a('s_add_u32 s34, s34, s35')
    a('v_add_u32 v13, s34, v10')
    a('v_lshlrev_b32 v13, 11, v13')
    a('v_add_u32 v2, v13, v11')
    a('v_add_u32 v3, 0x8000, v2')
    a('s_mul_i32 s34, s28, 192')
    a('s_mul_i32 s35, s28, 224')
    for i in range(3):
        A0, A1, ST = 6 + 2 * i, 7 + 2 * i, 16 + i
        a('s_lshl_b32 s36, s24, 6')
        a(f's_add_u32 s36, s36, {512*i}')
        a('v_add_u32 v21, s36, v0')
        a('v_mul_u32_u24 v22, 0xcccd, v21')
        a('v_lshrrev_b32 v22, 21, v22')
        a('v_mul_u32_u24 v23, 40, v22')
        a('v_sub_u32 v23, v21, v23')
        a('v_bfe_u32 v21, v22, 1, 1')
        a('v_bfe_u32 v24, v22, 3, 1')
        a('v_lshlrev_b32 v24, 1, v24')
        a('v_add_u32 v21, v21, v24')
        a('v_lshlrev_b32 v21, 1, v21')
        a('v_xor_b32 v23, v23, v21')
        a('v_lshlrev_b32 v24, 4, v23')
        a('v_add_u32 v25, s35, v24')
        a(f'v_subrev_u32 v26, {16*30 - 64}, v25')
        a('v_mov_b32 v27, s20')
        a('v_mov_b32 v28, s21')
        a('v_mov_b32 v29, 7168')
        for (lim, sub, lo, hi) in ((30, 16*20 - 64, 18, 19), (20, 16*16, 20, 21), (16, 16*12, 18, 19)):
            a(f'v_cmp_gt_u32 vcc, {lim}, v23')
            a(f'v_subrev_u32 v21, {sub}, v25')
            a('s_nop 0')
            a('v_cndmask_b32 v26, v26, v21, vcc')
            a(f'v_mov_b32 v21, s{lo}')
            a('v_cndmask_b32 v27, v27, v21, vcc')
            a(f'v_mov_b32 v21, s{hi}')
            a('v_cndmask_b32 v28, v28, v21, vcc')
        a('v_cmp_gt_u32 vcc, 12, v23')
        a('v_add_u32 v21, s34, v24')
        a('s_nop 0')
        a('v_cndmask_b32 v26, v26, v21, vcc')
        a('v_mov_b32 v21, s16')
        a('v_cndmask_b32 v27, v27, v21, vcc')
        a('v_mov_b32 v21, s17')
        a('v_cndmask_b32 v28, v28, v21, vcc')
        a('v_mov_b32 v21, 6144')
        a('v_cndmask_b32 v29, v29, v21, vcc')
        a('v_mul_lo_u32 v21, v22, v29')
        a('v_add_u32 v21, v21, v26')
        a(f'v_add_co_u32 v{A0}, vcc, v27, v21')
        a('s_nop 1')
        a(f'v_addc_co_u32 v{A1}, vcc, 0, v28, vcc')
        a(f'v_lshlrev_b32 v{ST}, 5, v29')
    a('s_lshl_b32 s38, s24, 11')
    a('s_lshl_b32 s39, s24, 10')
    a('v_and_b32 v24, 15, v0')
    a('v_lshrrev_b32 v25, 4, v0')
    a('s_lshl_b32 s35, s30, 6')
    a('v_add_u32 v26, s35, v24')
    a('v_lshlrev_b32 v26, 6, v26')
    a('v_lshrrev_b32 v27, 2, v24')
    a('v_sub_u32 v27, 0, v27')
    a('v_and_b32 v27, 3, v27')
    a('v_xor_b32 v27, v27, v25')
    a('v_lshlrev_b32 v27, 4, v27')
    a('v_add_u32 v21, v26, v27')
    a('v_lshlrev_b32 v26, 3, v25')
    a('v_lshrrev_b32 v27, 2, v24')
    a('v_add_u32 v26, v26, v27')
    a('v_mul_u32_u24 v26, 640, v26')
    a('v_and_b32 v27, 1, v24')
    a('v_lshlrev_b32 v27, 3, v27')
    a('v_add_u32 v26, v26, v27')
    a(f'v_add_u32 v26, {BOFF}, v26')
    a('v_bfe_u32 v27, v24, 3, 1')
    a('v_lshlrev_b32 v27, 1, v27')
    a('v_and_b32 v32, 1, v25')
    a('v_lshlrev_b32 v32, 2, v32')
    a('v_add_u32 v27, v27, v32')
    a('v_bfe_u32 v32, v24, 1, 1')
    a('s_lshl_b32 s35, s31, 1')
    a('s_mul_i32 s36, s31, 10')
    for j in range(4):
        a(f's_add_u32 s37, s35, {j}')
        a('s_and_b32 s37, s37, 3')
        a('s_lshl_b32 s37, s37, 1')
        a('v_add_u32 v33, s37, v32')
        a('v_xor_b32 v33, v33, v27')
        a('v_lshlrev_b32 v33, 4, v33')
        a(f's_add_u32 s37, s36, {j}')
        a('s_lshr_b32 s37, s37, 2')
        a('s_lshl_b32 s37, s37, 7')
        a('v_add_u32 v33, s37, v33')
        a(f'v_add_u32 v{28+j}, v26, v33')
    a(f'v_add_u32 v22, {2*STAGE}, v21')
    for j in range(4):
        a(f'v_add_u32 v{32+j}, {2*STAGE}, v{28+j}')
    XF = [36, 52]
    WR = 68
    RING = 6
    PF = P.get('PF', 4)
    ACC = 96
    for i in range(ACC, 256):
        a(f'v_mov_b32 v{i}, 0')
    a('s_mov_b32 s40, 0')

    def dma_one(stage, idx):
        if P.get('nodma'):
            return
        if P.get('noA') and idx < 2:
            return
        if P.get('noB') and idx >= 2:
            return
        if idx < 2:
            a(f's_add_u32 m0, s38, {stage*STAGE + idx*1024}')
            a('s_nop 0')
            a(f'buffer_load_dwordx4 v{2+idx}, s[{sA}:{sA+3}], s40 offen lds')
            if idx == 1:
                a('s_add_u32 s40, s40, 64')
        else:
            i = idx - 2
            if i == 2:
                a('s_cmp_ge_u32 s24, 4')
                a(f's_cbranch_scc1 G1_sk{dma_one.n}')
            a(f's_add_u32 m0, s39, {stage*STAGE + BOFF + i*8192}')
            a('s_nop 0')
            a(f'global_load_lds_dwordx4 v[{6+2*i}:{7+2*i}], off')
            a(f'v_add_co_u32 v{6+2*i}, vcc, v{6+2*i}, v{16+i}')
            a('s_nop 1')
            a(f'v_addc_co_u32 v{7+2*i}, vcc, 0, v{7+2*i}, vcc')
            if i == 2:
                a.label(f'G1_sk{dma_one.n}')
                dma_one.n += 1
    dma_one.n = 0

    sb = LdsSB(a)
    NSTEP = 32

    def xread(s, mb):
        if P.get('nords'):
            return
        stage = s % NST
        a(f'ds_read_b128 v[{XF[s&1]+mb*4}:{XF[s&1]+mb*4+3}], v{21+(stage>>1)} offset:{(stage&1)*STAGE + mb*1024}')
        sb.issue(('x', s, mb))

    def wread(n):
        if P.get('nords'):
            return
        s, b = divmod(n, 10)
        stage = s % NST
        r = WR + (n % RING) * 4
        for half in range(2):
            a(f'ds_read_b64_tr_b16 v[{r+half*2}:{r+half*2+1}], v{28+4*(stage>>1)+(b&3)} offset:{(stage&1)*STAGE + (b>>2)*128 + half*4*640}')
            sb.issue(('w', n))

    for s in range(3):
        for idx in range(5):
            dma_one(s, idx)
    a('s_waitcnt vmcnt(8)')
    a('s_barrier')
    for mb in range(4):
        xread(0, mb)
    for n in range(PF):
        wread(n)
    NSLOT = NSTEP * 10
    if P.get('prio'):
        a('s_cmp_ge_u32 s24, 4')
        a('s_cbranch_scc0 G1_noprio')
        a('s_setprio 1')
        a.label('G1_noprio')
    for n in range(NSLOT):
        s, b = divmod(n, 10)
        if b == 0:
            if s + 1 < NSTEP:
                newer = 4 if s + 2 < NSTEP else 0
                a(f's_waitcnt vmcnt({newer})')
                a('s_barrier')
        if n + PF < NSLOT:
            wread(n + PF)
        if 5 <= b <= 8 and s + 1 < NSTEP:
            xread(s + 1, b - 5)
        sb.need([('w', n)] + [('x', s, mb) for mb in range(4)])
        r = WR + (n % RING) * 4
        for mb in range(4):
            acc = ACC + (b * 4 + mb) * 4
            if not P.get('nomfma'):
                a(f'v_mfma_f32_16x16x32_bf16 v[{acc}:{acc+3}], v[{r}:{r+3}], v[{XF[s&1]+mb*4}:{XF[s&1]+mb*4+3}], v[{acc}:{acc+3}]')
        if P.get('dma_burst'):
            if b == 0 and s + 3 < NSTEP:
                for idx in range(5):
                    dma_one((s + 3) % NST, idx)
        elif P.get('dma_late'):
            if b >= 5 and s + 3 < NSTEP:
                dma_one((s + 3) % NST, b - 5)
        elif b < 5 and s + 3 < NSTEP:
            dma_one((s + 3) % NST, b)
    a('s_nop 15')
    RS = 432
    a('s_barrier')
    a('v_and_b32 v10, 15, v0')
    a('v_lshrrev_b32 v11, 4, v0')
    a('s_lshl_b32 s35, s30, 6')
    a('v_add_u32 v10, s35, v10')
    a(f'v_mul_u32_u24 v12, {RS}, v10')
    a('v_lshlrev_b32 v11, 3, v11')
    a('v_add_u32 v12, v12, v11')

    def hcalc(gb, ub, mb):
        g_ = ACC + (gb * 4 + mb) * 4
        u_ = ACC + (ub * 4 + mb) * 4
        for p in range(2):
            a(f'v_cvt_pk_bf16_f32 v14, v{g_+2*p}, v{g_+2*p+1}')
            a(f'v_cvt_pk_bf16_f32 v15, v{u_+2*p}, v{u_+2*p+1}')
            a('v_lshlrev_b32 v16, 16, v14')
            a('v_and_b32 v17, 0xffff0000, v14')
            a('v_lshlrev_b32 v18, 16, v15')
            a('v_and_b32 v19, 0xffff0000, v15')
            a('v_max_f32 v16, 0, v16')
            a('v_max_f32 v17, 0, v17')
            a('v_mul_f32 v16, v16, v18')
            a('v_mul_f32 v17, v17, v19')
            a(f'v_cvt_pk_bf16_f32 v{20+p}, v16, v17')

    a('s_cmp_eq_u32 s31, 0')
    a('s_cbranch_scc0 G1_epi1')
    for b in range(6):
        for mb in range(4):
            q = ACC + (b * 4 + mb) * 4
            a(f'v_cvt_pk_bf16_f32 v20, v{q}, v{q+1}')
            a(f'v_cvt_pk_bf16_f32 v21, v{q+2}, v{q+3}')
            a(f'ds_write_b64 v12, v[20:21] offset:{mb*16*RS + b*32}')
    for bb in range(2):
        for mb in range(4):
            hcalc(6 + bb, 8 + bb, mb)
            a(f'ds_write_b64 v12, v[20:21] offset:{mb*16*RS + 192 + bb*32}')
    a('s_branch G1_epi2')
    a.label('G1_epi1')
    for bb in range(5):
        for mb in range(4):
            hcalc(bb, 5 + bb, mb)
            a(f'ds_write_b64 v12, v[20:21] offset:{mb*16*RS + 192 + 64 + bb*32}')
    a.label('G1_epi2')
    a('s_waitcnt lgkmcnt(0)')
    a('s_barrier')
    srd_from(a, sO, 22, 64 << 20)
    a('s_lshl_b32 s34, s27, 8')
    a('s_lshl_b32 s35, s24, 5')
    a('s_add_u32 s34, s34, s35')
    a('s_mul_i32 s36, s28, 192')
    a(f's_add_u32 s36, s36, {QKV_OFF}')
    a('s_mul_i32 s37, s28, 224')
    a(f's_add_u32 s37, s37, {OH_OFF + 2048}')
    for k in range(13):
        a(f'v_add_u32 v21, {64*k}, v0')
        a('v_mul_u32_u24 v22, 0x9d8a, v21')
        a('v_lshrrev_b32 v22, 20, v22')
        a('v_mul_u32_u24 v23, 26, v22')
        a('v_sub_u32 v23, v21, v23')
        a('v_add_u32 v24, s35, v22')
        a(f'v_mul_u32_u24 v24, {RS}, v24')
        a('v_lshlrev_b32 v25, 4, v23')
        a('v_add_u32 v24, v24, v25')
        R = 96 + (k & 3) * 4
        a(f'ds_read_b128 v[{R}:{R+3}], v24')
        a('v_add_u32 v22, s34, v22')
        a(f'v_mul_u32_u24 v26, {LD_QKV}, v22')
        a('v_add_u32 v26, s36, v26')
        a(f'v_mul_u32_u24 v27, {LD_OH}, v22')
        a('v_add_u32 v27, s37, v27')
        a('v_subrev_u32 v27, 192, v27')
        a('v_cmp_gt_u32 vcc, 12, v23')
        a('s_nop 1')
        a('v_cndmask_b32 v26, v27, v26, vcc')
        a(f'v_add_u32 v{40+k}, v26, v25')
        if (k & 3) == 3 or k == 12:
            a('s_waitcnt lgkmcnt(0)')
            for kk in range(k - (k & 3), k + 1):
                R = 96 + (kk & 3) * 4
                a(f'buffer_store_dwordx4 v[{R}:{R+3}], v{40+kk}, s[{sO}:{sO+3}], 0 offen')
            a('s_nop 1')
    a.label('G1_done')
    a('s_endpgm')
    return kernel_desc(name, 256, 48)


def main():
    a = A()
    launches = []
    descs = []
    head = open(f'cdna_kernels/{NAME}.s.ref').read().split('\n')
    hdr = [l for l in head if l.startswith(';') and '@launch' not in l and 'Override launch' not in l and 'grid=ceil' not in l]
    which = sys.argv[1:] or ['ln', 'gemm1v3', 'attn', 'gemm2']
    body = A()
    if 'ln' in which:
        launches.append('; @launch kernel=ln_kernel grid=(%d,1,1) block=(256,1,1) lds=0' % (512 + (160 if P.get('pf') else 0)))
        descs.append(gen_ln(body))
    if 'gemm1v3' in which:
        launches.append('; @launch kernel=gemm1_kernel grid=(256,1,1) block=(512,1,1) lds=147456')
        descs.append(gen_gemm1v3(body))
    if 'gemm1v2' in which:
        launches.append('; @launch kernel=gemm1_kernel grid=(256,1,1) block=(512,1,1) lds=147456')
        descs.append(gen_gemm1v2(body))
    if 'gemm1' in which:
        launches.append(f'; @launch kernel=gemm1_kernel grid=(1280,1,1) block=(256,1,1) lds={32768*P["g1_nst"]}')
        descs.append(gen_gemm1(body))
    if 'attn' in which:
        launches.append('; @launch kernel=attn_kernel grid=(%d,1,1) block=(256,1,1) lds=40960' % (1024 + (72 if P.get('pf') else 0)))
        descs.append(gen_attn(body))
    if 'gemm2' in which:
        launches.append('; @launch kernel=gemm2_kernel grid=(256,1,1) block=(256,1,1) lds=98304')
        descs.append(gen_gemm2(body))
    out = '\n'.join(hdr) + '\n' + '\n'.join(launches) + '\n'
    out += '.amdgcn_target "amdgcn-amd-amdhsa--gfx950"\n.text\n'
    out += body.text()
    out += '.section .rodata,"a"\n.p2align 6\n' + '.p2align 6\n'.join(descs)
    open(os.environ.get('OUT', f'cdna_kernels/{NAME}.s'), 'w').write(out)


main()
```

```python
import sys

NAME = 'parallel_sum__sliding_block__glu_gated_reglu__prompt'
XN_OFF, QKV_OFF, OH_OFF = 0, 4 << 20, 16 << 20
LD_OH = 4608 * 2
LD_QKV = 3072 * 2


P = {'g1_nst': 2, 'pf': 1, 'g2_il': 1}
import os, json
if os.environ.get('GP'):
    P.update(json.loads(os.environ['GP']))

class A:
    def __init__(self):
        self.lines = []

    def __call__(self, s):
        for l in s.strip('\n').split('\n'):
            self.lines.append('    ' + l.strip())

    def label(self, s):
        self.lines.append(s + ':')

    def raw(self, s):
        self.lines.append(s)

    def text(self):
        return '\n'.join(self.lines) + '\n'


def emit_prefetch(a, label, done, base, mats):
    a.label(label)
    a(f's_sub_u32 s3, s2, {base}')
    tot = sum(n for _, n in mats)
    a(f's_cmp_ge_u32 s3, {tot}')
    a(f's_cbranch_scc1 {done}')
    a(f's_mov_b32 s4, {mats[0][0]}')
    a('s_mov_b32 s5, 0')
    acc = 0
    for (off, n), (noff, _) in zip(mats, mats[1:]):
        acc += n
        a(f's_cmp_ge_u32 s3, {acc}')
        a(f's_cselect_b32 s4, {noff}, s4')
        a(f's_cselect_b32 s5, {acc}, s5')
    a('s_sub_u32 s3, s3, s5')
    a('s_load_dwordx2 s[6:7], s[0:1], s4')
    a('s_lshl_b32 s3, s3, 17')
    a('s_waitcnt lgkmcnt(0)')
    a('s_mov_b32 s8, s6')
    a('s_mov_b32 s9, s7')
    a('s_mov_b32 s10, 7340032')
    a('s_mov_b32 s11, 0x00020000')
    a('v_lshlrev_b32 v1, 4, v0')
    a('v_add_u32 v1, s3, v1')
    for k in range(32):
        a(f'buffer_load_dwordx4 v[{4+(k&3)*4}:{7+(k&3)*4}], v1, s[8:11], 0 offen')
        if k < 31:
            a('v_add_u32 v1, 4096, v1')


def kernel_header(a, name):
    a.raw(f'.globl {name}')
    a.raw('.p2align 8')
    a.raw(f'.type {name},@function')
    a.label(name)


def kernel_desc(name, vgpr, sgpr, accum=None, wgy=False):
    accum = accum or ((vgpr + 3) // 4 * 4)
    return f'''.amdhsa_kernel {name}
  .amdhsa_next_free_vgpr {vgpr}
  .amdhsa_next_free_sgpr {sgpr}
  .amdhsa_accum_offset {accum}
  .amdhsa_group_segment_fixed_size 0
  .amdhsa_kernarg_size 80
  .amdhsa_user_sgpr_count 2
  .amdhsa_user_sgpr_kernarg_segment_ptr 1
  .amdhsa_system_sgpr_workgroup_id_x 1
.end_amdhsa_kernel
'''


def srd_from(a, dst, ptr, nbytes, off=0):
    if off:
        a(f's_add_u32 s{dst}, s{ptr}, {off}')
        a(f's_addc_u32 s{dst+1}, s{ptr+1}, 0')
    else:
        a(f's_mov_b32 s{dst}, s{ptr}')
        a(f's_mov_b32 s{dst+1}, s{ptr+1}')
    a(f's_mov_b32 s{dst+2}, {nbytes}')
    a(f's_mov_b32 s{dst+3}, 0x00020000')


def wave_sum(a, v, tmp, sdst):
    for off in (0x041F, 0x081F, 0x101F, 0x201F, 0x401F):
        a(f'ds_swizzle_b32 v{tmp}, v{v} offset:{off}')
        a('s_waitcnt lgkmcnt(0)')
        a(f'v_add_f32 v{v}, v{v}, v{tmp}')
    a('s_nop 0')
    a(f'v_readlane_b32 s{sdst}, v{v}, 32')
    a('s_nop 1')
    a(f'v_add_f32 v{v}, s{sdst}, v{v}')
    a('s_nop 0')
    a(f'v_readlane_b32 s{sdst}, v{v}, 0')
    a('s_nop 3')


def gen_ln(a):
    name = 'ln_kernel'
    kernel_header(a, name)
    a('s_cmp_ge_u32 s2, 512')
    a('s_cbranch_scc1 LN_pf' if P.get('pf') else 's_cbranch_scc1 LN_done')
    a('s_load_dwordx2 s[4:5], s[0:1], 0')
    a('s_load_dwordx2 s[6:7], s[0:1], 72')
    a('v_lshrrev_b32 v1, 6, v0')
    a('v_and_b32 v2, 63, v0')
    a('s_lshl_b32 s3, s2, 2')
    a('v_add_u32 v1, s3, v1')
    a('v_lshlrev_b32 v1, 11, v1')
    a('v_lshlrev_b32 v2, 5, v2')
    a('v_add_u32 v1, v1, v2')
    a('s_waitcnt lgkmcnt(0)')
    srd_from(a, 8, 4, 2048 * 2048)
    srd_from(a, 12, 6, 2048 * 2048, XN_OFF)
    a('buffer_load_dwordx4 v[4:7], v1, s[8:11], 0 offen')
    a('buffer_load_dwordx4 v[8:11], v1, s[8:11], 0 offen offset:16')
    a('s_waitcnt vmcnt(0)')
    for i in range(8):
        a(f'v_lshlrev_b32 v{16+2*i}, 16, v{4+i}')
        a(f'v_and_b32 v{17+2*i}, 0xffff0000, v{4+i}')
    a('v_add_f32 v12, v16, v17')
    for i in range(18, 32):
        a(f'v_add_f32 v12, v12, v{i}')
    wave_sum(a, 12, 13, 20)
    a('v_mov_b32 v14, 0x3a800000')
    a('v_mul_f32 v14, s20, v14')
    a('v_mov_b32 v12, 0')
    for i in range(16, 32):
        a(f'v_sub_f32 v13, v{i}, v14')
        a(f'v_fmac_f32 v12, v13, v13')
    wave_sum(a, 12, 13, 21)
    a('v_mov_b32 v15, 0x3a800000')
    a('v_mul_f32 v15, s21, v15')
    a('v_cvt_pk_bf16_f32 v12, v14, v15')
    a('v_lshlrev_b32 v14, 16, v12')
    a('v_and_b32 v15, 0xffff0000, v12')
    a('v_mov_b32 v13, 0x3727c5ac')
    a('v_add_f32 v15, v15, v13')
    a('v_cvt_pk_bf16_f32 v15, v15, v15')
    a('v_lshlrev_b32 v15, 16, v15')
    a('v_sqrt_f32 v15, v15')
    a('s_nop 0')
    a('v_cvt_pk_bf16_f32 v15, v15, v15')
    a('v_lshlrev_b32 v15, 16, v15')
    a('v_rcp_f32 v15, v15')
    a('s_nop 0')
    for i in range(8):
        a(f'v_sub_f32 v{16+2*i}, v{16+2*i}, v14')
        a(f'v_sub_f32 v{17+2*i}, v{17+2*i}, v14')
        a(f'v_cvt_pk_bf16_f32 v12, v{16+2*i}, v{17+2*i}')
        a(f'v_lshlrev_b32 v{16+2*i}, 16, v12')
        a(f'v_and_b32 v{17+2*i}, 0xffff0000, v12')
        a(f'v_mul_f32 v{16+2*i}, v{16+2*i}, v15')
        a(f'v_mul_f32 v{17+2*i}, v{17+2*i}, v15')
        a(f'v_cvt_pk_bf16_f32 v{4+i}, v{16+2*i}, v{17+2*i}')
    a('buffer_store_dwordx4 v[4:7], v1, s[12:15], 0 offen')
    a('buffer_store_dwordx4 v[8:11], v1, s[12:15], 0 offen offset:16')
    a('s_branch LN_done')
    if P.get('pf'):
        emit_prefetch(a, 'LN_pf', 'LN_done', 512, [(8, 48), (32, 56), (40, 56)])
        a('s_waitcnt vmcnt(0)')
    a.label('LN_done')
    a('s_endpgm')
    return kernel_desc(name, 32, 32)


def gen_gemm1(a):
    name = 'gemm1_kernel'
    kernel_header(a, name)
    STAGE = 32768
    sA, sB, sO = 4, 8, 12
    a('s_cmp_ge_u32 s2, 1280')
    a('s_cbranch_scc1 G1_done')
    a('s_load_dwordx2 s[16:17], s[0:1], 8')
    a('s_load_dwordx2 s[18:19], s[0:1], 32')
    a('s_load_dwordx2 s[20:21], s[0:1], 40')
    a('s_load_dwordx2 s[22:23], s[0:1], 72')
    a('v_lshrrev_b32 v1, 6, v0')
    a('v_and_b32 v0, 63, v0')
    a('s_nop 0')
    a('v_readfirstlane_b32 s24, v1')
    a('s_and_b32 s25, s2, 7')
    a('s_lshr_b32 s26, s2, 3')
    a('s_and_b32 s27, s26, 15')
    a('s_lshr_b32 s28, s26, 4')
    a('s_mul_i32 s29, s25, 10')
    a('s_add_u32 s28, s28, s29')
    a('s_lshr_b32 s30, s24, 1')
    a('s_and_b32 s31, s24, 1')
    a('s_waitcnt lgkmcnt(0)')
    srd_from(a, sA, 22, 2048 * 2048, XN_OFF)
    a('s_cmp_lt_u32 s28, 24')
    a('s_cbranch_scc0 G1_ffn')
    srd_from(a, sB, 16, 1024 * 6144)
    a('s_mov_b32 s32, 6144')
    a('s_lshl_b32 s33, s28, 8')
    a('s_lshl_b32 s34, s30, 7')
    a('s_add_u32 s33, s33, s34')
    a('s_branch G1_bdone')
    a.label('G1_ffn')
    a('s_cmp_eq_u32 s30, 0')
    a('s_cselect_b32 s8, s18, s20')
    a('s_cselect_b32 s9, s19, s21')
    a('s_mov_b32 s10, 7340032')
    a('s_mov_b32 s11, 0x00020000')
    a('s_mov_b32 s32, 7168')
    a('s_sub_u32 s33, s28, 24')
    a('s_lshl_b32 s33, s33, 7')
    a.label('G1_bdone')
    a('v_lshrrev_b32 v10, 3, v0')
    a('v_and_b32 v11, 7, v0')
    a('v_lshrrev_b32 v12, 4, v0')
    a('s_lshl_b32 s34, s27, 7')
    a('s_lshl_b32 s35, s24, 5')
    a('s_add_u32 s34, s34, s35')
    a('v_add_u32 v13, s34, v10')
    a('v_lshlrev_b32 v13, 11, v13')
    a('v_xor_b32 v14, v11, v12')
    a('v_lshlrev_b32 v14, 4, v14')
    a('v_xor_b32 v15, 4, v11')
    a('v_xor_b32 v15, v15, v12')
    a('v_lshlrev_b32 v15, 4, v15')
    a('v_add_u32 v2, v13, v14')
    a('v_add_u32 v3, v13, v15')
    a('v_add_u32 v3, 0x4000, v3')
    a('v_add_u32 v4, 0x8000, v2')
    a('v_add_u32 v5, 0x8000, v3')
    if P.get('seg64'):
        a('v_lshrrev_b32 v13, 2, v0')
        a('v_add_u32 v13, s34, v13')
        a('v_lshlrev_b32 v13, 11, v13')
        a('v_and_b32 v14, 3, v0')
        a('v_lshlrev_b32 v14, 4, v14')
        a('v_add_u32 v2, v13, v14')
        a('v_add_u32 v3, 64, v2')
        a('v_add_u32 v4, 0x8000, v2')
        a('v_add_u32 v5, 0x8000, v3')
    if P.get('contigA'):
        a('v_lshlrev_b32 v2, 4, v0')
        a('s_lshl_b32 s35, s24, 12')
        a('v_add_u32 v2, s35, v2')
        a('s_lshl_b32 s35, s27, 18')
        a('v_add_u32 v2, s35, v2')
        a('v_add_u32 v3, 1024, v2')
        a('v_add_u32 v4, 2048, v2')
        a('v_add_u32 v5, 3072, v2')
    a('s_lshl_b32 s35, s31, 5')
    a('v_add_u32 v13, s35, v10')
    a('v_mul_lo_u32 v13, v13, s32')
    a('v_and_b32 v14, 1, v12')
    a('v_lshlrev_b32 v14, 2, v14')
    a('v_xor_b32 v14, v14, v11')
    a('v_lshlrev_b32 v14, 4, v14')
    a('v_add_u32 v13, v13, v14')
    a('v_add_u32 v6, s33, v13')
    a('s_lshl_b32 s36, s32, 3')
    a('v_add_u32 v7, s36, v6')
    a('v_add_u32 v8, s36, v7')
    a('v_add_u32 v9, s36, v8')
    a('s_lshl_b32 s37, s32, 6')
    a('s_lshl_b32 s38, s24, 12')
    a('v_and_b32 v10, 31, v0')
    a('s_lshl_b32 s35, s30, 6')
    a('v_add_u32 v10, s35, v10')
    a('v_lshrrev_b32 v11, 1, v10')
    a('v_and_b32 v11, 7, v11')
    a('v_lshrrev_b32 v12, 5, v0')
    a('v_lshlrev_b32 v10, 7, v10')
    for ks in range(4):
        a(f'v_add_u32 v13, {ks*2}, v12')
        a('v_xor_b32 v13, v13, v11')
        a('v_lshlrev_b32 v13, 4, v13')
        a(f'v_add_u32 v{16+ks}, v10, v13')
    a('v_lshrrev_b32 v10, 4, v0')
    a('v_and_b32 v11, 15, v0')
    a('v_lshrrev_b32 v12, 1, v10')
    a('v_lshlrev_b32 v12, 3, v12')
    a('v_lshrrev_b32 v13, 2, v11')
    a('v_add_u32 v12, v12, v13')
    a('v_lshlrev_b32 v12, 7, v12')
    a('v_and_b32 v13, 1, v10')
    a('v_lshlrev_b32 v13, 1, v13')
    a('v_bfe_u32 v14, v11, 1, 1')
    a('v_add_u32 v13, v13, v14')
    a('s_lshl_b32 s35, s31, 2')
    a('v_add_u32 v13, s35, v13')
    a('v_bfe_u32 v14, v11, 3, 1')
    a('v_lshlrev_b32 v14, 2, v14')
    a('v_xor_b32 v13, v13, v14')
    a('v_lshlrev_b32 v13, 4, v13')
    a('v_add_u32 v12, v12, v13')
    a('v_and_b32 v13, 1, v11')
    a('v_lshlrev_b32 v13, 3, v13')
    a('v_add_u32 v12, v12, v13')
    a('v_add_u32 v20, 16384, v12')
    for i in range(64, 128):
        a(f'v_mov_b32 v{i}, 0')
    a('s_mov_b32 s40, 0')
    a('s_mov_b32 s41, 0')

    NST = P['g1_nst']
    PD = NST - 1
    NSTEP = 16

    def dma_one(stage, idx):
        if idx < 4:
            a(f's_add_u32 m0, s38, {stage*STAGE + idx*1024}')
            a('s_nop 0')
            if P.get('vgprload'):
                a(f'buffer_load_dwordx4 v[{96+idx*4}:{99+idx*4}], v{2+idx}, s[{sA}:{sA+3}], s40 offen')
            else:
                a(f'buffer_load_dwordx4 v{2+idx}, s[{sA}:{sA+3}], s40 offen lds')
        else:
            i = idx - 4
            a(f's_add_u32 m0, s38, {stage*STAGE + 16384 + i*1024}')
            a('s_nop 0')
            if P.get('vgprload'):
                a(f'buffer_load_dwordx4 v[{96+idx*4}:{99+idx*4}], v{6+i}, s[{sB}:{sB+3}], s41 offen')
            else:
                a(f'buffer_load_dwordx4 v{6+i}, s[{sB}:{sB+3}], s41 offen lds')
        if idx == 7:
            a('s_add_u32 s40, s40, %d' % (16384 if P.get('contigA') else 128))
            a('s_add_u32 s41, s41, s37')

    addr_hi = {}
    def reads(stage, ks, st):
        if P.get('noreads'):
            return
        base = 32 + st * 16
        off = stage * STAGE
        xa, wa = 16 + ks, 20
        if off >= 65536 - 8192:
            xa, wa = 24 + ks, 28
            off -= 65536
            off += 65536
        for mb in range(2):
            o = stage*STAGE + mb*4096
            if stage >= 2:
                a(f'ds_read_b128 v[{base+mb*4}:{base+mb*4+3}], v{24+ks} offset:{o - 65536}')
            else:
                a(f'ds_read_b128 v[{base+mb*4}:{base+mb*4+3}], v{16+ks} offset:{o}')
        for t in range(2):
            for half in range(2):
                r = base + 8 + t * 4 + half * 2
                o = stage*STAGE + t*8192 + ks*2048 + half*512
                if stage >= 2:
                    a(f'ds_read_b64_tr_b16 v[{r}:{r+1}], v28 offset:{o - 65536}')
                else:
                    a(f'ds_read_b64_tr_b16 v[{r}:{r+1}], v20 offset:{o}')

    for ks in range(4):
        a(f'v_add_u32 v{24+ks}, 0x10000, v{16+ks}')
    a('v_add_u32 v28, 0x10000, v20')

    for s in range(PD):
        for idx in range(8):
            dma_one(s % NST, idx)
    for s in range(NSTEP):
        stage = s % NST
        newer = min(PD - 1, NSTEP - 1 - s)
        a(f's_waitcnt vmcnt({newer*8})')
        a('s_barrier')
        reads(stage, 0, 0)
        for ks in range(4):
            if ks < 3:
                reads(stage, ks + 1, (ks + 1) & 1)
            if s + PD < NSTEP:
                dma_one((s + PD) % NST, ks * 2)
                dma_one((s + PD) % NST, ks * 2 + 1)
            elif s + PD == NSTEP and ks == 0:
                pass
            a(f's_waitcnt lgkmcnt({6 if ks < 3 else 0})')
            base = 32 + (ks & 1) * 16
            for t in range(2):
                for mb in range(2):
                    acc = 64 + (t * 2 + mb) * 16
                    if not P.get('nomfma'):
                        a(f'v_mfma_f32_32x32x16_bf16 v[{acc}:{acc+15}], v[{base+8+t*4}:{base+8+t*4+3}], v[{base+mb*4}:{base+mb*4+3}], v[{acc}:{acc+15}]')
        a('s_nop 15')
    a('v_and_b32 v10, 31, v0')
    a('s_lshl_b32 s34, s27, 7')
    a('s_lshl_b32 s35, s30, 6')
    a('s_add_u32 s34, s34, s35')
    a('v_add_u32 v10, s34, v10')
    a('v_lshrrev_b32 v11, 5, v0')
    a('v_lshlrev_b32 v11, 3, v11')
    a('s_lshl_b32 s35, s31, 6')
    a('v_add_u32 v11, s35, v11')
    a('s_cmp_lt_u32 s28, 24')
    a('s_cbranch_scc0 G1_epi_ffn')
    srd_from(a, sO, 22, 2048 * LD_QKV, QKV_OFF)
    a('s_mov_b32 s36, %d' % LD_QKV)
    a('v_mul_lo_u32 v10, v10, s36')
    a('v_add_u32 v10, v10, v11')
    a('s_lshl_b32 s35, s28, 8')
    a('v_add_u32 v10, s35, v10')
    a(f'v_add_u32 v11, {32*LD_QKV}, v10')
    for t in range(2):
        for mb in range(2):
            acc = 64 + (t * 2 + mb) * 16
            for rq in range(4):
                a(f'v_cvt_pk_bf16_f32 v12, v{acc+rq*4}, v{acc+rq*4+1}')
                a(f'v_cvt_pk_bf16_f32 v13, v{acc+rq*4+2}, v{acc+rq*4+3}')
                a(f'buffer_store_dwordx2 v[12:13], v{10+mb}, s[{sO}:{sO+3}], 0 offen offset:{t*128 + rq*16}')
                a('s_nop 0')
    a('s_branch G1_done')
    a.label('G1_epi_ffn')
    srd_from(a, sO, 22, 2048 * LD_OH, OH_OFF)
    a('s_mov_b32 s36, %d' % LD_OH)
    a('v_mul_lo_u32 v10, v10, s36')
    a('v_add_u32 v10, v10, v11')
    a('s_sub_u32 s35, s28, 24')
    a('s_lshl_b32 s35, s35, 7')
    a('s_add_u32 s35, s35, 2048')
    a('v_add_u32 v10, s35, v10')
    a(f'v_add_u32 v11, {32*LD_OH}, v10')
    for mb in range(2):
        g = 64 + (0 * 2 + mb) * 16
        u = 64 + (1 * 2 + mb) * 16
        for rq in range(4):
            for p in range(2):
                r = rq * 4 + p * 2
                a(f'v_cvt_pk_bf16_f32 v14, v{g+r}, v{g+r+1}')
                a(f'v_cvt_pk_bf16_f32 v15, v{u+r}, v{u+r+1}')
                a('v_lshlrev_b32 v16, 16, v14')
                a('v_and_b32 v17, 0xffff0000, v14')
                a('v_lshlrev_b32 v18, 16, v15')
                a('v_and_b32 v19, 0xffff0000, v15')
                a('v_max_f32 v16, 0, v16')
                a('v_max_f32 v17, 0, v17')
                a('v_mul_f32 v16, v16, v18')
                a('v_mul_f32 v17, v17, v19')
                a(f'v_cvt_pk_bf16_f32 v{12+p}, v16, v17')
            a(f'buffer_store_dwordx2 v[12:13], v{10+mb}, s[{sO}:{sO+3}], 0 offen offset:{rq*16}')
            a('s_nop 0')
    a.label('G1_done')
    a('s_endpgm')
    return kernel_desc(name, 128, 48)


def gen_attn(a):
    name = 'attn_kernel'
    kernel_header(a, name)
    sQ, sO = 4, 8
    KOFF, VOFF = 0, 20480
    a('s_cmp_ge_u32 s2, 1024')
    a('s_cbranch_scc1 AT_pf' if P.get('pf') else 's_cbranch_scc1 AT_done')
    a('s_load_dwordx2 s[16:17], s[0:1], 72')
    a('v_lshrrev_b32 v1, 6, v0')
    a('v_and_b32 v0, 63, v0')
    a('s_nop 0')
    a('v_readfirstlane_b32 s24, v1')
    a('s_and_b32 s25, s2, 31')
    a('s_lshr_b32 s26, s2, 5')
    a('s_lshl_b32 s27, s26, 6')
    a('s_waitcnt lgkmcnt(0)')
    srd_from(a, sQ, 16, 2048 * LD_QKV, QKV_OFF)
    srd_from(a, sO, 16, 2048 * LD_OH, OH_OFF)
    a('v_lshrrev_b32 v10, 2, v0')
    a('v_and_b32 v11, 3, v0')
    a('s_lshl_b32 s28, s24, 4')
    a('s_add_u32 s28, s28, s27')
    a('s_sub_u32 s28, s28, 256')
    a('v_add_u32 v10, s28, v10')
    a('s_mov_b32 s29, %d' % LD_QKV)
    a('v_mul_lo_u32 v10, v10, s29')
    a('v_lshlrev_b32 v11, 4, v11')
    a('v_add_u32 v10, v10, v11')
    a('s_lshl_b32 s30, s25, 6')
    a('v_add_u32 v10, s30, v10')
    a('v_add_u32 v12, 2048, v10')
    a('v_add_u32 v13, 4096, v10')
    a('s_lshl_b32 s31, s24, 10')
    a('s_mov_b32 s33, 0')
    for j in range(5):
        a(f's_add_u32 m0, s31, {KOFF + j*4096}')
        a('s_nop 0')
        a(f'buffer_load_dwordx4 v12, s[{sQ}:{sQ+3}], s33 offen lds')
        a(f's_add_u32 m0, s31, {VOFF + j*4096}')
        a('s_nop 0')
        a(f'buffer_load_dwordx4 v13, s[{sQ}:{sQ+3}], s33 offen lds')
        if j < 4:
            a(f'v_add_u32 v12, {64*LD_QKV}, v12')
            a(f'v_add_u32 v13, {64*LD_QKV}, v13')
    a('v_and_b32 v14, 15, v0')
    a('s_lshl_b32 s28, s24, 4')
    a('s_add_u32 s28, s28, s27')
    a('v_add_u32 v15, s28, v14')
    a('v_mul_lo_u32 v16, v15, s29')
    a('v_lshrrev_b32 v17, 4, v0')
    a('v_lshlrev_b32 v18, 4, v17')
    a('v_add_u32 v16, v16, v18')
    a('v_add_u32 v16, s30, v16')
    a(f'buffer_load_dwordx4 v[4:7], v16, s[{sQ}:{sQ+3}], 0 offen')
    a('v_lshlrev_b32 v20, 6, v14')
    a('v_add_u32 v20, v20, v18')
    a('v_add_u32 v20, s31, v20')
    a('v_lshlrev_b32 v21, 2, v17')
    a('v_lshrrev_b32 v22, 2, v14')
    a('v_add_u32 v21, v21, v22')
    a('v_lshlrev_b32 v21, 6, v21')
    a('v_and_b32 v22, 3, v14')
    a('v_lshlrev_b32 v22, 3, v22')
    a('v_add_u32 v21, v21, v22')
    a('v_add_u32 v21, s31, v21')
    a(f'v_add_u32 v21, {VOFF}, v21')
    a('s_waitcnt vmcnt(0)')
    a('s_barrier')
    NT = 17
    SB = 56
    for t in range(3):
        a(f'ds_read_b128 v[{24+t*4}:{24+t*4+3}], v20 offset:{KOFF + t*1024}')
    for t in range(NT):
        if t + 3 < NT:
            r = 24 + ((t + 3) & 3) * 4
            a(f'ds_read_b128 v[{r}:{r+3}], v20 offset:{KOFF + (t+3)*1024}')
        a(f's_waitcnt lgkmcnt({min(3, NT-1-t)})')
        rp = 24 + (t & 3) * 4
        a(f'v_mfma_f32_16x16x32_bf16 v[{SB+t*4}:{SB+t*4+3}], v[{rp}:{rp+3}], v[4:7], 0')
    a('v_add_u32 v22, 1, v14')
    a('s_sub_u32 s34, 256, s28')
    a('v_max_i32 v22, s34, v22')
    a('v_add_u32 v23, 256, v14')
    a('v_sub_u32 v23, v23, v22')
    a('v_lshlrev_b32 v40, 2, v17')
    a('v_sub_u32 v22, v40, v22')
    a('s_nop 7')
    a('v_mov_b32 v41, 0xf149f2ca')
    a('v_mov_b32 v42, 0xf149f2ca')
    a('s_mov_b32 s35, 0x3e3504f3')
    a('s_cmp_lt_u32 s28, 256')
    a('s_cbranch_scc1 AT_slow')
    for path in ('fast', 'slow'):
        if path == 'slow':
            a.label('AT_slow')
        for t in range(NT):
            for p in range(2):
                s = SB + t * 4 + p * 2
                a(f'v_cvt_pk_bf16_f32 v43, v{s}, v{s+1}')
                a(f'v_lshlrev_b32 v{s}, 16, v43')
                a(f'v_and_b32 v{s+1}, 0xffff0000, v43')
                a(f'v_mul_f32 v{s}, s35, v{s}')
                a(f'v_mul_f32 v{s+1}, s35, v{s+1}')
                a(f'v_cvt_pk_bf16_f32 v43, v{s}, v{s+1}')
                a(f'v_lshlrev_b32 v{s}, 16, v43')
                a(f'v_and_b32 v{s+1}, 0xffff0000, v43')
                if path == 'slow' or t == 0 or t == NT - 1:
                    for r in range(2):
                        a(f'v_add_u32 v44, {16*t + p*2 + r}, v22')
                        a('v_cmp_le_u32 vcc, v44, v23')
                        a('s_nop 1')
                        a(f'v_cndmask_b32 v{s+r}, v41, v{s+r}, vcc')
                a(f'v_max3_f32 v42, v42, v{s}, v{s+1}')
        if path == 'fast':
            a('s_branch AT_join')
    a.label('AT_join')
    a('ds_swizzle_b32 v43, v42 offset:0x401F')
    a('s_waitcnt lgkmcnt(0)')
    a('v_max_f32 v42, v42, v43')
    a('v_lshlrev_b32 v45, 2, v0')
    a('v_xor_b32 v45, 128, v45')
    a('ds_bpermute_b32 v43, v45, v42')
    a('s_waitcnt lgkmcnt(0)')
    a('v_max_f32 v42, v42, v43')
    a('s_mov_b32 s36, 0x3fb8aa3b')
    a('v_mul_f32 v42, s36, v42')
    a('v_mov_b32 v46, 0')
    a('v_mov_b32 v47, s36')
    for t in range(NT):
        for r in range(4):
            s = SB + t * 4 + r
            a(f'v_fma_f32 v{s}, v{s}, v47, -v42')
            a(f'v_exp_f32 v{s}, v{s}')
        for r in range(4):
            s = SB + t * 4 + r
            a(f'v_add_f32 v46, v46, v{s}')
    a('ds_swizzle_b32 v43, v46 offset:0x401F')
    a('s_waitcnt lgkmcnt(0)')
    a('v_add_f32 v46, v46, v43')
    a('ds_bpermute_b32 v43, v45, v46')
    a('s_waitcnt lgkmcnt(0)')
    a('v_add_f32 v46, v46, v43')
    a('v_rcp_f32 v46, v46')
    a('s_nop 0')
    for t in range(NT):
        s = SB + t * 4
        for r in range(4):
            a(f'v_mul_f32 v{s+r}, v{s+r}, v46')
        a(f'v_cvt_pk_bf16_f32 v{SB+t*2}, v{s}, v{s+1}')
        a(f'v_cvt_pk_bf16_f32 v{SB+1+t*2}, v{s+2}, v{s+3}')
    for i in range(48, 56):
        a(f'v_mov_b32 v{i}, 0')
    def vreads(tp):
        t0 = tp * 2
        rb = 24 + (tp & 1) * 8
        for dhh in range(2):
            a(f'ds_read_b64_tr_b16 v[{rb+dhh*4}:{rb+dhh*4+1}], v21 offset:{t0*1024 + dhh*32}')
            a(f'ds_read_b64_tr_b16 v[{rb+dhh*4+2}:{rb+dhh*4+3}], v21 offset:{(t0+1)*1024 + dhh*32}')
    vreads(0)
    for tp in range(8):
        t0 = tp * 2
        rb = 24 + (tp & 1) * 8
        if tp < 7:
            vreads(tp + 1)
            a('s_waitcnt lgkmcnt(4)')
        else:
            a('s_waitcnt lgkmcnt(0)')
        for dhh in range(2):
            a(f'v_mfma_f32_16x16x32_bf16 v[{48+dhh*4}:{48+dhh*4+3}], v[{rb+dhh*4}:{rb+dhh*4+3}], v[{SB+t0*2}:{SB+t0*2+3}], v[{48+dhh*4}:{48+dhh*4+3}]')
    for dhh in range(2):
        a(f'ds_read_b64_tr_b16 v[{24+dhh*2}:{24+dhh*2+1}], v21 offset:{16*1024 + dhh*32}')
    a('s_waitcnt lgkmcnt(0)')
    for dhh in range(2):
        a(f'v_mfma_f32_16x16x16_bf16 v[{48+dhh*4}:{48+dhh*4+3}], v[{24+dhh*2}:{24+dhh*2+1}], v[{SB+32}:{SB+33}], v[{48+dhh*4}:{48+dhh*4+3}]')
    a('s_nop 15')
    a('s_mov_b32 s29, %d' % LD_OH)
    a('v_mul_lo_u32 v16, v15, s29')
    a('v_lshlrev_b32 v18, 3, v17')
    a('v_add_u32 v16, v16, v18')
    a('v_add_u32 v16, s30, v16')
    for dhh in range(2):
        a(f'v_cvt_pk_bf16_f32 v12, v{48+dhh*4}, v{49+dhh*4}')
        a(f'v_cvt_pk_bf16_f32 v13, v{50+dhh*4}, v{51+dhh*4}')
        a(f'buffer_store_dwordx2 v[12:13], v16, s[{sO}:{sO+3}], 0 offen offset:{dhh*32}')
        a('s_nop 0')
    if P.get('pf'):
        a('s_branch AT_done')
        emit_prefetch(a, 'AT_pf', 'AT_done', 1024, [(16, 16), (48, 56)])
        a('s_waitcnt vmcnt(0)')
    a.label('AT_done')
    a('s_endpgm')
    return kernel_desc(name, 128, 48)


def gen_gemm2(a):
    name = 'gemm2_kernel'
    kernel_header(a, name)
    STAGE = 24576
    NST = 4
    sA, sB, sO, sX = 4, 8, 12, 44
    a('s_cmp_ge_u32 s2, 256')
    a('s_cbranch_scc1 G2_done')
    a('s_load_dwordx2 s[16:17], s[0:1], 16')
    a('s_load_dwordx2 s[18:19], s[0:1], 48')
    a('s_load_dwordx2 s[20:21], s[0:1], 0')
    a('s_load_dwordx2 s[22:23], s[0:1], 72')
    a('s_load_dwordx2 s[48:49], s[0:1], 56')
    a('v_lshrrev_b32 v1, 6, v0')
    a('v_and_b32 v0, 63, v0')
    a('s_nop 0')
    a('v_readfirstlane_b32 s24, v1')
    a('s_and_b32 s25, s2, 7')
    a('s_lshr_b32 s26, s2, 3')
    a('s_and_b32 s27, s26, 1')
    a('s_lshl_b32 s29, s25, 1')
    a('s_add_u32 s27, s27, s29')
    a('s_lshr_b32 s28, s26, 1')
    a('s_lshr_b32 s30, s24, 1')
    a('s_and_b32 s31, s24, 1')
    a('s_waitcnt lgkmcnt(0)')
    srd_from(a, sA, 22, 2048 * LD_OH, OH_OFF)
    srd_from(a, sB, 16, 1024 * 2048)
    srd_from(a, sO, 48, 2048 * 2048)
    srd_from(a, sX, 20, 2048 * 2048)
    a('v_lshrrev_b32 v10, 3, v0')
    a('v_and_b32 v11, 7, v0')
    a('v_lshrrev_b32 v12, 4, v0')
    a('s_lshl_b32 s34, s27, 7')
    a('s_lshl_b32 s35, s24, 5')
    a('s_add_u32 s34, s34, s35')
    a('v_add_u32 v13, s34, v10')
    a('s_mov_b32 s36, %d' % LD_OH)
    a('v_mul_lo_u32 v13, v13, s36')
    a('v_xor_b32 v14, v11, v12')
    a('v_lshlrev_b32 v14, 4, v14')
    a('v_xor_b32 v15, 4, v11')
    a('v_xor_b32 v15, v15, v12')
    a('v_lshlrev_b32 v15, 4, v15')
    a('v_add_u32 v2, v13, v14')
    a('v_add_u32 v3, v13, v15')
    a(f'v_add_u32 v3, {8*LD_OH}, v3')
    a(f'v_add_u32 v4, {16*LD_OH}, v2')
    a(f'v_add_u32 v5, {16*LD_OH}, v3')
    a('s_lshl_b32 s35, s24, 4')
    a('v_add_u32 v13, s35, v10')
    a('v_lshlrev_b32 v13, 11, v13')
    a('v_and_b32 v14, 1, v12')
    a('v_lshlrev_b32 v14, 2, v14')
    a('v_xor_b32 v14, v14, v11')
    a('v_lshlrev_b32 v14, 4, v14')
    a('v_add_u32 v13, v13, v14')
    a('s_lshl_b32 s33, s28, 7')
    a('v_add_u32 v6, s33, v13')
    a('v_add_u32 v7, 0x4000, v6')
    a('s_lshl_b32 s38, s24, 12')
    a('s_lshl_b32 s39, s24, 11')
    a('v_and_b32 v10, 31, v0')
    a('s_lshl_b32 s35, s30, 6')
    a('v_add_u32 v10, s35, v10')
    a('v_lshrrev_b32 v11, 1, v10')
    a('v_and_b32 v11, 7, v11')
    a('v_lshrrev_b32 v12, 5, v0')
    a('v_lshlrev_b32 v10, 7, v10')
    a('s_lshl_b32 s35, s31, 2')
    for j in range(2):
        a(f'v_add_u32 v13, {j*2}, v12')
        a('v_add_u32 v13, s35, v13')
        a('v_xor_b32 v13, v13, v11')
        a('v_lshlrev_b32 v13, 4, v13')
        a(f'v_add_u32 v{16+j}, v10, v13')
    a('v_lshrrev_b32 v10, 4, v0')
    a('v_and_b32 v11, 15, v0')
    a('v_lshrrev_b32 v12, 1, v10')
    a('v_lshlrev_b32 v12, 3, v12')
    a('v_lshrrev_b32 v13, 2, v11')
    a('v_add_u32 v12, v12, v13')
    a('v_lshlrev_b32 v12, 7, v12')
    a('v_and_b32 v13, 1, v10')
    a('v_lshlrev_b32 v13, 1, v13')
    a('v_bfe_u32 v14, v11, 1, 1')
    a('v_add_u32 v13, v13, v14')
    a('v_bfe_u32 v14, v11, 3, 1')
    a('v_lshlrev_b32 v14, 2, v14')
    a('v_and_b32 v15, 1, v11')
    a('v_lshlrev_b32 v15, 3, v15')
    a('v_add_u32 v12, v12, v15')
    a('s_lshl_b32 s35, s31, 12')
    a('v_add_u32 v12, s35, v12')
    a('v_add_u32 v12, 16384, v12')
    for t in range(2):
        a(f'v_add_u32 v15, {t*4}, v13')
        a('v_xor_b32 v15, v15, v14')
        a('v_lshlrev_b32 v15, 4, v15')
        a(f'v_add_u32 v{20+t}, v12, v15')
    a('v_add_u32 v18, 49152, v16')
    a('v_add_u32 v19, 49152, v17')
    a('v_add_u32 v22, 49152, v20')
    a('v_add_u32 v23, 49152, v21')
    for i in range(64, 128):
        a(f'v_mov_b32 v{i}, 0')
    a('s_mov_b32 s40, 0')
    a('s_mov_b32 s41, 0')
    a('s_mov_b32 s43, 0')

    def dma_parts(stage):
        parts = []
        def p0():
            a('s_cmp_eq_u32 s43, 16')
            a('s_cselect_b32 s8, s18, s8')
            a('s_cselect_b32 s9, s19, s9')
            a('s_cselect_b32 s10, %d, s10' % (3584 * 2048))
            a('s_cselect_b32 s41, 0, s41')
        def mk(i):
            def f():
                if i == 0:
                    p0()
                if i < 4:
                    a(f's_add_u32 m0, s38, {stage*STAGE + i*1024}')
                    a('s_nop 0')
                    a(f'buffer_load_dwordx4 v{2+i}, s[{sA}:{sA+3}], s40 offen lds')
                else:
                    j = i - 4
                    a(f's_add_u32 m0, s39, {stage*STAGE + 16384 + j*1024}')
                    a('s_nop 0')
                    a(f'buffer_load_dwordx4 v{6+j}, s[{sB}:{sB+3}], s41 offen lds')
                if i == 5:
                    a('s_add_u32 s40, s40, 128')
                    a('s_add_u32 s41, s41, 0x20000')
                    a('s_add_u32 s43, s43, 1')
            return f
        return [mk(i) for i in range(6)]

    def dma(stage):
        for f in dma_parts(stage):
            f()

    def compute(stage, dm=None):
        dm = dm or []
        for j in range(2):
            base = 32 + j * 16
            for mb in range(2):
                a(f'ds_read_b128 v[{base+mb*4}:{base+mb*4+3}], v{16+j+2*(stage>>1)} offset:{(stage&1)*STAGE + mb*4096}')
            for t in range(2):
                for half in range(2):
                    r = base + 8 + t * 4 + half * 2
                    a(f'ds_read_b64_tr_b16 v[{r}:{r+1}], v{20+t+2*(stage>>1)} offset:{(stage&1)*STAGE + j*2048 + half*512}')
        if dm:
            dm.pop(0)()
        for j in range(2):
            a(f's_waitcnt lgkmcnt({6 if j == 0 else 0})')
            base = 32 + j * 16
            for t in range(2):
                for mb in range(2):
                    acc = 64 + (t * 2 + mb) * 16
                    a(f'v_mfma_f32_32x32x16_bf16 v[{acc}:{acc+15}], v[{base+8+t*4}:{base+8+t*4+3}], v[{base+mb*4}:{base+mb*4+3}], v[{acc}:{acc+15}]')
                    if dm and P.get('g2_il'):
                        dm.pop(0)()
        while dm:
            dm.pop(0)()

    for s in range(3):
        dma(s)
    a('s_mov_b32 s42, 0')
    a.label('G2_loop')
    for u in range(NST):
        a('s_waitcnt vmcnt(12)')
        a('s_barrier')
        a('s_cmp_ge_u32 s43, 72')
        a(f's_cbranch_scc1 G2_nl{u}')
        if P.get('g2_il'):
            compute(u, dma_parts((u + 3) % NST))
            a(f's_branch G2_e{u}')
        else:
            dma((u + 3) % NST)
        a(f's_branch G2_c{u}')
        a.label(f'G2_nl{u}')
        a('s_waitcnt vmcnt(0)')
        a('s_barrier')
        a.label(f'G2_c{u}')
        compute(u)
        if P.get('g2_il'):
            a.label(f'G2_e{u}')
    a('s_add_u32 s42, s42, 4')
    a('s_cmp_lt_u32 s42, 72')
    a('s_cbranch_scc1 G2_loop')
    a('s_nop 15')
    a('s_barrier')
    a('v_lshlrev_b32 v10, 2, v0')
    a('s_xor_b32 s35, s24, 1')
    a('s_lshl_b32 s35, s35, 13')
    a('v_add_u32 v10, s35, v10')
    a('v_lshlrev_b32 v11, 2, v0')
    a('s_lshl_b32 s35, s24, 13')
    a('v_add_u32 v11, s35, v11')
    a('s_cmp_eq_u32 s31, 0')
    a('s_cbranch_scc0 G2_x1')
    for t in range(2):
        acc = 64 + (t * 2 + 1) * 16
        for r in range(16):
            a(f'ds_write_b32 v10, v{acc+r} offset:{(t*16+r)*256}')
    a('s_branch G2_x2')
    a.label('G2_x1')
    for t in range(2):
        acc = 64 + (t * 2 + 0) * 16
        for r in range(16):
            a(f'ds_write_b32 v10, v{acc+r} offset:{(t*16+r)*256}')
    for t in range(2):
        for r in range(16):
            a(f'v_mov_b32 v{64+(t*2)*16+r}, v{64+(t*2+1)*16+r}')
    a.label('G2_x2')
    a('s_waitcnt lgkmcnt(0)')
    a('s_barrier')
    for t in range(2):
        for r in range(16):
            a(f'ds_read_b32 v{32+(r&7)}, v11 offset:{(t*16+r)*256}')
            if (r & 7) == 7:
                a('s_waitcnt lgkmcnt(0)')
                for rr in range(r - 7, r + 1):
                    a(f'v_add_f32 v{64+(t*2)*16+rr}, v{64+(t*2)*16+rr}, v{32+(rr&7)}')
    a('v_and_b32 v10, 31, v0')
    a('s_lshl_b32 s34, s27, 7')
    a('s_lshl_b32 s35, s30, 6')
    a('s_add_u32 s34, s34, s35')
    a('s_lshl_b32 s35, s31, 5')
    a('s_add_u32 s34, s34, s35')
    a('v_add_u32 v10, s34, v10')
    a('v_lshlrev_b32 v10, 11, v10')
    a('v_lshrrev_b32 v11, 5, v0')
    a('v_lshlrev_b32 v11, 3, v11')
    a('v_add_u32 v10, v10, v11')
    a('v_add_u32 v10, s33, v10')
    for t in range(2):
        for rq in range(4):
            a(f'buffer_load_dwordx2 v[{32+(t*4+rq)*2}:{33+(t*4+rq)*2}], v10, s[{sX}:{sX+3}], 0 offen offset:{t*64 + rq*16}')
    a('s_waitcnt vmcnt(0)')
    for t in range(2):
        acc = 64 + (t * 2) * 16
        for rq in range(4):
            xr = 32 + (t * 4 + rq) * 2
            a(f'v_lshlrev_b32 v12, 16, v{xr}')
            a(f'v_and_b32 v13, 0xffff0000, v{xr}')
            a(f'v_lshlrev_b32 v14, 16, v{xr+1}')
            a(f'v_and_b32 v15, 0xffff0000, v{xr+1}')
            for q in range(4):
                a(f'v_add_f32 v{12+q}, v{12+q}, v{acc+rq*4+q}')
            a('v_cvt_pk_bf16_f32 v12, v12, v13')
            a('v_cvt_pk_bf16_f32 v13, v14, v15')
            a(f'buffer_store_dwordx2 v[12:13], v10, s[{sO}:{sO+3}], 0 offen offset:{t*64 + rq*16}')
            a('s_nop 0')
    a.label('G2_done')
    a('s_endpgm')
    return kernel_desc(name, 128, 56)


def gen_gemm1v2(a):
    name = 'gemm1_kernel'
    kernel_header(a, name)
    STAGE = 73728
    BOFF = 32768
    sA, sO = 4, 12
    a('s_cmp_ge_u32 s2, 256')
    a('s_cbranch_scc1 G1_done')
    a('s_load_dwordx2 s[16:17], s[0:1], 8')
    a('s_load_dwordx2 s[18:19], s[0:1], 32')
    a('s_load_dwordx2 s[20:21], s[0:1], 40')
    a('s_load_dwordx2 s[22:23], s[0:1], 72')
    a('v_lshrrev_b32 v1, 6, v0')
    a('v_and_b32 v0, 63, v0')
    a('s_nop 0')
    a('v_readfirstlane_b32 s24, v1')
    a('s_and_b32 s25, s2, 7')
    a('s_lshr_b32 s26, s2, 3')
    a('s_and_b32 s27, s26, 7')
    a('s_lshr_b32 s28, s26, 3')
    a('s_lshl_b32 s29, s25, 2')
    a('s_add_u32 s28, s28, s29')
    a('s_lshr_b32 s30, s24, 1')
    a('s_and_b32 s31, s24, 1')
    a('s_waitcnt lgkmcnt(0)')
    srd_from(a, sA, 22, 2048 * 2048, XN_OFF)
    a('v_lshrrev_b32 v10, 3, v0')
    a('v_and_b32 v11, 7, v0')
    a('v_lshrrev_b32 v12, 4, v0')
    a('s_lshl_b32 s34, s27, 8')
    a('s_lshl_b32 s35, s24, 5')
    a('s_add_u32 s34, s34, s35')
    a('v_add_u32 v13, s34, v10')
    a('v_lshlrev_b32 v13, 11, v13')
    a('v_xor_b32 v14, v11, v12')
    a('v_lshlrev_b32 v14, 4, v14')
    a('v_xor_b32 v15, 4, v11')
    a('v_xor_b32 v15, v15, v12')
    a('v_lshlrev_b32 v15, 4, v15')
    a('v_add_u32 v2, v13, v14')
    a('v_add_u32 v3, v13, v15')
    a('v_add_u32 v3, 0x4000, v3')
    a('v_add_u32 v4, 0x8000, v2')
    a('v_add_u32 v5, 0x8000, v3')
    a('s_mul_i32 s34, s28, 192')
    a('s_mul_i32 s35, s28, 224')
    for i in range(5):
        A0, A1, ST = 6 + 2 * i, 7 + 2 * i, 16 + i
        a(f'v_add_u32 v21, {64*i}, v0')
        a('v_mul_u32_u24 v22, 0xcccd, v21')
        a('v_lshrrev_b32 v22, 21, v22')
        a('v_mul_u32_u24 v23, 40, v22')
        a('v_sub_u32 v23, v21, v23')
        a('s_lshl_b32 s36, s24, 3')
        a('v_add_u32 v22, s36, v22')
        a('v_bfe_u32 v21, v22, 1, 1')
        a('v_bfe_u32 v24, v22, 3, 1')
        a('v_lshlrev_b32 v24, 1, v24')
        a('v_add_u32 v21, v21, v24')
        a('v_lshlrev_b32 v21, 1, v21')
        a('v_xor_b32 v23, v23, v21')
        a('v_lshlrev_b32 v24, 4, v23')
        a('v_add_u32 v25, s35, v24')
        a(f'v_subrev_u32 v26, {16*30 - 64}, v25')
        a('v_mov_b32 v27, s20')
        a('v_mov_b32 v28, s21')
        a('v_mov_b32 v29, 7168')
        a('v_cmp_gt_u32 vcc, 30, v23')
        a('s_nop 1')
        a(f'v_subrev_u32 v21, {16*20 - 64}, v25')
        a('v_cndmask_b32 v26, v26, v21, vcc')
        a('v_mov_b32 v21, s18')
        a('v_cndmask_b32 v27, v27, v21, vcc')
        a('v_mov_b32 v21, s19')
        a('v_cndmask_b32 v28, v28, v21, vcc')
        a('v_cmp_gt_u32 vcc, 20, v23')
        a('s_nop 1')
        a(f'v_subrev_u32 v21, {16*16}, v25')
        a('v_cndmask_b32 v26, v26, v21, vcc')
        a('v_mov_b32 v21, s20')
        a('v_cndmask_b32 v27, v27, v21, vcc')
        a('v_mov_b32 v21, s21')
        a('v_cndmask_b32 v28, v28, v21, vcc')
        a('v_cmp_gt_u32 vcc, 16, v23')
        a('s_nop 1')
        a(f'v_subrev_u32 v21, {16*12}, v25')
        a('v_cndmask_b32 v26, v26, v21, vcc')
        a('v_mov_b32 v21, s18')
        a('v_cndmask_b32 v27, v27, v21, vcc')
        a('v_mov_b32 v21, s19')
        a('v_cndmask_b32 v28, v28, v21, vcc')
        a('v_cmp_gt_u32 vcc, 12, v23')
        a('s_nop 1')
        a('v_add_u32 v21, s34, v24')
        a('v_cndmask_b32 v26, v26, v21, vcc')
        a('v_mov_b32 v21, s16')
        a('v_cndmask_b32 v27, v27, v21, vcc')
        a('v_mov_b32 v21, s17')
        a('v_cndmask_b32 v28, v28, v21, vcc')
        a('v_mov_b32 v21, 6144')
        a('v_cndmask_b32 v29, v29, v21, vcc')
        a('v_mul_lo_u32 v21, v22, v29')
        a('v_add_u32 v21, v21, v26')
        a(f'v_add_co_u32 v{A0}, vcc, v27, v21')
        a('s_nop 1')
        a(f'v_addc_co_u32 v{A1}, vcc, 0, v28, vcc')
        a(f'v_lshlrev_b32 v{ST}, 6, v29')
    a('s_lshl_b32 s38, s24, 12')
    a('s_mul_i32 s39, s24, 5120')
    a('v_and_b32 v24, 15, v0')
    a('v_lshrrev_b32 v25, 4, v0')
    a('s_lshl_b32 s35, s30, 6')
    a('v_add_u32 v26, s35, v24')
    a('v_lshlrev_b32 v26, 7, v26')
    a('v_lshrrev_b32 v27, 1, v24')
    for ks in range(2):
        a(f'v_add_u32 v28, {ks*4}, v25')
        a('v_xor_b32 v28, v28, v27')
        a('v_lshlrev_b32 v28, 4, v28')
        a(f'v_add_u32 v{21+ks}, v26, v28')
    a('v_lshlrev_b32 v26, 3, v25')
    a('v_lshrrev_b32 v27, 2, v24')
    a('v_add_u32 v26, v26, v27')
    a('v_mul_u32_u24 v26, 640, v26')
    a('v_and_b32 v27, 1, v24')
    a('v_lshlrev_b32 v27, 3, v27')
    a('v_add_u32 v26, v26, v27')
    a(f'v_add_u32 v26, {BOFF}, v26')
    a('v_bfe_u32 v27, v24, 3, 1')
    a('v_lshlrev_b32 v27, 1, v27')
    a('v_and_b32 v32, 1, v25')
    a('v_lshlrev_b32 v32, 2, v32')
    a('v_add_u32 v27, v27, v32')
    a('v_bfe_u32 v32, v24, 1, 1')
    a('s_lshl_b32 s35, s31, 1')
    a('s_mul_i32 s36, s31, 10')
    for j in range(4):
        a(f's_add_u32 s37, s35, {j}')
        a('s_and_b32 s37, s37, 3')
        a('s_lshl_b32 s37, s37, 1')
        a('v_add_u32 v33, s37, v32')
        a('v_xor_b32 v33, v33, v27')
        a('v_lshlrev_b32 v33, 4, v33')
        a(f's_add_u32 s37, s36, {j}')
        a('s_lshr_b32 s37, s37, 2')
        a('s_lshl_b32 s37, s37, 7')
        a('v_add_u32 v33, s37, v33')
        a(f'v_add_u32 v{28+j}, v26, v33')
    a(f'v_add_u32 v23, {STAGE}, v21')
    a(f'v_add_u32 v24, {STAGE}, v22')
    for j in range(4):
        a(f'v_add_u32 v{32+j}, {STAGE}, v{28+j}')
    XF = 36
    WF = [52, 72]
    ACC = 96
    for i in range(ACC, 256):
        a(f'v_mov_b32 v{i}, 0')
    a('s_mov_b32 s40, 0')

    def dma_one(stage, idx):
        if idx < 4:
            a(f's_add_u32 m0, s38, {stage*STAGE + idx*1024}')
            a('s_nop 0')
            a(f'buffer_load_dwordx4 v{2+idx}, s[{sA}:{sA+3}], s40 offen lds')
        else:
            i = idx - 4
            a(f's_add_u32 m0, s39, {stage*STAGE + BOFF + i*1024}')
            a('s_nop 0')
            a(f'global_load_lds_dwordx4 v[{6+2*i}:{7+2*i}], off')
            a(f'v_add_co_u32 v{6+2*i}, vcc, v{6+2*i}, v{16+i}')
            a('s_nop 1')
            a(f'v_addc_co_u32 v{7+2*i}, vcc, 0, v{7+2*i}, vcc')
        if idx == 8:
            a('s_add_u32 s40, s40, 128')

    def xreads(stage, ks):
        for mb in range(4):
            a(f'ds_read_b128 v[{XF+mb*4}:{XF+mb*4+3}], v{21+ks+2*stage} offset:{mb*2048}')

    def wreads(stage, ks, hb, st):
        for bb in range(5):
            b = hb * 5 + bb
            for half in range(2):
                r = WF[st] + bb * 4 + half * 2
                a(f'ds_read_b64_tr_b16 v[{r}:{r+1}], v{28+4*stage+(b&3)} offset:{(b>>2)*128 + (ks*32 + half*4)*640}')

    def mfmas(hb, st, dmas):
        n = 0
        for bb in range(5):
            b = hb * 5 + bb
            for mb in range(4):
                acc = ACC + (b * 4 + mb) * 4
                a(f'v_mfma_f32_16x16x32_bf16 v[{acc}:{acc+3}], v[{WF[st]+bb*4}:{WF[st]+bb*4+3}], v[{XF+mb*4}:{XF+mb*4+3}], v[{acc}:{acc+3}]')
                n += 1
                if n % 4 == 0 and dmas:
                    dmas.pop(0)()

    NSTEP = 16
    for idx in range(9):
        dma_one(0, idx)
    for s in range(NSTEP):
        stage = s & 1
        a('s_waitcnt vmcnt(0)')
        a('s_barrier')
        dm = []
        if s + 1 < NSTEP:
            dm = [(lambda idx=idx: dma_one(stage ^ 1, idx)) for idx in range(9)]
        xreads(stage, 0)
        wreads(stage, 0, 0, 0)
        a('s_waitcnt lgkmcnt(0)')
        wreads(stage, 0, 1, 1)
        mfmas(0, 0, dm)
        a('s_waitcnt lgkmcnt(0)')
        wreads(stage, 1, 0, 0)
        mfmas(1, 1, dm)
        xreads(stage, 1)
        a('s_waitcnt lgkmcnt(0)')
        wreads(stage, 1, 1, 1)
        mfmas(0, 0, None)
        a('s_waitcnt lgkmcnt(0)')
        mfmas(1, 1, None)
        assert not dm
    a('s_nop 15')
    srd_from(a, sO, 22, 2048 * LD_OH, OH_OFF)
    a('v_and_b32 v10, 15, v0')
    a('s_lshl_b32 s34, s27, 8')
    a('s_lshl_b32 s35, s30, 6')
    a('s_add_u32 s34, s34, s35')
    a('v_add_u32 v10, s34, v10')
    a('v_lshrrev_b32 v11, 4, v0')
    a('v_lshlrev_b32 v11, 3, v11')
    a('s_mov_b32 s36, %d' % LD_OH)
    a('v_mul_lo_u32 v12, v10, s36')
    a('v_add_u32 v12, v12, v11')
    a('s_mul_i32 s35, s28, 224')
    a('s_add_u32 s35, s35, 2048')
    a('v_add_u32 v12, s35, v12')

    def hstore(gb, ub, foff_bytes):
        for mb in range(4):
            g = ACC + (gb * 4 + mb) * 4
            u = ACC + (ub * 4 + mb) * 4
            for p in range(2):
                a(f'v_cvt_pk_bf16_f32 v14, v{g+2*p}, v{g+2*p+1}')
                a(f'v_cvt_pk_bf16_f32 v15, v{u+2*p}, v{u+2*p+1}')
                a('v_lshlrev_b32 v16, 16, v14')
                a('v_and_b32 v17, 0xffff0000, v14')
                a('v_lshlrev_b32 v18, 16, v15')
                a('v_and_b32 v19, 0xffff0000, v15')
                a('v_max_f32 v16, 0, v16')
                a('v_max_f32 v17, 0, v17')
                a('v_mul_f32 v16, v16, v18')
                a('v_mul_f32 v17, v17, v19')
                a(f'v_cvt_pk_bf16_f32 v{20+p}, v16, v17')
            a(f'v_add_u32 v13, {mb*16*LD_OH}, v12')
            a(f'buffer_store_dwordx2 v[20:21], v13, s[{sO}:{sO+3}], 0 offen offset:{foff_bytes}')
            a('s_nop 0')

    a('s_cmp_eq_u32 s31, 0')
    a('s_cbranch_scc0 G1_epi1')
    hstore(6, 8, 0)
    hstore(7, 9, 32)
    srd_from(a, sO, 22, 2048 * LD_QKV, QKV_OFF)
    a('s_mov_b32 s36, %d' % LD_QKV)
    a('v_mul_lo_u32 v12, v10, s36')
    a('v_add_u32 v12, v12, v11')
    a('s_mul_i32 s35, s28, 192')
    a('v_add_u32 v12, s35, v12')
    for b in range(6):
        for mb in range(4):
            q = ACC + (b * 4 + mb) * 4
            a(f'v_cvt_pk_bf16_f32 v20, v{q}, v{q+1}')
            a(f'v_cvt_pk_bf16_f32 v21, v{q+2}, v{q+3}')
            a(f'v_add_u32 v13, {mb*16*LD_QKV}, v12')
            a(f'buffer_store_dwordx2 v[20:21], v13, s[{sO}:{sO+3}], 0 offen offset:{b*32}')
            a('s_nop 0')
    a('s_branch G1_done')
    a.label('G1_epi1')
    for bb in range(5):
        hstore(bb, 5 + bb, 64 + bb * 32)
    a.label('G1_done')
    a('s_endpgm')
    return kernel_desc(name, 256, 48)


class LdsSB:
    def __init__(self, a):
        self.a = a
        self.q = []
    def issue(self, tag):
        self.q.append(tag)
        assert len(self.q) <= 15
    def need(self, tags):
        last = -1
        for i, t in enumerate(self.q):
            if t in tags:
                last = i
        if last < 0:
            return
        n = len(self.q) - 1 - last
        self.a(f's_waitcnt lgkmcnt({n})')
        self.q = self.q[last + 1:]


def gen_gemm1v3(a):
    name = 'gemm1_kernel'
    kernel_header(a, name)
    STAGE = 36864
    BOFF = 16384
    NST = 4
    sA, sO = 4, 12
    a('s_cmp_ge_u32 s2, 256')
    a('s_cbranch_scc1 G1_done')
    a('s_load_dwordx2 s[16:17], s[0:1], 8')
    a('s_load_dwordx2 s[18:19], s[0:1], 32')
    a('s_load_dwordx2 s[20:21], s[0:1], 40')
    a('s_load_dwordx2 s[22:23], s[0:1], 72')
    a('v_lshrrev_b32 v1, 6, v0')
    a('v_and_b32 v0, 63, v0')
    a('s_nop 0')
    a('v_readfirstlane_b32 s24, v1')
    a('s_and_b32 s25, s2, 7')
    a('s_lshr_b32 s26, s2, 3')
    a('s_and_b32 s27, s26, 7')
    a('s_lshr_b32 s28, s26, 3')
    a('s_lshl_b32 s29, s25, 2')
    a('s_add_u32 s28, s28, s29')
    a('s_lshr_b32 s30, s24, 1')
    a('s_and_b32 s31, s24, 1')
    a('s_waitcnt lgkmcnt(0)')
    srd_from(a, sA, 22, 2048 * 2048, XN_OFF)
    a('v_lshrrev_b32 v10, 2, v0')
    a('v_and_b32 v11, 3, v0')
    a('v_lshrrev_b32 v12, 4, v0')
    a('v_sub_u32 v12, 0, v12')
    a('v_and_b32 v12, 3, v12')
    a('v_xor_b32 v11, v11, v12')
    a('v_lshlrev_b32 v11, 4, v11')
    a('s_lshl_b32 s34, s27, 8')
    a('s_lshl_b32 s35, s24, 5')
    a('s_add_u32 s34, s34, s35')
    a('v_add_u32 v13, s34, v10')
    a('v_lshlrev_b32 v13, 11, v13')
    a('v_add_u32 v2, v13, v11')
    a('v_add_u32 v3, 0x8000, v2')
    a('s_mul_i32 s34, s28, 192')
    a('s_mul_i32 s35, s28, 224')
    for i in range(3):
        A0, A1, ST = 6 + 2 * i, 7 + 2 * i, 16 + i
        a('s_lshl_b32 s36, s24, 6')
        a(f's_add_u32 s36, s36, {512*i}')
        a('v_add_u32 v21, s36, v0')
        a('v_mul_u32_u24 v22, 0xcccd, v21')
        a('v_lshrrev_b32 v22, 21, v22')
        a('v_mul_u32_u24 v23, 40, v22')
        a('v_sub_u32 v23, v21, v23')
        a('v_bfe_u32 v21, v22, 1, 1')
        a('v_bfe_u32 v24, v22, 3, 1')
        a('v_lshlrev_b32 v24, 1, v24')
        a('v_add_u32 v21, v21, v24')
        a('v_lshlrev_b32 v21, 1, v21')
        a('v_xor_b32 v23, v23, v21')
        a('v_lshlrev_b32 v24, 4, v23')
        a('v_add_u32 v25, s35, v24')
        a(f'v_subrev_u32 v26, {16*30 - 64}, v25')
        a('v_mov_b32 v27, s20')
        a('v_mov_b32 v28, s21')
        a('v_mov_b32 v29, 7168')
        for (lim, sub, lo, hi) in ((30, 16*20 - 64, 18, 19), (20, 16*16, 20, 21), (16, 16*12, 18, 19)):
            a(f'v_cmp_gt_u32 vcc, {lim}, v23')
            a(f'v_subrev_u32 v21, {sub}, v25')
            a('s_nop 0')
            a('v_cndmask_b32 v26, v26, v21, vcc')
            a(f'v_mov_b32 v21, s{lo}')
            a('v_cndmask_b32 v27, v27, v21, vcc')
            a(f'v_mov_b32 v21, s{hi}')
            a('v_cndmask_b32 v28, v28, v21, vcc')
        a('v_cmp_gt_u32 vcc, 12, v23')
        a('v_add_u32 v21, s34, v24')
        a('s_nop 0')
        a('v_cndmask_b32 v26, v26, v21, vcc')
        a('v_mov_b32 v21, s16')
        a('v_cndmask_b32 v27, v27, v21, vcc')
        a('v_mov_b32 v21, s17')
        a('v_cndmask_b32 v28, v28, v21, vcc')
        a('v_mov_b32 v21, 6144')
        a('v_cndmask_b32 v29, v29, v21, vcc')
        a('v_mul_lo_u32 v21, v22, v29')
        a('v_add_u32 v21, v21, v26')
        a(f'v_add_co_u32 v{A0}, vcc, v27, v21')
        a('s_nop 1')
        a(f'v_addc_co_u32 v{A1}, vcc, 0, v28, vcc')
        a(f'v_lshlrev_b32 v{ST}, 5, v29')
    a('s_lshl_b32 s38, s24, 11')
    a('s_lshl_b32 s39, s24, 10')
    a('v_and_b32 v24, 15, v0')
    a('v_lshrrev_b32 v25, 4, v0')
    a('s_lshl_b32 s35, s30, 6')
    a('v_add_u32 v26, s35, v24')
    a('v_lshlrev_b32 v26, 6, v26')
    a('v_lshrrev_b32 v27, 2, v24')
    a('v_sub_u32 v27, 0, v27')
    a('v_and_b32 v27, 3, v27')
    a('v_xor_b32 v27, v27, v25')
    a('v_lshlrev_b32 v27, 4, v27')
    a('v_add_u32 v21, v26, v27')
    a('v_lshlrev_b32 v26, 3, v25')
    a('v_lshrrev_b32 v27, 2, v24')
    a('v_add_u32 v26, v26, v27')
    a('v_mul_u32_u24 v26, 640, v26')
    a('v_and_b32 v27, 1, v24')
    a('v_lshlrev_b32 v27, 3, v27')
    a('v_add_u32 v26, v26, v27')
    a(f'v_add_u32 v26, {BOFF}, v26')
    a('v_bfe_u32 v27, v24, 3, 1')
    a('v_lshlrev_b32 v27, 1, v27')
    a('v_and_b32 v32, 1, v25')
    a('v_lshlrev_b32 v32, 2, v32')
    a('v_add_u32 v27, v27, v32')
    a('v_bfe_u32 v32, v24, 1, 1')
    a('s_lshl_b32 s35, s31, 1')
    a('s_mul_i32 s36, s31, 10')
    for j in range(4):
        a(f's_add_u32 s37, s35, {j}')
        a('s_and_b32 s37, s37, 3')
        a('s_lshl_b32 s37, s37, 1')
        a('v_add_u32 v33, s37, v32')
        a('v_xor_b32 v33, v33, v27')
        a('v_lshlrev_b32 v33, 4, v33')
        a(f's_add_u32 s37, s36, {j}')
        a('s_lshr_b32 s37, s37, 2')
        a('s_lshl_b32 s37, s37, 7')
        a('v_add_u32 v33, s37, v33')
        a(f'v_add_u32 v{28+j}, v26, v33')
    a(f'v_add_u32 v22, {2*STAGE}, v21')
    for j in range(4):
        a(f'v_add_u32 v{32+j}, {2*STAGE}, v{28+j}')
    XF = [36, 52]
    WR = 68
    RING = 6
    PF = P.get('PF', 4)
    ACC = 96
    for i in range(ACC, 256):
        a(f'v_mov_b32 v{i}, 0')
    a('s_mov_b32 s40, 0')

    def dma_one(stage, idx):
        if P.get('nodma'):
            return
        if P.get('noA') and idx < 2:
            return
        if P.get('noB') and idx >= 2:
            return
        if idx < 2:
            a(f's_add_u32 m0, s38, {stage*STAGE + idx*1024}')
            a('s_nop 0')
            a(f'buffer_load_dwordx4 v{2+idx}, s[{sA}:{sA+3}], s40 offen lds')
            if idx == 1:
                a('s_add_u32 s40, s40, 64')
        else:
            i = idx - 2
            if i == 2:
                a('s_cmp_ge_u32 s24, 4')
                a(f's_cbranch_scc1 G1_sk{dma_one.n}')
            a(f's_add_u32 m0, s39, {stage*STAGE + BOFF + i*8192}')
            a('s_nop 0')
            a(f'global_load_lds_dwordx4 v[{6+2*i}:{7+2*i}], off')
            a(f'v_add_co_u32 v{6+2*i}, vcc, v{6+2*i}, v{16+i}')
            a('s_nop 1')
            a(f'v_addc_co_u32 v{7+2*i}, vcc, 0, v{7+2*i}, vcc')
            if i == 2:
                a.label(f'G1_sk{dma_one.n}')
                dma_one.n += 1
    dma_one.n = 0

    sb = LdsSB(a)
    NSTEP = 32

    def xread(s, mb):
        if P.get('nords'):
            return
        stage = s % NST
        a(f'ds_read_b128 v[{XF[s&1]+mb*4}:{XF[s&1]+mb*4+3}], v{21+(stage>>1)} offset:{(stage&1)*STAGE + mb*1024}')
        sb.issue(('x', s, mb))

    def wread(n):
        if P.get('nords'):
            return
        s, b = divmod(n, 10)
        stage = s % NST
        r = WR + (n % RING) * 4
        for half in range(2):
            a(f'ds_read_b64_tr_b16 v[{r+half*2}:{r+half*2+1}], v{28+4*(stage>>1)+(b&3)} offset:{(stage&1)*STAGE + (b>>2)*128 + half*4*640}')
            sb.issue(('w', n))

    for s in range(3):
        for idx in range(5):
            dma_one(s, idx)
    a('s_waitcnt vmcnt(8)')
    a('s_barrier')
    for mb in range(4):
        xread(0, mb)
    for n in range(PF):
        wread(n)
    NSLOT = NSTEP * 10
    if P.get('prio'):
        a('s_cmp_ge_u32 s24, 4')
        a('s_cbranch_scc0 G1_noprio')
        a('s_setprio 1')
        a.label('G1_noprio')
    for n in range(NSLOT):
        s, b = divmod(n, 10)
        if b == 0:
            if s + 1 < NSTEP:
                newer = 4 if s + 2 < NSTEP else 0
                a(f's_waitcnt vmcnt({newer})')
                a('s_barrier')
        if n + PF < NSLOT:
            wread(n + PF)
        if 5 <= b <= 8 and s + 1 < NSTEP:
            xread(s + 1, b - 5)
        sb.need([('w', n)] + [('x', s, mb) for mb in range(4)])
        r = WR + (n % RING) * 4
        for mb in range(4):
            acc = ACC + (b * 4 + mb) * 4
            if not P.get('nomfma'):
                a(f'v_mfma_f32_16x16x32_bf16 v[{acc}:{acc+3}], v[{r}:{r+3}], v[{XF[s&1]+mb*4}:{XF[s&1]+mb*4+3}], v[{acc}:{acc+3}]')
        if P.get('dma_burst'):
            if b == 0 and s + 3 < NSTEP:
                for idx in range(5):
                    dma_one((s + 3) % NST, idx)
        elif P.get('dma_late'):
            if b >= 5 and s + 3 < NSTEP:
                dma_one((s + 3) % NST, b - 5)
        elif P.get('dma_spread'):
            if b % 2 == 0 and s + 3 < NSTEP:
                dma_one((s + 3) % NST, b // 2)
        elif b < 5 and s + 3 < NSTEP:
            dma_one((s + 3) % NST, b)
    a('s_nop 15')
    RS = 432
    a('s_barrier')
    a('v_and_b32 v10, 15, v0')
    a('v_lshrrev_b32 v11, 4, v0')
    a('s_lshl_b32 s35, s30, 6')
    a('v_add_u32 v10, s35, v10')
    a(f'v_mul_u32_u24 v12, {RS}, v10')
    a('v_lshlrev_b32 v11, 3, v11')
    a('v_add_u32 v12, v12, v11')

    def hcalc(gb, ub, mb):
        g_ = ACC + (gb * 4 + mb) * 4
        u_ = ACC + (ub * 4 + mb) * 4
        for p in range(2):
            a(f'v_cvt_pk_bf16_f32 v14, v{g_+2*p}, v{g_+2*p+1}')
            a(f'v_cvt_pk_bf16_f32 v15, v{u_+2*p}, v{u_+2*p+1}')
            a('v_lshlrev_b32 v16, 16, v14')
            a('v_and_b32 v17, 0xffff0000, v14')
            a('v_lshlrev_b32 v18, 16, v15')
            a('v_and_b32 v19, 0xffff0000, v15')
            a('v_max_f32 v16, 0, v16')
            a('v_max_f32 v17, 0, v17')
            a('v_mul_f32 v16, v16, v18')
            a('v_mul_f32 v17, v17, v19')
            a(f'v_cvt_pk_bf16_f32 v{20+p}, v16, v17')

    a('s_cmp_eq_u32 s31, 0')
    a('s_cbranch_scc0 G1_epi1')
    for b in range(6):
        for mb in range(4):
            q = ACC + (b * 4 + mb) * 4
            a(f'v_cvt_pk_bf16_f32 v20, v{q}, v{q+1}')
            a(f'v_cvt_pk_bf16_f32 v21, v{q+2}, v{q+3}')
            a(f'ds_write_b64 v12, v[20:21] offset:{mb*16*RS + b*32}')
    for bb in range(2):
        for mb in range(4):
            hcalc(6 + bb, 8 + bb, mb)
            a(f'ds_write_b64 v12, v[20:21] offset:{mb*16*RS + 192 + bb*32}')
    a('s_branch G1_epi2')
    a.label('G1_epi1')
    for bb in range(5):
        for mb in range(4):
            hcalc(bb, 5 + bb, mb)
            a(f'ds_write_b64 v12, v[20:21] offset:{mb*16*RS + 192 + 64 + bb*32}')
    a.label('G1_epi2')
    a('s_waitcnt lgkmcnt(0)')
    a('s_barrier')
    srd_from(a, sO, 22, 64 << 20)
    a('s_lshl_b32 s34, s27, 8')
    a('s_lshl_b32 s35, s24, 5')
    a('s_add_u32 s34, s34, s35')
    a('s_mul_i32 s36, s28, 192')
    a(f's_add_u32 s36, s36, {QKV_OFF}')
    a('s_mul_i32 s37, s28, 224')
    a(f's_add_u32 s37, s37, {OH_OFF + 2048}')
    for k in range(13):
        a(f'v_add_u32 v21, {64*k}, v0')
        a('v_mul_u32_u24 v22, 0x9d8a, v21')
        a('v_lshrrev_b32 v22, 20, v22')
        a('v_mul_u32_u24 v23, 26, v22')
        a('v_sub_u32 v23, v21, v23')
        a('v_add_u32 v24, s35, v22')
        a(f'v_mul_u32_u24 v24, {RS}, v24')
        a('v_lshlrev_b32 v25, 4, v23')
        a('v_add_u32 v24, v24, v25')
        R = 96 + (k & 3) * 4
        a(f'ds_read_b128 v[{R}:{R+3}], v24')
        a('v_add_u32 v22, s34, v22')
        a(f'v_mul_u32_u24 v26, {LD_QKV}, v22')
        a('v_add_u32 v26, s36, v26')
        a(f'v_mul_u32_u24 v27, {LD_OH}, v22')
        a('v_add_u32 v27, s37, v27')
        a('v_subrev_u32 v27, 192, v27')
        a('v_cmp_gt_u32 vcc, 12, v23')
        a('s_nop 1')
        a('v_cndmask_b32 v26, v27, v26, vcc')
        a(f'v_add_u32 v{40+k}, v26, v25')
        if (k & 3) == 3 or k == 12:
            a('s_waitcnt lgkmcnt(0)')
            for kk in range(k - (k & 3), k + 1):
                R = 96 + (kk & 3) * 4
                a(f'buffer_store_dwordx4 v[{R}:{R+3}], v{40+kk}, s[{sO}:{sO+3}], 0 offen')
            a('s_nop 1')
    a.label('G1_done')
    a('s_endpgm')
    return kernel_desc(name, 256, 48)


def main():
    a = A()
    launches = []
    descs = []
    head = open(f'cdna_kernels/{NAME}.s.ref').read().split('\n')
    hdr = [l for l in head if l.startswith(';') and '@launch' not in l and 'Override launch' not in l and 'grid=ceil' not in l]
    which = sys.argv[1:] or ['ln', 'gemm1v3', 'attn', 'gemm2']
    body = A()
    if 'ln' in which:
        launches.append('; @launch kernel=ln_kernel grid=(%d,1,1) block=(256,1,1) lds=0' % (512 + (160 if P.get('pf') else 0)))
        descs.append(gen_ln(body))
    if 'gemm1v3' in which:
        launches.append('; @launch kernel=gemm1_kernel grid=(256,1,1) block=(512,1,1) lds=147456')
        descs.append(gen_gemm1v3(body))
    if 'gemm1v2' in which:
        launches.append('; @launch kernel=gemm1_kernel grid=(256,1,1) block=(512,1,1) lds=147456')
        descs.append(gen_gemm1v2(body))
    if 'gemm1' in which:
        launches.append(f'; @launch kernel=gemm1_kernel grid=(1280,1,1) block=(256,1,1) lds={32768*P["g1_nst"]}')
        descs.append(gen_gemm1(body))
    if 'attn' in which:
        launches.append('; @launch kernel=attn_kernel grid=(%d,1,1) block=(256,1,1) lds=40960' % (1024 + (72 if P.get('pf') else 0)))
        descs.append(gen_attn(body))
    if 'gemm2' in which:
        launches.append('; @launch kernel=gemm2_kernel grid=(256,1,1) block=(256,1,1) lds=98304')
        descs.append(gen_gemm2(body))
    out = '\n'.join(hdr) + '\n' + '\n'.join(launches) + '\n'
    out += '.amdgcn_target "amdgcn-amd-amdhsa--gfx950"\n.text\n'
    out += body.text()
    out += '.section .rodata,"a"\n.p2align 6\n' + '.p2align 6\n'.join(descs)
    open(os.environ.get('OUT', f'cdna_kernels/{NAME}.s'), 'w').write(out)


main()
```
